```python
import torch

def _softmax(x, axis=-1):
    return torch.softmax(x, dim=axis)
def _gelu(x):
    return torch.nn.functional.gelu(x, approximate="tanh")
def _silu(x):
    return torch.nn.functional.silu(x)
def _sigmoid(x):
    return torch.sigmoid(x)
def _layernorm(x, axis=-1, eps=1e-5):
    m = x.mean(dim=axis, keepdim=True)
    v = x.var(dim=axis, keepdim=True, unbiased=False)
    return (x - m) / torch.sqrt(v + eps)
def _scatter_add(tgt, idx, src, axis=0):
    return tgt.clone().index_add_(axis, idx, src)
def _segment_sum(src, seg, n):
    out = torch.zeros((n,) + src.shape[1:], dtype=src.dtype)
    return out.index_add_(0, seg, src)
def _pad(x, pw):
    flat = tuple(v for pair in reversed(pw) for v in pair)
    return torch.nn.functional.pad(x, flat)

kernel_name = 'standalone__sequential_behavior_din__recsys'

def setup_inputs():

    _w = (lambda a: (lambda t: t.to(torch.bfloat16) if t.is_floating_point() else t)(torch.as_tensor(a)))
    B, L, D = 16384, 200, 64
    H = D
    return {
        "target": _w((lambda *s: torch.randn(*s, dtype=torch.bfloat16) * 1.6)(B, D)),
        "hist": _w((lambda *s: torch.randn(*s, dtype=torch.bfloat16) * 1.6)(B, L, D)),
        "mask": _w((lambda lo, hi, *s: torch.randint(lo, hi, s))(0, 2, B, L).to(float)),
        "w1": _w((lambda *s: torch.randn(*s, dtype=torch.bfloat16) * 1.6)(4 * D, H) * (4 * D) ** -0.5),
        "b1": _w((lambda *s: torch.randn(*s, dtype=torch.bfloat16) * 1.6)(H) * 0.1),
        "w2": _w((lambda *s: torch.randn(*s, dtype=torch.bfloat16) * 0.05)(H, 1) * H ** -0.5),
        "b2": _w((lambda *s: torch.randn(*s, dtype=torch.bfloat16) * 0.05)(1) * 0.1),
    }

def reference(target, hist, mask, w1, b1, w2, b2):
    L = hist.shape[1]
    tgt = (lambda x, n, axis: torch.repeat_interleave(x, n, dim=axis))(target[:, None, :], L, axis=1)
    feat = torch.concatenate([hist, tgt, hist - tgt, hist * tgt], axis=-1)
    h = _sigmoid(feat @ w1 + b1)
    scores = (h @ w2 + b2)[..., 0] * mask
    return torch.einsum('bl,bld->bd', scores, hist)
```

```python
import re, sys

TRANS = ('v_exp_f32','v_rcp_f32','v_log_f32','v_rsq_f32','v_sqrt_f32','v_sin_f32','v_cos_f32','v_exp_f16','v_rcp_f16')

def regs(tok):
    tok = tok.strip()
    tok = tok.lstrip('-')
    if tok.startswith('abs(') or tok.startswith('|'):
        tok = tok.replace('abs(','').replace(')','').replace('|','')
    m = re.fullmatch(r'([vsa])(\d+)', tok)
    if m: return {(m.group(1), int(m.group(2)))}
    m = re.fullmatch(r'([vsa])\[(\d+):(\d+)\]', tok)
    if m: return {(m.group(1), i) for i in range(int(m.group(2)), int(m.group(3))+1)}
    if tok == 'vcc': return {('s',106),('s',107)}
    if tok == 'vcc_lo': return {('s',106)}
    if tok == 'vcc_hi': return {('s',107)}
    if tok == 'exec': return {('s',126),('s',127)}
    if tok == 'exec_lo': return {('s',126)}
    if tok == 'exec_hi': return {('s',127)}
    if tok == 'm0': return {('s',124)}
    return set()

class I:
    def __init__(s, text, line):
        s.text = text; s.line = line
        parts = text.split(None, 1)
        s.op = parts[0]
        rest = parts[1] if len(parts) > 1 else ''
        ops = []; depth = 0; cur = ''
        for ch in rest:
            if ch == '[': depth += 1
            if ch == ']': depth -= 1
            if ch == ',' and depth == 0:
                ops.append(cur.strip()); cur = ''
            else: cur += ch
        if cur.strip(): ops.append(cur.strip())
        s.mods = ''
        if ops:
            sp = ops[-1].split(None, 1)
            ops[-1] = sp[0]
            if len(sp) > 1: s.mods = sp[1]
        s.ops = ops
        op = s.op
        s.mfma = op.startswith('v_mfma')
        s.valu = op.startswith('v_') and not s.mfma
        s.trans = any(op.startswith(t) for t in TRANS)
        s.salu = op.startswith('s_')
        s.ds = op.startswith('ds_')
        s.vmem = op.startswith('buffer_') or op.startswith('global_')
        s.lds_dma = s.vmem and (' lds' in ' ' + s.mods or 'load_lds' in op)
        s.w = set(); s.r = set(); s.srcc = set(); s.ab = set()
        R = [regs(o) for o in ops]
        if s.mfma:
            s.w = R[0]; s.ab = R[1] | R[2]; s.srcc = R[3]; s.r = s.ab | s.srcc
            s.passes = 8 if '32x32' in op else 4
        elif s.valu:
            if op.startswith('v_cmp'):
                s.w = R[0]; s.r = set().union(*R[1:])
            elif op.startswith(('v_add_co','v_sub_co','v_addc_co','v_subb_co')):
                s.w = R[0] | R[1]; s.r = set().union(*R[2:])
            elif op.startswith(('v_permlane32_swap','v_permlane16_swap','v_swap')):
                s.w = R[0] | R[1]; s.r = R[0] | R[1]
            else:
                s.w = R[0]; s.r = set().union(*R[1:]) if len(R) > 1 else set()
                if op.startswith(('v_fmac','v_dot2c','v_pk_fmac')): s.r |= R[0]
                if 'UNUSED_PRESERVE' in s.mods: s.r |= R[0]
                if op.startswith('v_cndmask') and len(ops) == 3: s.r |= regs('vcc')
        elif s.ds:
            if op.startswith(('ds_read','ds_bpermute','ds_permute','ds_swizzle')) or '_rtn' in op:
                s.w = R[0]; s.r = set().union(*R[1:])
            else:
                s.r = set().union(*R)
        elif s.vmem:
            if s.lds_dma or 'store' in op:
                s.r = set().union(*R)
                if s.lds_dma: s.r |= regs('m0')
            else:
                s.w = R[0]; s.r = set().union(*R[1:])
        elif s.salu:
            if op.startswith(('s_cmp','s_cbranch','s_branch','s_waitcnt','s_nop','s_barrier','s_endpgm','s_setprio','s_sleep','s_bitcmp')):
                s.r = set().union(*R) if R else set()
            else:
                s.w = R[0] if R else set(); s.r = set().union(*R[1:]) if len(R) > 1 else set()
                if 'saveexec' in op: s.w |= regs('exec')
        s.states = 1
        if op == 's_nop': s.states = int(ops[0], 0) + 1

def parse(text):
    ins = []; labels = {}
    for ln, raw in enumerate(text.split('\n'), 1):
        t = raw.split(';')[0].split('//')[0].strip()
        if not t or t.startswith('.'): continue
        m = re.fullmatch(r'([\w.$]+):', t)
        if m: labels[m.group(1)] = len(ins); continue
        ins.append(I(t, ln))
    return ins, labels

def succ(ins, labels, i):
    x = ins[i]
    if x.op == 's_endpgm': return []
    if x.op == 's_branch': return [labels[x.ops[0]]]
    if x.op == 's_call_b64': return [labels[x.ops[1]]]
    if x.op == 's_setpc_b64': return [j+1 for j, y in enumerate(ins) if y.op == 's_call_b64' and y.ops[0] == x.ops[0]]
    out = [i+1] if i+1 < len(ins) else []
    if x.op.startswith('s_cbranch'): out.append(labels[x.ops[0]])
    return out

def vonly(s): return {r for r in s if r[0] in 'va'}
def sonly(s): return {r for r in s if r[0] == 's'}

def need(p, c):
    n = 0; why = ''
    def up(k, w):
        nonlocal n, why
        if k > n: n = k; why = w
    if p.valu and c.mfma and vonly(p.w) & c.r: up(2, 'VALU->MFMA')
    if p.mfma:
        big = 12 if p.passes == 8 else 8
        if c.mfma:
            if p.w & c.ab: up(big, 'MFMA D->MFMA A/B')
            if p.w & c.srcc:
                if not (p.w == c.srcc and p.passes == c.passes): up(10 if p.passes == 8 else 6, 'MFMA D->MFMA C overlap')
            if (p.w & c.w) and not (p.w == c.srcc and p.passes == c.passes): up(10 if p.passes == 8 else 6, 'MFMA D->MFMA D WAW')
        else:
            if (c.valu and p.w & (c.r | c.w)) or ((c.ds or c.vmem) and p.w & (c.r | c.w)): up(big, 'MFMA D->VALU/mem')
            if c.valu and p.srcc & c.w: up(7 if p.passes == 8 else 3, 'MFMA C WAR')
    if p.trans and c.valu and not c.trans and p.w & c.r: up(1, 'trans->VALU')
    if p.valu and sonly(p.w):
        if c.valu and sonly(p.w) & c.r:
            up(4 if c.op.startswith(('v_readlane','v_writelane')) else 2, 'VALU SGPR->VALU')
        if c.vmem and sonly(p.w) & c.r: up(5, 'VALU SGPR->VMEM')
        if c.mfma and regs('exec') & p.w: up(4, 'VALU exec->MFMA')
    if p.salu and regs('m0') & p.w and c.lds_dma: up(1, 'm0->DMA')
    if p.valu and c.op.startswith(('v_readfirstlane','v_readlane')) and vonly(p.w) & c.r: up(1, 'VALU->readlane')
    if p.valu and c.valu and ('dpp' in c.op or 'quad_perm' in c.mods or 'row_' in c.mods) and vonly(p.w) & c.r: up(2, 'VALU->DPP')
    if p.valu and c.op.startswith('v_permlane') and vonly(p.w) & c.r: up(2, 'VALU->permlane')
    if p.valu and ('dst_sel:WORD' in p.mods or 'dst_sel:BYTE' in p.mods) and c.valu and p.w & (c.r | c.w): up(1, 'SDWA dst')
    if p.vmem and 'store' in p.op and ('x4' in p.op or 'x3' in p.op) and vonly(p.r) & c.w: up(2, 'store data WAR')
    if p.ds and p.op in ('ds_write_b128','ds_write_b96') and False: pass
    return n, why

def check(text, verbose=True):
    ins, labels = parse(text)
    bad = 0
    for i, p in enumerate(ins):
        if not (p.valu or p.mfma or p.salu or p.vmem): continue
        stack = [(j, 0) for j in succ(ins, labels, i)]
        seen = {}
        while stack:
            j, d = stack.pop()
            if d >= 12: continue
            if seen.get(j, 99) <= d: continue
            seen[j] = d
            c = ins[j]
            n, why = need(p, c)
            if n > d:
                bad += 1
                if verbose and bad <= 4: print(f'HAZARD {why}: need {n} have {d}\n   L{p.line}: {p.text}\n   L{c.line}: {c.text}')
            for k in succ(ins, labels, j): stack.append((k, d + c.states))
    return bad

if __name__ == '__main__':
    b = check(open(sys.argv[1]).read())
    print('hazards:', b)
    sys.exit(1 if b else 0)
```

```python
import sys, os
sys.path.insert(0, os.path.join(os.path.dirname(os.path.abspath(__file__)), 'exp'))

OPT = dict(STAMP=0, NOMEM=0, THR=0x7b800000, KILL=0, HP=1, STP=1, CPF=2, YP=1, HALF=1, DM=2, PO=1, PF=1, DEF=1, X0H=1, LT=1, TNT=1, HPT=0, OPT_=0, DRN=1, V=18, PADV=0, MAP=0, MP=1, SPEC=0, RES=0, POL_=1, SUB=1, DLY=0, TPF=0, TPP=1, E1=1, E2=0, MPF=0, MPL=1, MPS=0, SPIN=0, SEL=0, SELWG=-1, SELW=-1)
for a in sys.argv[1:]:
    if '=' in a:
        k, v_ = a.split('='); OPT[k] = int(v_, 0)
R = 3
WMAX = 0x40800000
NW = 8
NBW = 64
NWG = 16384 // NBW
MAP = OPT['MAP']
IDS = NWG if MAP else 1
WGS = 1 if MAP else NBW
RSH = 15 if MAP else 7
POL = ['', ' nt', ' sc1', ' sc0 sc1', ' sc1 nt', ' sc0 nt', ' sc0 sc1 nt', ' sc0']
NL2E = 0xBFB8AA3B

WAC = 0
W2T = 16384; B1T = W2T + 256; CNT = W2T + 512
RING = 16384 + 640
TAB = RING + NW * R * 4096
TS = 528
PW = TAB + (NBW * TS + 127) // 128 * 128
LDS_BYTES = PW + NW * 1152
assert LDS_BYTES <= 163840 and PW % 128 == 0 and RING % 128 == 0

L = []
INLOOP = [False]
def e(s):
    K = OPT['KILL'] if INLOOP[0] else 0
    if K & 512 and s.startswith('buffer_store'): return
    if K & 256 and s.startswith(('v_exp','v_mfma')): s = 's_nop 0'
    if K & 256 and s.startswith(('v_pk','v_rcp','v_cvt','v_cmp_ngt','s_cbranch_vccnz','v_fma','v_mul_f32','v_add_f32','v_permlane')): return
    L.append('    ' + s)
def lab(s): L.append(s + ':')

_v = [0]
def valloc(n, al=1):
    b = (_v[0] + al - 1) // al * al
    _v[0] = b + n
    return b
T = valloc(8, 2); ACC = valloc(1); JUNK = valloc(1); MK = valloc(2, 2)
WD = valloc(64, 4); WE = valloc(32, 4); D = valloc(32, 4); W2 = valloc(16, 4); CB = valloc(16, 4)
B = valloc(16, 4); B3 = valloc(16, 4); O = valloc(16, 4); A3 = valloc(4, 4)
IDX = valloc(8, 2); AB = valloc(4); AT = valloc(4); MV = valloc(R)
ALI = valloc(1); ALM = valloc(1); ALI0 = valloc(1); ALM0 = valloc(1)
ASR = valloc(1); ASW = valloc(1); L4 = valloc(1); V16 = valloc(1); L8X = valloc(1); VCN = valloc(2, 2)
NVGPR = _v[0]
assert NVGPR <= 256, NVGPR

def v(n, c=1): return f'v{n}' if c == 1 else f'v[{n}:{n+c-1}]'
def s(n, c=1): return f's{n}' if c == 1 else f's[{n}:{n+c-1}]'

SRD_H, SRD_M, SRD_O, SRD_T, SRD_W1, SRD_C = 20, 24, 28, 32, 36, 40
(S_WAVE, S_WGB, S_WGH, S_PI, S_PNX, S_PSOFF, S_CUR, S_PREV, S_RING, S_SCR, S_LIST, S_T0, S_T1, S_T2,
 S_L2E, S_THR, S_B2Q, S_HI16, S_FFFF, S_TAB) = range(44, 64)
S_LIM = 75
S_BAL = 64
S_INFO = 72
S_RA = 32; S_RB = 34
S_M0 = 76
NSGPR = 88 if OPT['DM'] == 4 else 76
S_ST = NSGPR
if OPT['STAMP']: NSGPR += 14 if OPT['DM'] == 4 else 16
def stamp3(i):
    if OPT['STAMP'] == 3:
        e(f's_memrealtime {s(S_ST+2*i,2)}')
        e('s_waitcnt lgkmcnt(0)')
def wstamp(i):
    if OPT['STAMP'] == 6:
        e(f's_memrealtime {s(S_ST+2*i,2)}')
        e('s_waitcnt lgkmcnt(0)')
def stamp(i):
    if OPT['STAMP'] == 6 and i in (2, 3): return
    if OPT['STAMP'] == 3:
        if i == 0: stamp3(0)
        if i == 4: stamp3(1)
        if i == 5: stamp3(7)
        return
    if OPT['STAMP']:
        if OPT['STAMP'] == 2 and i in (3, 4): return
        e(f's_memrealtime {s(S_ST+2*i,2)}')
        if OPT['STAMP'] == 2 and i in (5, 6): e(f's_memtime {s(S_ST+2*(i-2),2)}')
        e('s_waitcnt lgkmcnt(0)')

KN = 'standalone__sequential_behavior_din__recsys_kernel'

class LQ:
    def __init__(self): self.q = []
    def op(self, text, tag=None): e(text); self.q.append(tag)
    def wait(self, tag):
        i = max(j for j, t in enumerate(self.q) if t == tag)
        e(f's_waitcnt lgkmcnt({min(len(self.q) - 1 - i, 15)})')

def M16(d, a, b, c): return f'v_mfma_f32_16x16x32_bf16 {v(d,4)}, {v(a,4)}, {v(b,4)}, ' + (v(c,4) if c is not None else '0')
def MM1(u, i):
    t, sx = i >> 1, i & 1
    return M16(D+16*u+4*t, WE+4*i, B+8*u+4*sx, D+16*u+4*t if sx else CB+4*t)
def MM3(dt): return M16(O+4*dt, A3, B3+4*dt, O+4*dt)
def EX(u, i): return f'v_exp_f32 {v(D+16*u+i)}, {v(D+16*u+i)}'
def IDXR(c): return f'ds_read_u8 {v(IDX+2*c)}, {v(ALI)} offset:{32*c}'
def M0S(k, c): return f's_add_u32 m0, {s(S_RING)}, {k*4096 + c*1024}'
def M0N(k, c): return f's_mov_b32 m0, {s(S_M0+4*k+c)}'
def DMA(c): return f'buffer_load_dwordx4 {v(IDX+2*c,2)}, {s(SRD_H,4)}, {s(S_PSOFF)} idxen offen{POL[OPT["HP"]]} lds'
def MVR(k): return f'ds_read_u16_d16_hi {v(MV+k)}, {v(ALM)} offset:2'
def BRD(k, i): return f'ds_read_b128 {v(B+4*i,4)}, {v(AB+i)} offset:{k*4096}'
def TRR(k, dt, jh): return f'ds_read_b64_tr_b16 {v(B3+4*dt+2*jh,2)}, {v(AT+dt)} offset:{k*4096+512*jh}'
def HI():
    if OPT['YP']: e('s_setprio 1')
def LO():
    if OPT['YP']: e('s_setprio 0')

def sperm(dst, src):
    if MAP == 2:
        e(f's_brev_b32 {s(dst)}, {s(src)}')
        e(f's_lshr_b32 {s(dst)}, {s(dst)}, 26')
        e(f's_cmp_lt_u32 {s(src)}, {NBW}')
        e(f's_cselect_b32 {s(dst)}, {s(dst)}, {s(src)}')
        return dst
    if MAP == 3:
        e(f's_xor_b32 {s(dst)}, {s(src)}, 63')
        return dst
    return src
def ticket_issue():
    e('s_mov_b64 exec, 1')
    e(f'ds_add_rtn_u32 {v(T+6)}, {v(VCN)}, {v(VCN+1)}')
    e('s_mov_b64 exec, -1')
def mask_load():
    e(f's_mul_i32 {s(S_T1)}, {s(sperm(S_T1, S_PNX))}, {400*IDS}')
    e(f'v_add_u32 {v(T+4)}, {s(S_T1)}, {v(L8X)}')
    e(f'buffer_load_dwordx2 {v(MK,2)}, {v(T+4)}, {s(SRD_M,4)}, 0 offen{POL[OPT["MP"]]}')

_tp = 0
def adv(wait, static=False, ticket=True):
    if wait is not None: e(f's_waitcnt vmcnt({wait})')
    if not static and ticket: ticket_issue()
    e(f'v_lshl_or_b32 {v(T+0)}, {v(MK)}, 16, {v(L4)}')
    e(f'v_and_or_b32 {v(T+1)}, {v(MK)}, {s(S_HI16)}, {v(L4)}')
    e(f'v_lshl_or_b32 {v(T+2)}, {v(MK+1)}, 16, {v(L4)}')
    e(f'v_and_or_b32 {v(T+3)}, {v(MK+1)}, {s(S_HI16)}, {v(L4)}')
    for j in range(4):
        e(f'v_cmp_lt_u32_e64 {s(S_BAL+2*j,2)}, {s(S_FFFF)}, {v(T+j)}')
    for j in range(1, 4):
        e(f'v_or_b32 {v(T+j)}, {j}, {v(T+j)}')
    if static and OPT['SPEC']:
        for j in range(4): e(f's_or_b32 {s(S_BAL+2*j)}, {s(S_BAL+2*j)}, 0xff')
    e(f'v_mbcnt_lo_u32_b32 {v(T+5)}, {s(S_BAL)}, 0')
    e(f'v_mbcnt_hi_u32_b32 {v(T+5)}, {s(S_BAL+1)}, {v(T+5)}')
    for j in range(1, 4):
        e(f'v_mbcnt_lo_u32_b32 {v(T+5)}, {s(S_BAL+2*j)}, {v(T+5)}')
        e(f'v_mbcnt_hi_u32_b32 {v(T+5)}, {s(S_BAL+2*j+1)}, {v(T+5)}')
    e(f'v_lshl_add_u32 {v(T+5)}, {v(T+5)}, 2, {s(S_LIST)}')
    e(f's_bcnt1_i32_b64 {s(S_T0)}, {s(S_BAL,2)}')
    e(f's_bcnt1_i32_b64 {s(S_T1)}, {s(S_BAL+2,2)}')
    e(f's_add_u32 {s(S_T0)}, {s(S_T0)}, {s(S_T1)}')
    e(f's_bcnt1_i32_b64 {s(S_T1)}, {s(S_BAL+4,2)}')
    e(f's_add_u32 {s(S_T0)}, {s(S_T0)}, {s(S_T1)}')
    e(f's_bcnt1_i32_b64 {s(S_T1)}, {s(S_BAL+6,2)}')
    e(f's_add_u32 {s(S_T0)}, {s(S_T0)}, {s(S_T1)}')
    for j in range(4):
        e(f's_mov_b64 exec, {s(S_BAL+2*j,2)}')
        e(f'ds_write_b32 {v(T+5)}, {v(T+j)}')
        if j < 3: e(f'v_add_u32 {v(T+5)}, 4, {v(T+5)}')
    e('s_mov_b32 exec_lo, -1')
    e('s_mov_b32 exec_hi, 0')
    e(f's_lshl2_add_u32 {s(S_T1)}, {s(S_T0)}, {s(S_LIST)}')
    e(f'v_add_u32 {v(T+5)}, {s(S_T1)}, {v(L4)}')
    e(f'v_mov_b32 {v(T+7)}, 0xff')
    e(f'ds_write_b32 {v(T+5)}, {v(T+7)}')
    e('s_mov_b32 exec_hi, -1')
    if OPT['TPF'] and not static:
        e(f'v_lshl_add_u32 {v(T+4)}, {v(L4)}, {2+OPT["TPF"]}, {s(S_LIST)}')
        e(f's_add_u32 {s(S_T2)}, {s(S_T0)}, {(4<<OPT["TPF"])-1}')
        e(f's_lshr_b32 {s(S_T2)}, {s(S_T2)}, {2+OPT["TPF"]}')
        e(f's_bfm_b64 {s(S_BAL,2)}, {s(S_T2)}, 0')
        e(f's_mov_b64 exec, {s(S_BAL,2)}')
        e(f'ds_read_u8 {v(T+4)}, {v(T+4)}')
        e('s_mov_b64 exec, -1')
    e(f'v_mov_b32 {v(ALI)}, {v(ALI0)}')
    e(f'v_mov_b32 {v(ALM)}, {v(ALM0)}')
    e(f's_max_u32 {s(S_T0)}, {s(S_T0)}, 1')
    e(f's_add_u32 {s(S_T0)}, {s(S_T0)}, 31')
    e(f's_lshl_b32 {s(S_T0)}, {s(S_T0)}, 3')
    e(f's_andn2_b32 {s(S_T0)}, {s(S_T0)}, 0x7f')
    if not OPT['HALF']: e(f's_or_b32 {s(S_T0)}, {s(S_T0)}, 0x80')
    e(f's_or_b32 {s(S_PI)}, {s(S_T0)}, {s(S_PNX)}')
    e(f's_mul_i32 {s(S_T1)}, {s(sperm(S_T1, S_PNX))}, {25600*IDS}')
    if OPT['NOMEM']: e(f's_mov_b32 {s(S_PSOFF)}, 0')
    else: e(f's_add_u32 {s(S_PSOFF)}, {s(S_T1)}, {s(S_WGH)}')
    if OPT['TPF'] and not static:
        global _tp
        _tp += 1
        e(f's_cmp_eq_u32 {s(S_T2)}, 0')
        e(f's_cbranch_scc1 TP_{_tp}')
        e(f's_mov_b64 exec, {s(S_BAL,2)}')
        e('s_waitcnt lgkmcnt(0)')
        e(f'buffer_load_dword {v(JUNK)}, {v(T+4)}, {s(SRD_H,4)}, {s(S_PSOFF)} idxen{POL[OPT["TPP"]]}')
        e('s_mov_b64 exec, -1')
        lab(f'TP_{_tp}')
    if not ticket:
        e(f's_mov_b32 {s(S_LIM)}, 0x300')
        return
    if static:
        e(f's_add_u32 {s(S_PNX)}, {s(S_PNX)}, {NW}')
    else:
        e('s_waitcnt lgkmcnt(5)')
        e(f'v_readfirstlane_b32 {s(S_PNX)}, {v(T+6)}')
    mask_load()

def producer(tag, ret):
    e(f's_cmp_eq_u32 {s(S_LIM)}, 0x100')
    e(f's_cbranch_scc1 PA_{tag}')
    ticket_issue()
    e(f's_mov_b32 {s(S_LIM)}, 0x100')
    e('s_waitcnt lgkmcnt(0)')
    e(f'v_readfirstlane_b32 {s(S_PNX)}, {v(T+6)}')
    if OPT['RES']:
        e(f's_cmp_lt_u32 {s(S_PNX)}, {NBW-OPT["RES"]}')
        e(f's_cbranch_scc1 PR_{tag}')
        e(f's_mov_b32 {s(S_PNX)}, {NBW}')
        e(f's_cmp_ge_u32 {s(S_WAVE)}, 4')
        e(f's_cbranch_scc1 PR_{tag}')
        e('s_mov_b64 exec, 1')
        e(f'ds_add_rtn_u32 {v(T+6)}, {v(VCN)}, {v(VCN+1)} offset:8')
        e('s_mov_b64 exec, -1')
        e('s_waitcnt lgkmcnt(0)')
        e(f'v_readfirstlane_b32 {s(S_PNX)}, {v(T+6)}')
        lab(f'PR_{tag}')
    mask_load()
    if OPT['OPT_']:
        e(f's_cmp_lt_u32 {s(S_PNX)}, {NBW}')
        e(f's_cbranch_scc1 PO_{tag}')
        e(f'buffer_load_dword {v(JUNK)}, off, {s(SRD_O,4)}, {s(S_WGB)} nt')
        lab(f'PO_{tag}')
    e(f's_cmp_ge_u32 {s(S_PI)}, 0x100')
    e(f's_cbranch_scc1 {ret}')
    e('s_waitcnt vmcnt(0)')
    lab(f'PA_{tag}')
    if OPT['DRN']:
        e(f's_cmp_lt_u32 {s(S_PNX)}, {NBW}')
        e(f's_cbranch_scc1 PB_{tag}')
        e(f'v_add_u32 {v(T+5)}, {s(S_LIST)}, {v(L4)}')
        e(f'v_mov_b32 {v(T+7)}, 0xff')
        e(f'v_mov_b32 {v(ALI)}, {v(ALI0)}')
        e(f'v_mov_b32 {v(ALM)}, {v(ALM0)}')
        e(f'ds_write_b32 {v(T+5)}, {v(T+7)}')
        e(f's_or_b32 {s(S_PI)}, {s(S_PNX)}, 0x100')
        e(f's_branch {ret}')
        lab(f'PB_{tag}')
    adv(4*(R-2), ticket=False)

def pinfo(k):
    return [f's_mov_b32 {s(S_INFO+k)}, {s(S_PI)}', f's_sub_u32 {s(S_PI)}, {s(S_PI)}, 0x100']

def dmas(k, extra):
    for c in range(4):
        e(DMA(c))
        if c < 3:
            e(M0S(k, c+1))
            e(extra[c] if c < len(extra) else 's_nop 0')

def bp(sid):
    q = LQ()
    e(f's_mul_i32 {s(S_T1)}, {s(sid)}, {TS}')
    e(f's_sub_u32 {s(S_T1)}, {s(S_T1)}, {s(S_SCR)}')
    e(f's_add_u32 {s(S_T2)}, {s(S_T1)}, {TAB+256}')
    e(f's_sub_u32 {s(S_T1)}, {s(S_T1)}, {s(S_SCR)}')
    e(f's_add_u32 {s(S_T1)}, {s(S_T1)}, {TAB}')
    e(f'v_lshl_add_u32 {v(T)}, {v(ASR)}, 1, {s(S_T1)}')
    e(f'v_add_u32 {v(T+1)}, {s(S_T2)}, {v(ASR)}')
    def wr(c):
        for jh in range(2):
            q.op(f'ds_read_b128 {v(B+8*(c&1)+4*jh,4)}, {v(V16)} offset:{WAC+(c*2+jh)*1024}', ('w', c))
    for jh in range(2): q.op(f'ds_read_b128 {v(D+4*jh,4)}, {v(T)} offset:{jh*16}')
    wr(0)
    for jh in range(2): q.op(f'ds_read_b128 {v(D+8+4*jh,4)}, {v(T)} offset:{128+jh*16}')
    wr(1)
    for c in range(8):
        sx = c & 1
        q.wait(('w', c))
        for p in range(4):
            e(f'v_pk_fma_f32 {v(B+8*sx+2*p,2)}, {v(WD+c*8+2*p,2)}, {v(D+8*sx+2*p,2)}, {v(B+8*sx+2*p,2)}')
        for p in range(4):
            e(f'v_cvt_pk_bf16_f32 {v(WE+c*4+p)}, {v(B+8*sx+2*p)}, {v(B+8*sx+2*p+1)}')
        if c + 2 < 8: wr(c + 2)
        if c == 5:
            for t in range(4): q.op(f'ds_read_b128 {v(CB+4*t,4)}, {v(T+1)} offset:{64*t}')

def chain(u, mid=None):
    b = D + 16*u
    el = lambda c, k: v(b+8*c+2*k, 2); ww = lambda c, k: v(W2+8*c+2*k, 2)
    N = lambda c: v(T+4*c, 2); Dn = lambda c: v(T+4*c+2, 2)
    for c in range(2): e(f'v_pk_add_f32 {Dn(c)}, {el(c,0)}, 1.0 op_sel_hi:[1,0]')
    for c in range(2): e(f'v_pk_fma_f32 {N(c)}, {ww(c,0)}, {el(c,1)}, {ww(c,0)}')
    for c in range(2): e(f'v_pk_fma_f32 {N(c)}, {ww(c,1)}, {Dn(c)}, {N(c)}')
    for c in range(2): e(f'v_pk_fma_f32 {Dn(c)}, {el(c,1)}, {Dn(c)}, {Dn(c)}')
    for k in range(2, 4):
        for c in range(2): e(f'v_pk_fma_f32 {N(c)}, {el(c,k)}, {N(c)}, {N(c)}')
        for c in range(2): e(f'v_pk_fma_f32 {N(c)}, {ww(c,k)}, {Dn(c)}, {N(c)}')
        for c in range(2): e(f'v_pk_fma_f32 {Dn(c)}, {el(c,k)}, {Dn(c)}, {Dn(c)}')
    e(f'v_pk_mul_f32 {N(0)}, {N(0)}, {Dn(1)}')
    e(f'v_pk_fma_f32 {N(0)}, {N(1)}, {Dn(0)}, {N(0)}')
    e(f'v_pk_mul_f32 {Dn(0)}, {Dn(0)}, {Dn(1)}')
    e(f'v_mul_f32 {v(T+4)}, {v(T+2)}, {v(T+3)}')
    e(f'v_mul_f32 {v(T)}, {v(T)}, {v(T+3)}')
    e(f'v_cmp_ngt_f32 vcc, {s(S_THR)}, {v(T+4)}')
    e(f'v_fmac_f32 {v(T)}, {v(T+1)}, {v(T+2)}')
    e(f'v_rcp_f32 {v(T+2)}, {v(T+4)}')
    if mid: e(mid)

def slow(u):
    b = D + 16*u
    for p in range(8): e(f'v_pk_add_f32 {v(b+2*p,2)}, {v(b+2*p,2)}, 1.0 op_sel_hi:[1,0]')
    for i in range(16): e(f'v_rcp_f32 {v(b+i)}, {v(b+i)}')
    e(f'v_pk_mul_f32 {v(T,2)}, {v(b,2)}, {v(W2,2)}')
    for p in range(1, 8): e(f'v_pk_fma_f32 {v(T,2)}, {v(b+2*p,2)}, {v(W2+2*p,2)}, {v(T,2)}')
    e(f'v_mov_b32 {v(T+2)}, 1.0')
    e(f'v_add_f32 {v(T)}, {v(T)}, {v(T+1)}')

L.append(f'''; Kernarg layout for this problem (80 bytes, ptrs only, base s[0:1]):
; @launch grid=({NWG},1,1) block=({NW*64},1,1) lds={LDS_BYTES}
.amdgcn_target "amdgcn-amd-amdhsa--gfx950"
.text
.globl {KN}
.p2align 8
.type {KN},@function
{KN}:''')

LANE = A3; VG = A3 + 1; VN = A3 + 2; PB = A3 + 3
TRB = CB; TRH = CB + 4; PA = CB + 8; TRW = CB + 9
SM = B3
STG = RING + 2 * 4096
def cpf():
    if OPT['CPF']:
        e(f's_getpc_b64 {s(SRD_C,2)}')
        lab('L_PC')
        e(f's_sub_u32 {s(SRD_C)}, {s(SRD_C)}, L_PC-{KN}')
        e(f's_subb_u32 {s(SRD_C+1)}, {s(SRD_C+1)}, 0')
        e(f's_mov_b32 {s(SRD_C+2)}, L_END-{KN}')
        e(f's_mov_b32 {s(SRD_C+3)}, 0x20000')
        e(f's_lshl_b32 {s(S_T1)}, {s(S_WAVE)}, 12')
        e(f'v_lshlrev_b32 {v(JUNK)}, 6, {v(LANE)}')
        e(f'buffer_load_dword {v(JUNK)}, {v(JUNK)}, {s(SRD_C,4)}, {s(S_T1)} offen')
e(f's_cmp_ge_u32 s2, {NWG}')
e('s_cbranch_scc1 L_END')
if OPT['DLY']:
    e(f's_cmp_lt_u32 s2, {176 if OPT["DLY"] == 1 else 80}')
    e(f's_cbranch_scc{1 if OPT["DLY"] == 1 else 0} L_NODLY')
    for i in range(7): e('s_sleep 16')
    lab('L_NODLY')
stamp(0)
e('s_load_dwordx16 s[4:19], s[0:1], 0')
if OPT['PO']: e('s_setprio 3')
e(f'v_lshrrev_b32 {v(T+1)}, 6, v0')
e(f'v_and_b32 {v(LANE)}, 63, v0')
e(f'v_readfirstlane_b32 {s(S_WAVE)}, {v(T+1)}')
if OPT['CPF'] == 2: cpf()
e(f's_mul_i32 {s(S_WGB)}, s2, {WGS*128}')
e(f's_mul_i32 {s(S_WGH)}, s2, {WGS*25600}')
e(f's_mul_i32 {s(S_T1)}, s2, {WGS*400}')
e(f's_mul_i32 {s(S_T0)}, {s(sperm(S_T0, S_WAVE))}, {400*IDS}')
e(f'v_cmp_gt_u32 vcc, 50, {v(LANE)}')
e(f'v_lshlrev_b32 {v(L8X)}, 3, {v(LANE)}')
e(f'v_mov_b32 {v(T+2)}, 0x10000000')
e(f'v_cndmask_b32 {v(L8X)}, {v(T+2)}, {v(L8X)}, vcc')
e(f'v_add_u32 {v(T+2)}, {s(S_T0)}, {v(L8X)}')
e(f'v_lshlrev_b32 {v(V16)}, 4, {v(LANE)}')
e(f's_sub_u32 {s(SRD_M+2)}, {16384*400}, {s(S_T1)}' if MAP else f's_mov_b32 {s(SRD_M+2)}, {NBW*400}')
e(f's_mov_b32 {s(SRD_M+3)}, 0x20000')
e(f's_mov_b32 {s(SRD_W1+2)}, 32')
e(f's_mov_b32 {s(SRD_W1+3)}, 0x20000')
e(f's_lshl_b32 {s(S_T0)}, {s(S_WAVE)}, 12')
e(f's_mul_i32 {s(S_RING)}, {s(S_WAVE)}, {R*4096}')
e(f's_add_u32 {s(S_RING)}, {s(S_RING)}, {RING}')
e(f'v_and_b32 {v(VN)}, 15, {v(LANE)}')
e(f'v_lshrrev_b32 {v(VG)}, 4, {v(LANE)}')
e(f'v_cmp_gt_u32 vcc, 32, {v(LANE)}')
e(f'v_and_b32 {v(T+3)}, 7, {v(LANE)}')
e(f'v_and_b32 {v(T+4)}, 1, {v(VG)}')
e(f'v_lshlrev_b32 {v(T+4)}, 1, {v(T+4)}')
e(f'v_xor_b32 {v(T+3)}, {v(T+3)}, {v(T+4)}')
e(f'v_lshlrev_b32 {v(IDX+1)}, 4, {v(T+3)}')
e(f'v_lshrrev_b32 {v(IDX)}, 3, {v(LANE)}')
for c in range(1, 4):
    e(f'v_xor_b32 {v(IDX+2*c+1)}, {16*(((c&1)<<2)|(c>>1))}, {v(IDX+1)}')
    e(f'v_add_u32 {v(IDX+2*c)}, {8*c}, {v(IDX)}')
e('s_waitcnt lgkmcnt(0)')
stamp(1)
e(f's_add_u32 {s(SRD_M)}, s8, {s(S_T1)}')
e(f's_addc_u32 {s(SRD_M+1)}, s9, 0')
MLD = f'buffer_load_dwordx2 {v(MK,2)}, {v(T+2)}, {s(SRD_M,4)}, 0 offen{POL[OPT["MP"]]}'
if OPT['PO']:
    e(MLD)
    e('s_setprio 0')
def srd_h():
    e(f's_mov_b32 {s(SRD_H)}, s6')
    e(f's_or_b32 {s(SRD_H+1)}, s7, 0x800000')
    e(f's_mov_b32 {s(SRD_H+2)}, 200')
    e(f's_mov_b32 {s(SRD_H+3)}, 0x20000')
if OPT['SPEC']:
    srd_h()
    e(f's_mul_i32 {s(S_PSOFF)}, {s(sperm(S_T1, S_WAVE))}, {25600*IDS}')
    e(f's_add_u32 {s(S_PSOFF)}, {s(S_PSOFF)}, {s(S_WGH)}')
    e(M0S(0, 0)); e('s_nop 0')
    dmas(0, [])
if OPT['HPT']:
    srd_h()
    e(f's_mul_i32 {s(S_T1)}, {s(S_WAVE)}, 25600')
    e(f's_add_u32 {s(S_T1)}, {s(S_T1)}, {s(S_WGH)}')
    e(f'buffer_load_dword {v(ACC)}, off, {s(SRD_H,4)}, {s(S_T1)} nt')
e(f's_mov_b32 {s(SRD_W1)}, s10')
e(f's_or_b32 {s(SRD_W1+1)}, s11, 0x800000')
for c in range(4):
    e(M0S(2, c))
    e('s_nop 0')
    e(f'buffer_load_dwordx4 {v(IDX+2*c,2)}, {s(SRD_W1,4)}, {s(S_T0)} idxen offen lds')
if not OPT['PO']: e(MLD)
e(f's_load_dword {s(S_B2Q)}, s[16:17], 0')
e(f's_cmp_lt_u32 {s(S_WAVE)}, 4')
e('s_cbranch_scc1 P_LD_J')
e(f's_add_u32 {s(SRD_T)}, s4, {s(S_WGB)}')
e(f's_addc_u32 {s(SRD_T+1)}, s5, 0')
e(f's_sub_u32 {s(SRD_T+2)}, {16384*128}, {s(S_WGB)}')
e(f's_mov_b32 {s(SRD_T+3)}, 0x20000')
e(f's_sub_u32 {s(S_T1)}, {s(S_WAVE)}, 4')
def vperm(dst, src):
    if MAP == 2:
        e(f'v_bfrev_b32 {v(dst)}, {v(src)}')
        e(f'v_lshrrev_b32 {v(dst)}, {26-RSH}, {v(dst)}')
    else:
        if MAP == 3: e(f'v_xor_b32 {v(dst)}, 63, {v(src)}'); src = dst
        e(f'v_lshlrev_b32 {v(dst)}, {RSH}, {v(src)}')
e(f'v_lshl_add_u32 {v(T+3)}, {s(S_T1)}, 4, {v(VN)}')
vperm(T+3, T+3)
e(f's_mov_b32 {s(S_T1)}, 0')
e(f'v_lshl_add_u32 {v(T+3)}, {v(VG)}, 4, {v(T+3)}')
for sx in range(2):
    e(f'buffer_load_dwordx4 {v(B+4*sx,4)}, {v(T+3)}, {s(SRD_T,4)}, {s(S_T1)} offen offset:{64*sx}' + (' nt' if OPT['TNT'] else ''))
def mpf():
    if OPT['MPF'] and not MAP:
        e(f's_sub_u32 {s(S_T1)}, {s(S_WAVE)}, 4')
        e(f's_lshl_b32 {s(S_T1)}, {s(S_T1)}, 13')
        e(f'v_lshl_add_u32 {v(ACC)}, {v(LANE)}, 7, {s(S_T1)}')
        if OPT['MPS']: e(f'buffer_load_dword {v(JUNK)}, {v(ACC)}, {s(SRD_M,4)}, 0 offen offset:64{POL[OPT["MPF"]-1]}')
        e(f'buffer_load_dword {v(ACC)}, {v(ACC)}, {s(SRD_M,4)}, 0 offen{POL[OPT["MPF"]-1]}')
if not OPT['MPL']: mpf()
lab('P_LD_J')
e(f'v_lshlrev_b32 {v(L4)}, 2, {v(LANE)}')
e(f'v_mov_b32 {v(VCN)}, {CNT}')
e(f'v_mov_b32 {v(VCN+1)}, {2*NW}')
e(f's_cmp_lg_u32 {s(S_WAVE)}, 0')
e('s_cbranch_scc1 P_SM_J')
e(f'v_mov_b32 {v(T+4)}, s12')
e(f'v_mov_b32 {v(T+5)}, s13')
e(f'v_mov_b32 {v(T+6)}, s14')
e(f'v_mov_b32 {v(T+7)}, s15')
e(f'v_cndmask_b32 {v(T+4)}, {v(T+4)}, {v(T+6)}, vcc')
e(f'v_cndmask_b32 {v(T+5)}, {v(T+5)}, {v(T+7)}, vcc')
e(f'v_and_b32 {v(T+6)}, 0x7f, {v(L4)}')
e(f'v_add_co_u32 {v(T+4)}, vcc, {v(T+4)}, {v(T+6)}')
e(f'v_mov_b32 {v(T+7)}, 0')
e(f'ds_write2_b32 {v(VCN)}, {v(VCN+1)}, {v(T+7)} offset0:0 offset1:1')
if OPT['RES']:
    e(f'v_mov_b32 {v(T+7)}, {NBW-OPT["RES"]}')
    e(f'ds_write_b32 {v(VCN)}, {v(T+7)} offset:8')
e(f'v_addc_co_u32 {v(T+5)}, vcc, 0, {v(T+5)}, vcc')
e(f'global_load_dword {v(SM)}, {v(T+4,2)}, off')
lab('P_SM_J')
if not OPT['HPT'] and not OPT['SPEC']: srd_h()
e(f's_mov_b32 {s(SRD_O)}, s18')
e(f's_mov_b32 {s(SRD_O+1)}, s19')
e(f's_mov_b32 {s(SRD_O+2)}, {16384*128}')
e(f's_mov_b32 {s(SRD_O+3)}, 0x20000')
e(f's_mul_i32 {s(S_SCR)}, {s(S_WAVE)}, 1152')
e(f's_add_u32 {s(S_SCR)}, {s(S_SCR)}, {PW}')
e(f's_add_u32 {s(S_LIST)}, {s(S_SCR)}, 128')
e(f's_mov_b32 {s(S_L2E)}, 0x{NL2E:08x}')
e(f's_mov_b32 {s(S_HI16)}, 0xffff0000')
e(f's_mov_b32 {s(S_FFFF)}, 0xffff')
e(f's_mov_b32 {s(S_TAB)}, {TAB}')
if OPT['DM'] == 4:
    for i in range(12): e(f's_add_u32 {s(S_M0+i)}, {s(S_RING)}, {1024*i}')
e(f's_mov_b32 {s(S_LIM)}, 0x100')
e(f's_mov_b32 {s(S_PNX)}, {s(S_WAVE)}')
e(f'v_mov_b32 {v(VCN+1)}, 1')
e(f'v_lshrrev_b32 {v(T+3)}, 3, {v(LANE)}')
e(f'v_lshl_add_u32 {v(ALI0)}, {v(T+3)}, 2, {s(S_LIST)}')
e(f'v_lshrrev_b32 {v(T+3)}, 5, {v(LANE)}')
e(f'v_lshl_add_u32 {v(T+3)}, {v(T+3)}, 4, {v(VN)}')
e(f'v_lshl_add_u32 {v(ALM0)}, {v(T+3)}, 2, {s(S_LIST)}')
e(f'v_lshl_add_u32 {v(ASW)}, {v(T+3)}, 1, {s(S_SCR)}')
e(f'v_lshl_add_u32 {v(ASR)}, {v(VG)}, 4, {s(S_SCR)}')
e(f'v_and_b32 {v(T+3)}, 2, {v(VN)}')
e(f'v_bfe_u32 {v(T+4)}, {v(VN)}, 3, 1')
e(f'v_lshl_or_b32 {v(T+3)}, {v(T+4)}, 2, {v(T+3)}')
e(f'v_xor_b32 {v(T+3)}, {v(T+3)}, {v(VG)}')
e(f'v_lshlrev_b32 {v(T+3)}, 4, {v(T+3)}')
e(f'v_lshl_add_u32 {v(T+3)}, {v(VN)}, 7, {v(T+3)}')
for i in range(4):
    u, sx = i >> 1, i & 1
    e(f'v_xor_b32 {v(AB+i)}, {2048*u+16*u+64*sx}, {v(T+3)}')
    e(f'v_add_u32 {v(AB+i)}, {s(S_RING)}, {v(AB+i)}')
e(f'v_bfe_u32 {v(T+4)}, {v(LANE)}, 2, 2')
e(f'v_lshl_add_u32 {v(T+5)}, {v(VG)}, 3, {v(T+4)}')
e(f'v_and_b32 {v(T+4)}, 2, {v(T+4)}')
e(f'v_and_b32 {v(T+6)}, 1, {v(VG)}')
e(f'v_lshl_or_b32 {v(T+4)}, {v(T+6)}, 2, {v(T+4)}')
e(f'v_lshrrev_b32 {v(T+6)}, 1, {v(VG)}')
e(f'v_or_b32 {v(T+4)}, {v(T+4)}, {v(T+6)}')
e(f'v_bfe_u32 {v(T+6)}, {v(LANE)}, 1, 1')
e(f'v_xor_b32 {v(T+4)}, {v(T+4)}, {v(T+6)}')
e(f'v_lshlrev_b32 {v(T+4)}, 4, {v(T+4)}')
e(f'v_lshl_add_u32 {v(T+4)}, {v(T+5)}, 7, {v(T+4)}')
e(f'v_and_b32 {v(T+6)}, 1, {v(LANE)}')
e(f'v_lshl_add_u32 {v(T+4)}, {v(T+6)}, 3, {v(T+4)}')
for dt in range(4):
    e(f'v_xor_b32 {v(AT+dt)}, {32*dt}, {v(T+4)}')
    e(f'v_add_u32 {v(TRB+dt)}, {STG}, {v(AT+dt)}')
    e(f'v_add_u32 {v(TRH+dt)}, {STG+4*R*4096}, {v(AT+dt)}')
    e(f'v_add_u32 {v(AT+dt)}, {s(S_RING)}, {v(AT+dt)}')
e(f'v_lshlrev_b32 {v(PA)}, 4, {v(VG)}')
for i in range(R): e(f'v_mov_b32 {v(MV+i)}, 0')

OOL = []
def fill(k, tag, check=True):
    if k == 0 and OPT['SPEC']:
        e(MVR(0))
        for x in pinfo(0): e(x)
        e(f'v_add_u32 {v(ALI)}, 128, {v(ALI)}')
        e(f'v_add_u32 {v(ALM)}, 128, {v(ALM)}')
        return
    if k > 0 and check:
        e(f's_cmp_ge_u32 {s(S_PI)}, 0x100')
        if OPT['POL_']:
            e(f's_cbranch_scc0 PADV_{tag}')
            OOL.append(('padv', f'PADV_{tag}', f'PSKIP_{tag}'))
        else:
            e(f's_cbranch_scc1 PSKIP_{tag}')
            adv(0)
        lab(f'PSKIP_{tag}')
    for c in range(4): e(IDXR(c))
    if k < R - 1: e(MVR(k))
    for x in pinfo(k): e(x)
    e(M0S(k, 0))
    e('s_waitcnt lgkmcnt(0)')
    if not (OPT['DM'] == 4 and k == R - 1): dmas(k, [])
    if k < R - 1:
        e(f'v_add_u32 {v(ALI)}, 128, {v(ALI)}')
        e(f'v_add_u32 {v(ALM)}, 128, {v(ALM)}')
e(f's_waitcnt vmcnt({4 + OPT["HPT"] + 4*OPT["SPEC"] if OPT["PO"] else 0})')
if OPT['PO']: e('s_setprio 2')
stamp(2)
adv(None, True)
NC = 1 if OPT['CPF'] == 1 else 0
if OPT['SPEC']:
    fill(0, '0')
    e('s_waitcnt lgkmcnt(0)')
    e(f's_cmp_ge_u32 {s(S_WAVE)}, 4')
    e('s_cbranch_scc1 P_F0_J')
    e('s_barrier')
    fill(1, '1o')
    e('s_waitcnt vmcnt(5)')
    e('s_branch P_F0_K')
    lab('P_F0_J')
    e('s_barrier')
    e('s_waitcnt vmcnt(1)')
    lab('P_F0_K')
elif OPT['PF']:
    if OPT['CPF'] == 1: cpf()
    e(f's_cmp_ge_u32 {s(S_WAVE)}, 4')
    e('s_cbranch_scc1 P_F0_J')
    fill(0, '0')
    if OPT['E1']:
        e(f's_mov_b32 {s(S_PREV)}, 0')
        e(f's_cmp_ge_u32 {s(S_PI)}, 0x100')
        e('s_cbranch_scc0 P_E1_S')
        e(f's_mov_b32 {s(S_PREV)}, 1')
        fill(1, '1e', False)
        e(f's_waitcnt vmcnt({9+NC})')
        e('s_branch P_F0_K')
        lab('P_E1_S')
    e(f's_waitcnt vmcnt({5+NC})')
    e('s_branch P_F0_K')
    lab('P_F0_J')
    e(f's_waitcnt vmcnt({1+NC})')
    if OPT['MPL']: mpf()
    lab('P_F0_K')
else:
    fill(0, '0')
    if OPT['CPF'] == 1: cpf()
if OPT['PO']: e('s_setprio 0')
stamp(3)
def trw(dst, lo, hi, m, sx, jh):
    ch = 2*m + sx
    e(f'ds_read_b64_tr_b16 {v(dst,2)}, {v(lo if ch < 4 else hi)} offset:{(ch&3)*R*4096 + 512*jh}')
def wd_frags():
    for t in range(4):
        for sx in range(2):
            for jh in range(2): trw(WE + (t*2+sx)*4 + 2*jh, TRB+t, TRH+t, 3, sx, jh)
e(f's_and_b32 {s(S_T0)}, {s(S_WAVE)}, 3')
if not OPT['PF']: e(f's_waitcnt vmcnt({5+NC})')
e(f's_cmp_lg_u32 {s(S_WAVE)}, 0')
e('s_cbranch_scc1 P_SW_J')
e(f'v_lshlrev_b32 {v(SM+2)}, 16, {v(SM)}')
e(f'v_and_b32 {v(SM+3)}, 0xffff0000, {v(SM)}')
e(f'v_lshlrev_b32 {v(T)}, 3, {v(LANE)}')
e(f'ds_write_b64 {v(T)}, {v(SM+2,2)} offset:{W2T}')
lab('P_SW_J')
e(f's_cmp_lt_u32 {s(S_WAVE)}, 4')
e('s_cbranch_scc1 P_WAC')
e(f's_mul_i32 {s(S_T1)}, {s(S_T0)}, {16*TS}')
e(f's_add_u32 {s(S_T1)}, {s(S_T1)}, {TAB}')
e(f'v_mul_u32_u24 {v(PB)}, {TS}, {v(VN)}')
e(f'v_add3_u32 {v(PB)}, {v(PB)}, {v(PA)}, {s(S_T1)}')
e(f'v_add_u32 {v(T+1)}, {v(PA)}, {v(PB)}')
for i in range(8):
    e(f'v_lshlrev_b32 {v(O+2*i)}, 16, {v(B+i)}')
    e(f'v_and_b32 {v(O+2*i+1)}, 0xffff0000, {v(B+i)}')
for i in range(16):
    e(f'v_mul_f32 {v(O+i)}, {s(S_L2E)}, {v(O+i)}')
for i in range(4):
    e(f'ds_write_b128 {v(T+1)}, {v(O+4*i,4)} offset:{128*(i>>1)+16*(i&1)}')
for i in range(8):
    e(f'v_xor_b32 {v(B+8+i)}, 0x80008000, {v(B+i)}')
e('s_waitcnt lgkmcnt(0)')
e('s_barrier')
stamp(4)
e('s_setprio 1')
for t in range(4):
    e(f'ds_read_b128 {v(D+4*t,4)}, {v(PA)} offset:{B1T+64*t}')
for m in (1, 2):
    for sx in range(2):
        for t in range(4):
            for jh in range(2): trw(WD + 32*(m-1) + (sx*4+t)*4 + 2*jh, TRB+t, TRH+t, m, sx, jh)
for grp in range(4):
    e(f's_waitcnt lgkmcnt({min(15, 24-8*grp)})')
    for t in range(4): e(M16(D+4*t, WD+(grp*4+t)*4, B+4*grp, D+4*t))
wd_frags()
for i in range(16):
    e(f'v_mul_f32 {v(D+i)}, {s(S_L2E)}, {v(D+i)}')
for t in range(4):
    e(f'ds_write_b128 {v(PB)}, {v(D+4*t,4)} offset:{256+64*t}')
e('s_setprio 0')
if not OPT['PF']: fill(1, '1b')
elif OPT['E2']: fill(0, '0z')
e('s_branch P_J')
lab('P_WAC')
e(f's_lshl_b32 {s(S_T1)}, {s(S_T0)}, 5')
e(f'v_subrev_u32 {v(TRW)}, {s(S_RING)}, {v(AT)}')
e(f'v_xor_b32 {v(TRW)}, {s(S_T1)}, {v(TRW)}')
e(f'v_add_u32 {v(TRW+1)}, {STG+4*R*4096}, {v(TRW)}')
e(f'v_add_u32 {v(TRW)}, {STG}, {v(TRW)}')
e(f's_lshl_b32 {s(S_T1)}, {s(S_T0)}, 12')
e(f'v_add_u32 {v(PB)}, {s(S_T1)}, {v(V16)}')
e('s_waitcnt lgkmcnt(0)')
e('s_barrier')
stamp(4)
for sx in range(2):
    for jh in range(2): trw(O + 4*sx + 2*jh, TRW, TRW+1, 0, sx, jh)
for sx in range(2):
    for jh in range(2): trw(O + 8 + 4*sx + 2*jh, TRW, TRW+1, 2, sx, jh)
wd_frags()
e('s_waitcnt lgkmcnt(15)')
for i in range(8):
    e(f'v_lshlrev_b32 {v(D+2*i)}, 16, {v(O+i)}')
    e(f'v_and_b32 {v(D+2*i+1)}, 0xffff0000, {v(O+i)}')
    e(f'v_lshlrev_b32 {v(D+16+2*i)}, 16, {v(O+8+i)}')
    e(f'v_and_b32 {v(D+16+2*i+1)}, 0xffff0000, {v(O+8+i)}')
for i in range(16):
    e(f'v_add_f32 {v(D+i)}, {v(D+i)}, {v(D+16+i)}')
for i in range(16):
    e(f'v_mul_f32 {v(D+i)}, {s(S_L2E)}, {v(D+i)}')
for i in range(4):
    e(f'ds_write_b128 {v(PB)}, {v(D+4*i,4)} offset:{WAC+1024*i}')
if OPT['E1'] and OPT['PF']:
    e(f's_cmp_eq_u32 {s(S_PREV)}, 0')
    e('s_cbranch_scc1 P_E1_L')
    OOL.append(('fill1', 'P_E1_L', 'P_J'))
elif not OPT['SPEC']: fill(1, '1w')
lab('P_J')
stamp3(2)
for t in range(4):
    e(f'ds_read_b128 {v(W2+4*t,4)}, {v(PA)} offset:{W2T+64*t}')
e(f'ds_read_b32 {v(SM)}, {v(L4)} offset:{W2T}')
e('s_waitcnt lgkmcnt(0)')
stamp3(3)
e('s_barrier')
stamp3(4)
if OPT['PF']:
    e(f's_cmp_lt_u32 {s(S_WAVE)}, 4')
    e('s_cbranch_scc1 P_F1_O')
    if not OPT['SPEC'] and not OPT['E2']: fill(0, '0y')
    fill(1, '1y')
    e('s_branch P_F1_J')
    lab('P_F1_O')
    fill(2, '2o')
    lab('P_F1_J')
else:
    fill(2, '2')
stamp3(5)
for i in range(32):
    e(f'v_lshlrev_b32 {v(WD+2*i)}, 16, {v(WE+i)}')
    e(f'v_and_b32 {v(WD+2*i+1)}, 0xffff0000, {v(WE+i)}')
if OPT['SUB'] == 2:
    e(f's_mov_b32 {s(S_T0)}, {s(S_WAVE)}')
    e(f's_call_b64 {s(S_RB,2)}, BPF')
else:
    bp(S_WAVE)
if OPT['PF']:
    e(f's_cmp_lt_u32 {s(S_WAVE)}, 4')
    e('s_cbranch_scc1 P_F2_J')
    fill(2, '2y')
    lab('P_F2_J')
stamp3(6)
e(f's_waitcnt vmcnt({4*(R-2) if OPT["DM"] == 4 else 4*(R-1)})')
for i in range(4): e(BRD(0, i))
e(f'v_and_b32 {v(T+1)}, 0x7fffffff, {v(SM)}')
e(f's_lshl_b32 {s(S_B2Q)}, {s(S_B2Q)}, 16')
e(f'v_cmp_ngt_f32 vcc, 0x{WMAX:08x}, {v(T+1)}')
e(f'v_mov_b32 {v(T+3)}, 0x3e800000')
e(f'v_mul_f32 {v(T+3)}, {s(S_B2Q)}, {v(T+3)}')
e(f's_mov_b32 {s(S_THR)}, 0x{OPT["THR"]:08x}')
e(f's_cmp_lg_u64 vcc, 0')
e(f's_cselect_b32 {s(S_THR)}, 0, {s(S_THR)}')
e(f'v_readfirstlane_b32 {s(S_B2Q)}, {v(T+3)}')
for i in range(16): e(f'v_mov_b32 {v(B3+i)}, 0')
e('s_waitcnt lgkmcnt(2)')
for i in range(8): e(MM1(0, i))
for dt in range(4): e(f'v_mov_b32 {v(O+4*dt)}, 0')
e(f'v_mov_b32 {v(T)}, 0')
e(f'v_mov_b32 {v(T+2)}, 0')
e(f'v_mov_b32 {v(ACC)}, 0')
e('s_waitcnt lgkmcnt(0)')
stamp(5)

def x0(k, tag, mm=True):
    p = (k - 1) % R; n = (k + 1) % R
    def m1(i, alt=None):
        if mm: e(MM1(1, i))
        elif alt is not None: e(alt)
    early = [] if mm else [10, 11, 12]
    LO()
    m1(0)
    e(f'v_fma_f32 {v(T+5)}, {v(T)}, {v(T+2)}, {s(S_B2Q)}')
    m1(1, EX(0, 10))
    e(f's_mov_b32 {s(S_CUR)}, {s(S_INFO+k)}')
    e(f'v_permlane32_swap_b32 {v(ACC)}, {v(T+5)}')
    e(f'v_add_f32 {v(T+4)}, {v(ACC)}, {v(T+5)}')
    e(f'v_add_f32 {v(T+6)}, {v(ACC)}, {v(T+5)}')
    m1(2, EX(0, 11))
    e(f's_cmp_lt_u32 {s(S_PI)}, {s(S_LIM)}')
    e(f'v_permlane16_swap_b32 {v(T+4)}, {v(T+6)}')
    e(f'v_add_f32 {v(T+4)}, {v(T+4)}, {v(T+6)}')
    e(f'v_mul_f32 {v(T+4)}, {v(T+4)}, {v(MV+p)}')
    e(f'v_cvt_pk_bf16_f32 {v(T+4)}, {v(T+4)}, {v(T+4)}')
    m1(3, EX(0, 12))
    e(f'ds_write_b16 {v(ASW)}, {v(T+4)}')
    e(f'ds_read_b128 {v(A3,4)}, {v(ASR)}')
    e(MVR(p))
    e(EX(0, 0))
    m1(4)
    e(f'v_add_u32 {v(ALI)}, 128, {v(ALI)}')
    e(f'v_add_u32 {v(ALM)}, 128, {v(ALM)}')
    m1(5); e(EX(0, 1))
    m1(6); e(EX(0, 2))
    m1(7); e(EX(0, 3)); e(EX(0, 4)); e(EX(0, 5))
    e('s_waitcnt lgkmcnt(1)')
    for dt in range(4):
        e(MM3(dt)); e(EX(0, 6+dt))
    for i in range(10, 16):
        if i not in early: e(EX(0, i))
    if OPT['V'] & 1: HI()
    if OPT['DM'] == 4:
        for c in range(4):
            e(f's_mov_b32 m0, {s(S_M0+4*p+c)}' if False else f's_addk_i32 m0, 0' if False else M0N(p, c))
            e('s_nop 0')
            e(DMA(c))
    e(f's_cbranch_scc1 ADV_{tag}')
    lab(f'RET_{tag}')
    OOL.append(('adv', f'ADV_{tag}', f'RET_{tag}'))
    for c in range(4): e(IDXR(c))
    for dt in range(4):
        e(TRR(k, dt, 0)); e(TRR(k, dt, 1))
    if OPT['DM'] == 1:
        pi = pinfo(k)
        e(M0S(k, 0)); e(pi[0]); e('s_waitcnt lgkmcnt(8)')
        dmas(k, [pi[1]])
    if not OPT['V'] & 16:
        e(f's_waitcnt vmcnt({4*(R-2) + (4 if OPT["DM"] == 1 else 0)})')
        for i in range(4): e(BRD(n, i))
    if not OPT['V'] & 1: HI()

def y0(k):
    lab(f'Y0_{k}')
    chain(0, f's_cmp_lt_u32 {s(S_CUR)}, 0x200')
    e(f's_cbranch_vccnz SLOW0_{k}')
    lab(f'S0RET_{k}')
    OOL.append(('slow0', f'SLOW0_{k}', f'S0RET_{k}'))
    e(f'v_fma_f32 {v(ACC)}, {v(T)}, {v(T+2)}, {s(S_B2Q)}')
    e(f's_cbranch_scc1 LAST_{k}')
    if OPT['DM'] == 5:
        pi = pinfo(k)
        e(M0S(k, 0)); e(pi[0]); e('s_waitcnt lgkmcnt(0)')
        dmas(k, [pi[1]])
        e(f's_waitcnt vmcnt({4*(R-1)})')
        for i in range(4): e(BRD((k+1) % R, i))
    elif OPT['V'] & 16:
        wstamp(2)
        e(f's_waitcnt vmcnt({4*(R-2) + (4 if OPT["DM"] == 1 else 0)})')
        wstamp(3)
        for i in range(4): e(BRD((k+1) % R, i))

def x1y1(k, tag):
    pi = pinfo(k)
    LO()
    e(EX(1, 0))
    if OPT['DM'] == 3:
        e(M0S(k, 0)); e(pi[0]); e('s_waitcnt lgkmcnt(4)')
        dmas(k, [pi[1]])
    if OPT['DM'] == 2: e(pi[0])
    if OPT['DM'] == 4: e(pi[0]); e(pi[1])
    e(EX(1, 1))
    if OPT['V'] & 16:
        for i in range(10, 15): e(EX(1, i))
    e('s_waitcnt lgkmcnt(2)')
    if OPT['V'] & 16:
        for i in range(8):
            e(MM1(0, i)); e(EX(1, 2+i))
    elif OPT['V'] & 4:
        for i in range(8):
            e(MM1(0, i)); e(EX(1, 2+i))
            if i in (1, 3, 5, 6): e(EX(1, 10+(1, 3, 5, 6).index(i)))
        e(EX(1, 14))
    elif OPT['V'] & 8:
        for i in range(0, 8, 2):
            e(MM1(0, i)); e(MM1(0, i+1)); e(EX(1, 2+i)); e(EX(1, 3+i)); e(EX(1, 10+i//2))
        e(EX(1, 14))
    else:
        for i in range(8):
            e(MM1(0, i)); e(EX(1, 2+i))
        for i in range(10, 15): e(EX(1, i))
    if OPT['DM'] == 2: e(M0S(k, 0))
    e(EX(1, 15))
    if OPT['V'] & 2: HI()
    if OPT['DM'] == 2: dmas(k, [pi[1]])
    if not OPT['V'] & 2: HI()
    for i in range(OPT['PADV']): e(f'v_perm_b32 {v(T+7)}, {v(T+6)}, {v(T+5)}, {v(T+4)}')
    xh = OPT['X0H'] and not tag.startswith('L')
    if xh: e(f's_cmp_lt_u32 {s(S_INFO+(k+1)%R)}, 0x180')
    chain(1, 's_waitcnt lgkmcnt(0)')
    e(f's_cbranch_vccnz SLOW1_{tag}')
    lab(f'S1RET_{tag}')
    if xh: e(f's_cbranch_scc1 X0H_{(k+1)%R}')
    OOL.append(('slow1', f'SLOW1_{tag}', f'S1RET_{tag}'))

def epi():
    e('s_mov_b64 exec, 0xffff')
    e(f'v_cvt_pk_bf16_f32 {v(T)}, {v(O)}, {v(O)}')
    e('s_mov_b32 exec_lo, 0xffff0000')
    e(f'v_cvt_pk_bf16_f32 {v(T)}, {v(O+4)}, {v(O+4)}')
    e('s_mov_b32 exec_lo, 0')
    e('s_mov_b32 exec_hi, 0xffff')
    e(f'v_cvt_pk_bf16_f32 {v(T)}, {v(O+8)}, {v(O+8)}')
    e('s_mov_b32 exec_hi, 0xffff0000')
    e(f'v_cvt_pk_bf16_f32 {v(T)}, {v(O+12)}, {v(O+12)}')
    e('s_mov_b64 exec, -1')
    e(f'v_lshrrev_b32 {v(T+1)}, 1, {v(L4)}')
    if OPT['DEF']:
        e(f's_mul_i32 {s(S_T0)}, {s(S_PREV)}, {TS}')
        e(f's_add_u32 {s(S_T0)}, {s(S_T0)}, {TAB}')
        e(f'v_add_u32 {v(T+1)}, {s(S_T0)}, {v(T+1)}')
        e(f'ds_write_b16 {v(T+1)}, {v(T)}')
    else:
        e(f's_lshl_b32 {s(S_T0)}, {s(S_PREV)}, 7')
        e(f's_add_u32 {s(S_T0)}, {s(S_T0)}, {s(S_WGB)}')
        e(f'buffer_store_short {v(T)}, {v(T+1)}, {s(SRD_O,4)}, {s(S_T0)} offen{POL[OPT["STP"]]}')

def finish():
    INLOOP[0] = False
    lab('L_DONE')
    stamp(6)
    if OPT['DEF']:
        e(f'v_lshrrev_b32 {v(T+1)}, 5, {v(L4)}')
        e(f'v_mul_u32_u24 {v(T+1)}, {TS}, {v(T+1)}')
        e(f'v_and_b32 {v(T+2)}, 0x70, {v(V16)}')
        e(f'v_add3_u32 {v(T+1)}, {v(T+1)}, {v(T+2)}, {s(S_TAB)}')
        e('s_mov_b64 exec, 1')
        e(f'ds_add_rtn_u32 {v(T)}, {v(VCN)}, {v(VCN+1)} offset:4')
        e('s_mov_b64 exec, -1')
        for i in range(8):
            e(f'ds_read_b128 {v(D+4*i,4)}, {v(T+1)} offset:{8*i*TS}')
        e('s_waitcnt lgkmcnt(8)')
        e(f'v_readfirstlane_b32 {s(S_T0)}, {v(T)}')
        e(f's_cmp_lg_u32 {s(S_T0)}, {NW-1}')
        e('s_cbranch_scc1 L_FIN')
        for i in range(8):
            if MAP:
                e(f'v_lshrrev_b32 {v(B+i)}, 5, {v(L4)}')
                e(f'v_add_u32 {v(B+i)}, {8*i}, {v(B+i)}')
                vperm(B+i, B+i)
                e(f'v_or_b32 {v(B+i)}, {v(B+i)}, {v(T+2)}')
            else:
                e(f's_add_u32 {s(S_T1)}, {s(S_WGB)}, {1024*i}')
            e(f's_waitcnt lgkmcnt({7-i})')
            e(f'buffer_store_dwordx4 {v(D+4*i,4)}, {v(B+i if MAP else V16)}, {s(SRD_O,4)}, {s(S_WGB if MAP else S_T1)} offen{POL[OPT["STP"]]}')
        lab('L_FIN')
    e('s_waitcnt vmcnt(0) lgkmcnt(0)')
    if OPT['STAMP'] == 7:
        stamp(7)
        e(f's_sub_u32 {s(S_T0)}, {s(S_ST+2*OPT["SEL"])}, {s(S_ST)}')
        if OPT['SELWG'] >= 0:
            e(f's_cmp_eq_u32 s2, {OPT["SELWG"]}')
            e(f's_cselect_b32 {s(S_T0)}, {s(S_T0)}, 0')
        if OPT['SELW'] >= 0:
            e(f's_cmp_eq_u32 {s(S_WAVE)}, {OPT["SELW"]}')
            e(f's_cselect_b32 {s(S_T0)}, {s(S_T0)}, 0')
        e(f's_add_u32 {s(S_T0)}, {s(S_T0)}, {OPT["SPIN"]}')
        lab('L_SPIN')
        e('s_sleep 1')
        e(f's_memrealtime s[4:5]')
        e('s_waitcnt lgkmcnt(0)')
        e(f's_sub_u32 {s(S_T1)}, s4, {s(S_ST)}')
        e(f's_cmp_lt_u32 {s(S_T1)}, {s(S_T0)}')
        e('s_cbranch_scc1 L_SPIN')
    elif OPT['STAMP'] == 5:
        stamp(7)
        e('s_load_dwordx2 s[4:5], s[0:1], 64')
        e('s_waitcnt lgkmcnt(0)')
        e('s_mov_b32 s6, 64')
        e('s_mov_b32 s7, 0x20000')
        e(f's_lshl_b32 {s(S_T0)}, s2, 3')
        e(f's_add_u32 {s(S_T0)}, {s(S_T0)}, {s(S_WAVE)}')
        e(f's_mov_b32 {s(S_T1)}, 64')
        for i, w in enumerate((0, 7, 133*8, 250*8+7)):
            e(f's_cmp_eq_u32 {s(S_T0)}, {w}')
            e(f's_cselect_b32 {s(S_T1)}, {16*i}, {s(S_T1)}')
        e(f'v_mov_b32 {v(T+1)}, {s(S_T1)}')
        e('s_mov_b64 exec, 1')
        for i, st in enumerate((0, 2, 5, 7)):
            e(f'v_mov_b32 {v(T)}, {s(S_ST+2*st)}')
            e(f'buffer_store_dword {v(T)}, {v(T+1)}, s[4:7], 0 offen offset:{4*i}')
        e('s_waitcnt vmcnt(0)')
    elif OPT['STAMP']:
        stamp(7)
        e('s_load_dwordx2 s[4:5], s[0:1], 72')
        e('s_waitcnt lgkmcnt(0)')
        e('s_mov_b32 s6, 0x1000000')
        e('s_mov_b32 s7, 0x20000')
        e(f's_lshl_b32 {s(S_T0)}, s2, 3')
        e(f's_add_u32 {s(S_T0)}, {s(S_T0)}, {s(S_WAVE)}')
        e(f's_lshl_b32 {s(S_T0)}, {s(S_T0)}, 5')
        e(f'v_mov_b32 {v(T+1)}, {s(S_T0)}')
        for i in range(8):
            e(f'v_mov_b32 {v(T)}, {s(S_ST+2*i)}')
            e(f'buffer_store_dword {v(T)}, {v(T+1)}, s[4:7], 0 offen offset:{4*i}')
        e('s_waitcnt vmcnt(0)')
    e('s_endpgm')
    INLOOP[0] = 2

INLOOP[0] = 1
for k in range(R):
    lab(f'STAGE_{k}')
    x0(k, f'{k}')
    y0(k)
    x1y1(k, f'{k}')
e('s_branch STAGE_0')
INLOOP[0] = 2
for k in range(R):
    n = (k + 1) % R
    lab(f'LAST_{k}')
    e(f's_and_b32 {s(S_T0)}, {s(S_INFO+n)}, 0x7f')
    e(f's_and_b32 {s(S_PREV)}, {s(S_CUR)}, 0x7f')
    e(f's_cmp_ge_u32 {s(S_T0)}, {NBW}')
    e(f's_cbranch_scc1 {"DRAIN" if OPT["DRN"] else "LX1"}_{k}')
    if OPT['DM'] == 5:
        pi = pinfo(k)
        e(M0S(k, 0)); e(pi[0]); e('s_waitcnt lgkmcnt(0)')
        dmas(k, [pi[1]])
    if OPT['SUB']: e(f's_call_b64 {s(S_RB,2)}, BPF')
    else: bp(S_T0)
    if OPT['DM'] == 5:
        e(f's_waitcnt vmcnt({4*(R-1)})')
    elif OPT['V'] & 16:
        wstamp(2)
        e(f's_waitcnt vmcnt({4*(R-2) + (4 if OPT["DM"] == 1 else 0)})')
        wstamp(3)
    for i in range(4): e(BRD(n, i))
    lab(f'LX1_{k}')
    if OPT['HALF']:
        e(f's_bitcmp1_b32 {s(S_CUR)}, 7')
        e(f's_cbranch_scc1 LF_{k}')
        pi = pinfo(k)
        LO()
        if OPT['DM'] not in (1, 5): e(pi[0])
        e(f'v_mov_b32 {v(T)}, 0')
        e(f'v_mov_b32 {v(T+2)}, 0')
        e(M0S(k, 0))
        e('s_waitcnt lgkmcnt(2)')
        for i in range(8): e(MM1(0, i))
        if OPT['DM'] == 4: e(pi[1]); e('s_nop 7')
        elif OPT['DM'] not in (1, 5): dmas(k, [pi[1]])
        else: e('s_nop 7')
        e('s_waitcnt lgkmcnt(0)')
        e(f's_branch LX0_{k}')
        lab(f'LF_{k}')
    x1y1(k, f'L{k}')
    lab(f'LX0_{k}')
    x0(n, f'L{k}')
    epi()
    for dt in range(4): e(f'v_mov_b32 {v(O+4*dt)}, 0')
    if OPT['DRN']:
        e(f's_branch Y0_{n}')
        lab(f'DRAIN_{k}')
        e(f'v_mov_b32 {v(JUNK)}, {v(MV+k)}')
        if k < R - 1: e('s_branch DRAIN')
    else:
        e(f's_bitcmp0_b32 {s(S_CUR)}, 6')
        e(f's_cbranch_scc1 Y0_{n}')
        e('s_branch L_DONE')
if OPT['DRN']:
    lab('DRAIN')
    e(f'v_mov_b32 {v(T)}, 0')
    e(f'v_mov_b32 {v(T+2)}, 0')
    e(f's_bitcmp1_b32 {s(S_CUR)}, 7')
    e('s_cbranch_scc0 DRAIN_P')
    for i in range(16): e(EX(1, i))
    chain(1)
    e('s_cbranch_vccnz SLOW1_D')
    lab('S1RET_D')
    OOL.append(('slow1', 'SLOW1_D', 'S1RET_D'))
    lab('DRAIN_P')
    e(f'v_fma_f32 {v(T+5)}, {v(T)}, {v(T+2)}, {s(S_B2Q)}')
    e('s_nop 1')
    e(f'v_permlane32_swap_b32 {v(ACC)}, {v(T+5)}')
    e(f'v_add_f32 {v(T+4)}, {v(ACC)}, {v(T+5)}')
    e(f'v_add_f32 {v(T+6)}, {v(ACC)}, {v(T+5)}')
    e('s_nop 1')
    e(f'v_permlane16_swap_b32 {v(T+4)}, {v(T+6)}')
    e(f'v_add_f32 {v(T+4)}, {v(T+4)}, {v(T+6)}')
    e(f'v_mul_f32 {v(T+4)}, {v(T+4)}, {v(JUNK)}')
    e(f'v_cvt_pk_bf16_f32 {v(T+4)}, {v(T+4)}, {v(T+4)}')
    e(f'ds_write_b16 {v(ASW)}, {v(T+4)}')
    e(f'ds_read_b128 {v(A3,4)}, {v(ASR)}')
    e('s_waitcnt lgkmcnt(0)')
    for dt in range(4): e(MM3(dt))
    e('s_nop 4')
    epi()
finish()
if OPT['X0H']:
    for k in range(R):
        lab(f'X0H_{k}')
        x0(k, f'H{k}', False)
        e(f's_branch Y0_{k}')
if OPT['SUB']:
    lab('PROD')
    producer('S', 'PROD_R')
    lab('PROD_R')
    e(f's_setpc_b64 {s(S_RA,2)}')
    lab('BPF')
    bp(S_T0)
    e(f's_setpc_b64 {s(S_RB,2)}')
for kind, lb, ret in sorted(OOL, key=lambda x: x[0] != 'adv'):
    lab(lb)
    if kind == 'adv':
        if OPT['SUB']: e(f's_call_b64 {s(S_RA,2)}, PROD')
        elif OPT['LT']: producer(lb, ret)
        else: adv(4*(R-2))
    elif kind == 'padv': adv(0)
    elif kind == 'fill1':
        adv(0)
        fill(1, '1l', False)
    elif kind == 'slow0': slow(0)
    else: slow(1)
    e(f's_branch {ret}')
INLOOP[0] = False
lab('L_END')
e('s_endpgm')
L.append(f""".section .rodata,"a"
.p2align 6
.amdhsa_kernel {KN}
  .amdhsa_next_free_vgpr {NVGPR}
  .amdhsa_next_free_sgpr {NSGPR}
  .amdhsa_accum_offset {(NVGPR+3)//4*4}
  .amdhsa_group_segment_fixed_size 0
  .amdhsa_kernarg_size 80
  .amdhsa_user_sgpr_count 2
  .amdhsa_user_sgpr_kernarg_segment_ptr 1
  .amdhsa_system_sgpr_workgroup_id_x 1
.end_amdhsa_kernel""")

text = '\n'.join(L) + '\n'
outs = [a for a in sys.argv[1:] if '=' not in a]
if outs:
    open(outs[0], 'w').write(text)
    import hazard
    n = hazard.check(text, verbose=not OPT['KILL'])
    print(f'{outs[0]}: vgpr={NVGPR} lds={LDS_BYTES} hazards={n}', file=sys.stderr)
else:
    sys.stdout.write(text)
```

```python
import re, sys

TRANS = ('v_exp_f32','v_rcp_f32','v_log_f32','v_rsq_f32','v_sqrt_f32','v_sin_f32','v_cos_f32','v_exp_f16','v_rcp_f16')

def regs(tok):
    tok = tok.strip()
    tok = tok.lstrip('-')
    if tok.startswith('abs(') or tok.startswith('|'):
        tok = tok.replace('abs(','').replace(')','').replace('|','')
    m = re.fullmatch(r'([vsa])(\d+)', tok)
    if m: return {(m.group(1), int(m.group(2)))}
    m = re.fullmatch(r'([vsa])\[(\d+):(\d+)\]', tok)
    if m: return {(m.group(1), i) for i in range(int(m.group(2)), int(m.group(3))+1)}
    if tok == 'vcc': return {('s',106),('s',107)}
    if tok == 'vcc_lo': return {('s',106)}
    if tok == 'vcc_hi': return {('s',107)}
    if tok == 'exec': return {('s',126),('s',127)}
    if tok == 'exec_lo': return {('s',126)}
    if tok == 'exec_hi': return {('s',127)}
    if tok == 'm0': return {('s',124)}
    return set()

class I:
    def __init__(s, text, line):
        s.text = text; s.line = line
        parts = text.split(None, 1)
        s.op = parts[0]
        rest = parts[1] if len(parts) > 1 else ''
        ops = []; depth = 0; cur = ''
        for ch in rest:
            if ch == '[': depth += 1
            if ch == ']': depth -= 1
            if ch == ',' and depth == 0:
                ops.append(cur.strip()); cur = ''
            else: cur += ch
        if cur.strip(): ops.append(cur.strip())
        s.mods = ''
        if ops:
            sp = ops[-1].split(None, 1)
            ops[-1] = sp[0]
            if len(sp) > 1: s.mods = sp[1]
        s.ops = ops
        op = s.op
        s.mfma = op.startswith('v_mfma')
        s.valu = op.startswith('v_') and not s.mfma
        s.trans = any(op.startswith(t) for t in TRANS)
        s.salu = op.startswith('s_')
        s.ds = op.startswith('ds_')
        s.vmem = op.startswith('buffer_') or op.startswith('global_')
        s.lds_dma = s.vmem and (' lds' in ' ' + s.mods or 'load_lds' in op)
        s.w = set(); s.r = set(); s.srcc = set(); s.ab = set()
        R = [regs(o) for o in ops]
        if s.mfma:
            s.w = R[0]; s.ab = R[1] | R[2]; s.srcc = R[3]; s.r = s.ab | s.srcc
            s.passes = 8 if '32x32' in op else 2 if '4x4' in op else 4
        elif s.valu:
            if op.startswith('v_cmp'):
                s.w = R[0]; s.r = set().union(*R[1:])
            elif op.startswith(('v_add_co','v_sub_co','v_addc_co','v_subb_co')):
                s.w = R[0] | R[1]; s.r = set().union(*R[2:])
            elif op.startswith(('v_permlane32_swap','v_permlane16_swap','v_swap')):
                s.w = R[0] | R[1]; s.r = R[0] | R[1]
            else:
                s.w = R[0]; s.r = set().union(*R[1:]) if len(R) > 1 else set()
                if op.startswith(('v_fmac','v_dot2c','v_pk_fmac')): s.r |= R[0]
                if 'UNUSED_PRESERVE' in s.mods: s.r |= R[0]
                if op.startswith('v_cndmask') and len(ops) == 3: s.r |= regs('vcc')
        elif s.ds:
            if op.startswith(('ds_read','ds_bpermute','ds_permute','ds_swizzle')) or '_rtn' in op:
                s.w = R[0]; s.r = set().union(*R[1:])
            else:
                s.r = set().union(*R)
        elif s.vmem:
            if s.lds_dma or 'store' in op:
                s.r = set().union(*R)
                if s.lds_dma: s.r |= regs('m0')
            else:
                s.w = R[0]; s.r = set().union(*R[1:])
        elif s.salu:
            if op.startswith(('s_cmp','s_cbranch','s_branch','s_waitcnt','s_nop','s_barrier','s_endpgm','s_setprio','s_sleep','s_bitcmp')):
                s.r = set().union(*R) if R else set()
            else:
                s.w = R[0] if R else set(); s.r = set().union(*R[1:]) if len(R) > 1 else set()
                if 'saveexec' in op: s.w |= regs('exec')
        s.states = 1
        if op == 's_nop': s.states = int(ops[0], 0) + 1

def parse(text):
    ins = []; labels = {}
    for ln, raw in enumerate(text.split('\n'), 1):
        t = raw.split(';')[0].split('//')[0].strip()
        if not t or t.startswith('.'): continue
        m = re.fullmatch(r'([\w.$]+):', t)
        if m: labels[m.group(1)] = len(ins); continue
        ins.append(I(t, ln))
    return ins, labels

def succ(ins, labels, i):
    x = ins[i]
    if x.op == 's_endpgm': return []
    if x.op == 's_branch': return [labels[x.ops[0]]]
    if x.op == 's_call_b64': return [labels[x.ops[1]]]
    if x.op == 's_setpc_b64': return [j+1 for j, y in enumerate(ins) if y.op == 's_call_b64' and y.ops[0] == x.ops[0]]
    out = [i+1] if i+1 < len(ins) else []
    if x.op.startswith('s_cbranch'): out.append(labels[x.ops[0]])
    return out

def vonly(s): return {r for r in s if r[0] in 'va'}
def sonly(s): return {r for r in s if r[0] == 's'}

def need(p, c):
    n = 0; why = ''
    def up(k, w):
        nonlocal n, why
        if k > n: n = k; why = w
    if p.valu and c.mfma and vonly(p.w) & c.r: up(2, 'VALU->MFMA')
    if p.mfma:
        big = {8: 12, 4: 8, 2: 5}[p.passes]; ov = {8: 10, 4: 6, 2: 4}[p.passes]
        if c.mfma:
            if p.w & c.ab: up(big, 'MFMA D->MFMA A/B')
            if p.w & c.srcc:
                if not (p.w == c.srcc and p.passes == c.passes): up(ov, 'MFMA D->MFMA C overlap')
                elif p.passes == 2: up(2, '2-pass accumulate chain')
            if (p.w & c.w) and not (p.w == c.srcc and p.passes == c.passes): up(ov, 'MFMA D->MFMA D WAW')
        else:
            if (c.valu and p.w & (c.r | c.w)) or ((c.ds or c.vmem) and p.w & (c.r | c.w)): up(big, 'MFMA D->VALU/mem')
            if c.valu and p.srcc & c.w: up({8: 7, 4: 3, 2: 1}[p.passes], 'MFMA C WAR')
    if p.trans and c.valu and not c.trans and p.w & c.r: up(1, 'trans->VALU')
    if p.valu and sonly(p.w):
        if c.valu and sonly(p.w) & c.r:
            up(4 if c.op.startswith(('v_readlane','v_writelane')) else 2, 'VALU SGPR->VALU')
        if c.vmem and sonly(p.w) & c.r: up(5, 'VALU SGPR->VMEM')
        if c.mfma and regs('exec') & p.w: up(4, 'VALU exec->MFMA')
    if p.salu and regs('m0') & p.w and c.lds_dma: up(1, 'm0->DMA')
    if p.valu and c.op.startswith(('v_readfirstlane','v_readlane')) and vonly(p.w) & c.r: up(1, 'VALU->readlane')
    if p.valu and c.valu and ('dpp' in c.op or 'quad_perm' in c.mods or 'row_' in c.mods) and vonly(p.w) & c.r: up(2, 'VALU->DPP')
    if p.valu and c.op.startswith('v_permlane') and vonly(p.w) & c.r: up(2, 'VALU->permlane')
    if p.valu and ('dst_sel:WORD' in p.mods or 'dst_sel:BYTE' in p.mods) and c.valu and p.w & (c.r | c.w): up(1, 'SDWA dst')
    if p.vmem and 'store' in p.op and ('x4' in p.op or 'x3' in p.op) and vonly(p.r) & c.w: up(2, 'store data WAR')
    if p.ds and p.op in ('ds_write_b128','ds_write_b96') and False: pass
    return n, why

def check(text, verbose=True):
    ins, labels = parse(text)
    bad = 0
    for i, p in enumerate(ins):
        if not (p.valu or p.mfma or p.salu or p.vmem): continue
        stack = [(j, 0) for j in succ(ins, labels, i)]
        seen = {}
        while stack:
            j, d = stack.pop()
            if d >= 12: continue
            if seen.get(j, 99) <= d: continue
            seen[j] = d
            c = ins[j]
            n, why = need(p, c)
            if n > d:
                bad += 1
                if verbose and bad <= 4: print(f'HAZARD {why}: need {n} have {d}\n   L{p.line}: {p.text}\n   L{c.line}: {c.text}')
            for k in succ(ins, labels, j): stack.append((k, d + c.states))
    return bad

if __name__ == '__main__':
    b = check(open(sys.argv[1]).read())
    print('hazards:', b)
    sys.exit(1 if b else 0)
```

```python
import sys, os
sys.path.insert(0, os.path.join(os.path.dirname(os.path.abspath(__file__)), 'exp'))

OPT = dict(STAMP=0, NOMEM=0, KILL=0, HP=1, MP=1, TP=1, STP=1, CPF=1, YP=0, SPIN=0, SEL=0, SELW=-1, SELG=-1, SMODE=0, FSLOW=0, BOOST=40, SEC=0, PP=1, RAMP=0x65433210, SP=2, T1=1, AL=1, LP=0, SX=0, LA=3, VW=2, H=0, MM=2, EW=0, C2=1, P2=1, MAP=1, LW=2, XM=1, TS_=1, DS=60, PX=0)
for a in sys.argv[1:]:
    if '=' in a:
        k, v_ = a.split('='); assert k in OPT, k; OPT[k] = int(v_, 0)
NW = 8; NBW = 64; NWG = 16384 // NBW
NPAIR = [(OPT['RAMP'] >> 4*w) & 15 for w in range(NW)]
assert sum(NPAIR) == 24 and max(NPAIR) <= 6
LA = OPT['LA']; VW = OPT['VW'] if OPT['VW'] >= 0 else 2*(LA-2)
H = OPT['H']; NS = NBW - H
assert H % 4 == 0 and H <= 2*NPAIR[7]
MAP = OPT['MAP']
WB = 8 if MAP else NBW
PX = OPT['PX']
LP_ = LA + PX
assert LP_ <= 4
POL = ['', ' nt', ' sc1', ' sc0 sc1', ' sc1 nt', ' sc0 nt', ' sc0 sc1 nt', ' sc0']
NL2E = 0xBFB8AA3B

WAC = 0
W2T = 16384; B1T = W2T + 256
FFB = W2T + 512
DESC = FFB + 256
TKT = DESC + 448; SCC_ = TKT + 4
RING = DESC + 512
TAB = RING + NW * 8192
TS = 528
LIST = TAB + NBW * TS
OUT = LIST + NBW * 256
SCR = OUT + (NBW + H + 1) * 256
STG = LIST + 16 * 256
LDS_BYTES = max(SCR + NW * 128, STG + 32768)
DUM = LDS_BYTES
LDS_BYTES += 2048 * PX
assert LDS_BYTES <= 163840 and RING % 256 == 0 and STG % 128 == 0

L = []
INLOOP = [False]
def e(s):
    K = OPT['KILL'] if INLOOP[0] else 0
    if K & 256 and s.startswith(('v_exp', 'v_mfma')): s = 's_nop 0'
    if K & 256 and s.startswith(('v_pk', 'v_rcp', 'v_cvt')): return
    if K & 1024 and s.startswith('v_pk') and INLOOP[0] == 1: return
    if K & 1 and s.startswith('v_mfma') and '4x4x4' in s: s = 's_nop 0'
    if K & 2 and INLOOP[0] == 2 and s.startswith(('v_pk_fma', 'v_cvt')): return
    if K & 4 and INLOOP[0] == 2 and s.startswith('ds_read_b128') and f', {v(V16)} ' in s: return
    if K & 8 and s.startswith('v_mfma') and '4x4x4' not in s: s = 's_nop 0'
    if K & 8 and s.startswith('v_exp'): s = s.split(',')[0] + f', v{int(s.split("v")[-1]) - D + WE}'
    if K & 64 and s.startswith('buffer_load'): return
    if K & 128 and s.startswith('ds_read_u8'): return
    if K & 16 and INLOOP[0] == 1 and s.startswith('ds_read_b128'): return
    if K & 32 and INLOOP[0] == 1 and s.startswith('ds_read_b64_tr'): return
    if K & 2048 and s.startswith('v_exp'): s = 's_nop 0'
    if K and s.startswith('s_cbranch_vccnz'): return
    L.append('    ' + s)
def lab(s): L.append(s + ':')
def al():
    if OPT['AL']: L.append('    .p2align 3')

_v = [0]
def valloc(n, al=1):
    b = (_v[0] + al - 1) // al * al
    _v[0] = b + n
    return b
T = valloc(8, 2)
WD = valloc(64, 4); WE = valloc(32, 4); D = valloc(16, 4); W2 = valloc(16, 4); CB = valloc(16, 4)
B = valloc(8, 4); B3 = valloc(16, 4); O = valloc(4, 4); WR = valloc(56, 4)
A3 = valloc(2, 2); IDX = valloc(4, 2); AB = valloc(2); AT = valloc(2)
ALI = valloc(1); ALB = valloc(1); ASR = valloc(1); ASW = valloc(1); AO = valloc(1); V16 = valloc(1); G16 = valloc(1)
TK = valloc(1); TD = valloc(1)
X = WR; MC = WR + 24; RJ = WR + 28; CV = WR + 32; HB = WR + 33; FF = WR + 34; PA = WR + 36; AD = WR + 46
TSV = valloc(1) if OPT['STAMP'] == 8 else None
NVGPR = _v[0]
assert NVGPR <= 256, NVGPR

def v(n, c=1): return f'v{n}' if c == 1 else f'v[{n}:{n+c-1}]'
def s(n, c=1): return f's{n}' if c == 1 else f's[{n}:{n+c-1}]'

SRD_H, SRD_M, SRD_O, SRD_T, SRD_W1, SRD_C = 20, 24, 28, 32, 36, 40
S_RA = 32; S_RB = 34; S_RC = 36
S_B2Q = 44; S_INV = 46
(S_WAVE, S_WGH, S_PC, S_PSOFF, S_CUR, S_PREV, S_RING, S_PS, S_T0, S_T1, S_T2, S_T3, S_L2E, S_ONE, S_CC, S_B2) = range(48, 64)
S_BAL = 4
S_BAD = 64
S_TP = 66
S_Q = 68
S_CLS = 45; S_NP = 47; S_P0 = 70; S_MO = 71; S_PS1 = 72; S_K = 73; S_SV = 74; S_QN = 75; S_CS = 76; S_M = 77; S_EX = 78; S_DC = 42
NSGPR = 80
S_ST = 80
if OPT['STAMP']: NSGPR = 100
def bstamp():
    if OPT['STAMP'] == 8:
        e(f's_memrealtime {s(S_ST+2,2)}')
        e('s_waitcnt lgkmcnt(0)')
        e(f's_lshl_b64 exec, 1, {s(S_ST+4)}')
        e(f'v_mov_b32 {v(TSV)}, {s(S_ST+2)}')
        e('s_mov_b64 exec, -1')
        e(f's_add_u32 {s(S_ST+4)}, {s(S_ST+4)}, 1')
def tic(i, op='s_sub_u32'):
    if OPT['STAMP'] == 9 and OPT['SEC'] >> i & 1:
        e(f's_cselect_b32 {s(S_ST+1)}, 1, 0')
        e('s_memtime s[98:99]')
        e('s_waitcnt lgkmcnt(0)')
        e(f'{op} {s(S_ST+2*i)}, {s(S_ST+2*i)}, s98')
        e(f's_cmp_lg_u32 {s(S_ST+1)}, 0')
def toc(i): tic(i, 's_add_u32')
def pst(mode, i):
    if OPT['STAMP'] == mode: e(f's_memrealtime {s(S_ST+2*i,2)}')
def stamp(i):
    if OPT['STAMP'] in (3, 4):
        if i == 0: e(f's_memrealtime {s(S_ST,2)}')
        if i == 7: e('s_waitcnt lgkmcnt(0)')
        return
    if OPT['STAMP'] and i == 0: e(f's_mov_b32 {s(S_ST+17)}, 0')
    if OPT['STAMP'] == 9:
        if i == 0:
            for j in range(8): e(f's_mov_b32 {s(S_ST+2*j)}, 0')
        return
    if OPT['STAMP'] == 8:
        if i == 0:
            e(f's_mov_b32 {s(S_ST+4)}, 0')
            e(f'v_mov_b32 {v(TSV)}, 0')
            bstamp()
        if i in (5, 7): bstamp()
        return
    if OPT['STAMP']:
        if (OPT['STAMP'] == 2 or OPT['SMODE']) and i in (3, 4): return
        e(f's_memrealtime {s(S_ST+2*i,2)}')
        if (OPT['STAMP'] == 2 or OPT['SMODE']) and i in (5, 6): e(f's_memtime {s(S_ST+2*(i-2),2)}')
        e('s_waitcnt lgkmcnt(0)')

KN = 'standalone__sequential_behavior_din__recsys_kernel'

class LQ:
    def __init__(self): self.q = []
    def op(self, text, tag=None): e(text); self.q.append(tag)
    def wait(self, tag):
        i = max(j for j, t in enumerate(self.q) if t == tag)
        e(f's_waitcnt lgkmcnt({min(len(self.q) - 1 - i, 15)})')

def M16(d, a, b, c): return f'v_mfma_f32_16x16x32_bf16 {v(d,4)}, {v(a,4)}, {v(b,4)}, ' + (v(c,4) if c is not None else '0')
def MM1(t, sx, b=None): return M16(D+4*t, WE+4*(2*t+sx), (B if b is None else b)+4*sx, D+4*t if sx else CB+4*t)
def EX(i): return f'v_exp_f32 {v(D+i)}, {v(D+i)}'
def M0S(u, c): return f's_add_u32 m0, {s(S_RING)}, {u*2048 + c*1024}'
def DMA(r, c=0):
    return f'buffer_load_dwordx4 {v(r,2)}, {s(SRD_H,4)}, {s(S_PSOFF if c else S_PS1)} idxen offen{" offset:1024" if c else ""}{POL[OPT["HP"]]} lds'
def IDXR(r, off): return f'ds_read_u8 {v(r)}, {v(ALI)} offset:{off}'
def HI():
    if OPT['YP']: e('s_setprio 1')
def LO():
    if OPT['YP']: e('s_setprio 0')
VIRT = 0x240
def goff(dst, b, sh, row, tmp):
    if MAP: e(f's_lshr_b32 {s(tmp)}, {s(b)}, {sh}')
    e(f's_mul_i32 {s(dst)}, {s(b)}, {row}')
    if MAP:
        e(f's_mul_i32 {s(tmp)}, {s(tmp)}, {255*(row << sh)}')
        e(f's_add_u32 {s(dst)}, {s(dst)}, {s(tmp)}')
def WRF(c): return CB + 8 if c == 6 else WR + 8*(c if c < 6 else 6)

L.append(f'''; Kernarg layout for this problem (80 bytes, ptrs only, base s[0:1]):
; @launch grid=({NWG},1,1) block=({NW*64},1,1) lds={LDS_BYTES}
.amdgcn_target "amdgcn-amd-amdhsa--gfx950"
.text
.globl {KN}
.p2align 8
.type {KN},@function
{KN}:''')

LANE = O; VG = O + 1; VN = O + 2; LMX = O + 3
TB = B3
TR = CB; TRB = CB + 4; B1A = CB + 6; TW = CB + 7; TRW = CB + 8; PB = CB + 9; SM = CB + 10; JUNK = CB + 14; WW = CB + 15
IX2 = B; WA = W2; TT = W2 + 4; AC = WR + 38; TF = T + 3
def MLD(dst, off=0): return f'buffer_load_dwordx4 {v(dst,4)}, {v(LMX)}, {s(SRD_M,4)}, {s(S_MO)} offen offset:{off}{POL[OPT["MP"]]}'
def desc(dst, cw, add, umin):
    e(f's_and_b32 {s(S_T3)}, {s(cw)}, 0xff')
    e(f's_lshr_b32 {s(cw)}, {s(cw)}, 8')
    e(f's_add_u32 {s(S_T3)}, {s(S_T3)}, 15')
    if OPT['XM']:
        e(f's_and_b32 {s(dst)}, {s(S_T3)}, 15')
        e(f's_lshl_b32 {s(dst)}, {s(dst)}, 12')
        e(f's_or_b32 {s(cw)}, {s(cw)}, {s(dst)}')
    e(f's_lshr_b32 {s(S_T3)}, {s(S_T3)}, 4')
    e(f's_max_u32 {s(S_T3)}, {s(S_T3)}, {umin}')
    e(f's_lshl1_add_u32 {s(dst)}, {s(S_WAVE)}, {s(cw)}')
    e(f's_lshl_b32 {s(cw)}, {s(S_T3)}, 8')
    e(f's_or_b32 {s(dst)}, {s(dst)}, {s(cw)}')
    if add: e(f's_or_b32 {s(dst)}, {s(dst)}, 1')
def tile_fill(k, part=3):
    rr = (IDX, IDX+2, IX2, IX2+2)[:2*(LP_-2) if k else 4]
    if part & 1:
        for c, r in enumerate(rr): e(IDXR(r, 32*k+8*c))
        e(M0S(2*k, 0))
    if part & 2:
        for c, r in enumerate(rr):
            if part & 1: e(f's_waitcnt lgkmcnt({len(rr)-1-c})')
            e(DMA(r, c & 1))
            if c == 1 and len(rr) > 2:
                e(M0S(2*k+1, 0))
                if not part & 1: e('s_nop 0')
def more_masks():
    for i in range(max(NPAIR)):
        e(f's_cmp_le_u32 {s(S_NP)}, {i}')
        e('s_cbranch_scc1 P_MJ')
        if MAP:
            e(f's_lshr_b32 {s(S_T0)}, {s(S_P0)}, 1')
            if i: e(f's_add_u32 {s(S_T0)}, {s(S_T0)}, {i}')
            goff(S_MO, S_T0, 2, 800, S_T3)
        e(MLD(X+4*i, 0 if MAP else 800*i))
    lab('P_MJ')
def swz(dst, src):
    e(f'v_bfrev_b32 {v(dst)}, {v(src)}')
    e(f'v_lshrrev_b32 {v(dst)}, 28, {v(dst)}')
    e(f'v_and_b32 {v(dst)}, 6, {v(dst)}')
def wr_reads():
    for c in (0, 2, 4, 1, 3, 5, 7):
        for jh in range(2): e(f'ds_read_b128 {v(WRF(c)+4*jh,4)}, {v(V16)} offset:{WAC+(c*2+jh)*1024}')

e(f's_cmpk_ge_u32 s2, {NWG}')
e('s_cbranch_scc1 L_END')
stamp(0)
e('s_load_dwordx16 s[4:19], s[0:1], 0')
if OPT['EW']:
    e('s_waitcnt lgkmcnt(0)')
    stamp(3)
    _s3 = stamp
    def stamp(i):
        if i != 3: _s3(i)
if OPT['PP']: e('s_setprio 3')
e(f'v_lshrrev_b32 {v(T+1)}, 6, v0')
e(f'v_and_b32 {v(LANE)}, 63, v0')
e(f'v_readfirstlane_b32 {s(S_WAVE)}, {v(T+1)}')
if OPT['CPF']:
    e(f's_getpc_b64 {s(SRD_C,2)}')
    lab('L_PC')
    e(f's_cmp_lt_u32 {s(S_WAVE)}, 5')
    e('s_cbranch_scc1 P_NC')
    e(f's_mov_b32 {s(SRD_C+2)}, L_END-L_PC')
    e(f's_mov_b32 {s(SRD_C+3)}, 0x20000')
    e(f'v_subrev_u32 {v(JUNK)}, 320, v0')
    e(f'v_lshlrev_b32 {v(JUNK)}, 6, {v(JUNK)}')
    e(f'buffer_load_dword {v(JUNK)}, {v(JUNK)}, {s(SRD_C,4)}, 0 offen')
    lab('P_NC')
e(f'v_and_b32 {v(T+2)}, 31, v0')
e(f'v_bfe_u32 {v(T+3)}, v0, 5, 1')
e(f'v_cmp_gt_u32 vcc, 25, {v(T+2)}')
e(f'v_mul_u32_u24 {v(T+4)}, 400, {v(T+3)}')
e(f'v_lshl_add_u32 {v(LMX)}, {v(T+2)}, 4, {v(T+4)}')
e(f'v_bfrev_b32 {v(T+4)}, 8')
e(f'v_cndmask_b32 {v(LMX)}, {v(T+4)}, {v(LMX)}, vcc')
e(f's_mul_i32 {s(S_T1)}, s2, {WB*400}')
e(f's_sub_u32 {s(SRD_M+2)}, {16384*400}, {s(S_T1)}')
goff(S_MO, S_WAVE, 2, 800, S_T3)
e(f's_mov_b32 {s(SRD_M+3)}, 0x20000')
e(f's_lshl_b32 {s(S_SV)}, {s(S_WAVE)}, 12')
e(f's_lshl_b32 {s(S_PREV)}, s2, {10 if MAP else 13}')
e(f'v_lshlrev_b32 {v(V16)}, 4, {v(LANE)}')
e(f'v_lshlrev_b32 {v(WA)}, 1, {v(LANE)}')
e(f'v_and_b32 {v(WA)}, 32, {v(WA)}')
e(f'v_xor_b32 {v(WA)}, {v(WA)}, {v(V16)}')
e(f'v_xor_b32 {v(WA+1)}, 64, {v(WA)}')
e(f's_mov_b32 {s(SRD_W1+2)}, 32768')
e(f's_mov_b32 {s(SRD_W1+3)}, {s(SRD_M+3)}')
e(f's_lshl_b32 {s(S_T2)}, {s(S_WAVE)}, {18 if MAP else 10}')
e(f's_sub_u32 {s(SRD_T+2)}, {16384*128}, {s(S_PREV)}')
e(f's_mov_b32 {s(SRD_T+3)}, {s(SRD_M+3)}')
e(f's_add_u32 m0, {s(S_SV)}, {STG}')
e(f'v_and_b32 {v(VN)}, 15, {v(LANE)}')
e(f'v_lshrrev_b32 {v(VG)}, 4, {v(LANE)}')
e(f'v_lshlrev_b32 {v(G16)}, 4, {v(VG)}')
e(f'v_mul_u32_u24 {v(RJ)}, 0x80008, {v(T+2)}')
e(f'v_lshrrev_b32 {v(IDX)}, 3, {v(LANE)}')
e(f'v_add_u32 {v(RJ)}, 0x10000, {v(RJ)}')
e(f'v_cmp_gt_u32 vcc, 32, {v(LANE)}')
e('s_waitcnt lgkmcnt(0)')
stamp(1)
e(f's_add_u32 {s(SRD_M)}, s8, {s(S_T1)}')
e(f's_addc_u32 {s(SRD_M+1)}, s9, 0')
e(f's_mov_b64 {s(SRD_W1,2)}, s[10:11]')
e(MLD(MC))
pst(4, 1)
if OPT['PP']: e('s_setprio 0')
e(f's_add_u32 {s(SRD_T)}, s4, {s(S_PREV)}')
e(f's_addc_u32 {s(SRD_T+1)}, s5, 0')
e(f's_load_dword {s(S_B2)}, s[16:17], 0')
e(f's_cmp_lg_u32 {s(S_WAVE)}, 0')
e('s_cbranch_scc1 P_LJ')
e(f'v_mov_b32 {v(SM)}, s12')
e(f'v_mov_b32 {v(SM+1)}, s13')
e(f'v_mov_b32 {v(SM+2)}, s14')
e(f'v_mov_b32 {v(SM+3)}, s15')
e(f'v_lshlrev_b32 {v(T+4)}, 2, {v(T+2)}')
e(f'v_cndmask_b32 {v(SM)}, {v(SM)}, {v(SM+2)}, vcc')
e(f'v_cndmask_b32 {v(SM+1)}, {v(SM+1)}, {v(SM+3)}, vcc')
e(f'v_add_co_u32 {v(SM)}, vcc, {v(SM)}, {v(T+4)}')
e('s_nop 1')
e(f'v_addc_co_u32 {v(SM+1)}, vcc, 0, {v(SM+1)}, vcc')
e(f'global_load_dword {v(SM)}, {v(SM,2)}, off')
lab('P_LJ')
loads = [f'buffer_load_dwordx4 {v(TT,4)}, {v(V16)}, {s(SRD_T,4)}, {s(S_T2)} offen{POL[OPT["TP"]]}']
loads += [f'buffer_load_dwordx4 {v(WA+(c&1))}, {s(SRD_W1,4)}, {s(S_SV)} offen offset:{1024*c} lds' for c in range(4)]
n0 = len(L)
e(f's_lshl1_add_u32 {s(S_RING)}, {s(S_SV)}, {RING}')
e(f's_mul_i32 {s(S_WGH)}, s2, {WB*25600}')
e(f's_lshl_b32 {s(S_T1)}, {s(S_WAVE)}, 9')
e(f'v_add_u32 {v(ALB)}, {LIST}, {v(IDX)}')
e(f'v_add_u32 {v(ALI)}, {s(S_T1)}, {v(ALB)}')
e(f's_add_u32 {s(S_T0)}, {s(S_T1)}, {LIST}')
for i in range(1, 4): e(f'v_add_u32 {v(RJ+i)}, 0x{0x20002*i:x}, {v(RJ)}')
e(f's_sub_u32 {s(SRD_H)}, s6, 1024')
e(f's_subb_u32 {s(SRD_H+1)}, s7, 0')
e(f's_or_b32 {s(SRD_H+1)}, {s(SRD_H+1)}, 0x800000')
e(f's_movk_i32 {s(SRD_H+2)}, 200')
e(f's_mov_b32 {s(SRD_H+3)}, {s(SRD_M+3)}')
e(f's_movk_i32 {s(S_ONE)}, 0x3f80')
e(f'v_lshrrev_b32 {v(PA)}, 1, {v(V16)}')
e(f'v_and_b32 {v(HB)}, 0x100, {v(PA)}')
e(f'v_mov_b64 {v(FF,2)}, -1')
e(f'v_lshlrev_b32 {v(AO)}, 2, {v(LANE)}')
swz(T+2, IDX)
e(f'v_xor_b32 {v(T+2)}, {v(T+2)}, {v(LANE)}')
e(f'v_and_b32 {v(T+2)}, 7, {v(T+2)}')
e(f'v_mul_u32_u24 {v(TW)}, {TS}, {v(IDX)}')
for r in (IDX+1, IDX+3, IX2+1, IX2+3): e(f'v_lshlrev_b32 {v(r)}, 4, {v(T+2)}')
e(f's_add_u32 {s(SRD_O)}, s18, {s(S_PREV)}')
e(f's_addc_u32 {s(SRD_O+1)}, s19, 0')
e(f's_sub_u32 {s(SRD_O+2)}, {16384*128}, {s(S_PREV)}')
e(f's_mov_b32 {s(SRD_O+3)}, {s(SRD_M+3)}')
e(f's_mov_b32 {s(S_L2E)}, 0x{NL2E:08x}')
e(f's_mov_b32 {s(S_DC)}, 0x{(127-OPT["DS"]) << 23:08x}')
e(f's_mov_b32 {s(S_INV)}, 0x{(127-OPT["BOOST"]) << 23:08x}')
goff(S_PSOFF, S_WAVE, 2, 51200, S_T3)
if OPT['NOMEM']: e(f's_mov_b32 {s(S_PSOFF)}, 0')
else: e(f's_add_u32 {s(S_PSOFF)}, {s(S_PSOFF)}, {s(S_WGH)}')
e(f's_add_u32 {s(S_PS1)}, {s(S_PSOFF)}, 1024')
swz(T+2, VN)
e(f'v_xor_b32 {v(T+2)}, {v(T+2)}, {v(VG)}')
e(f'v_lshl_add_u32 {v(T+2)}, {v(T+2)}, 4, {s(S_RING)}')
e(f'v_lshl_add_u32 {v(AB)}, {v(VN)}, 7, {v(T+2)}')
e(f'v_xor_b32 {v(AB+1)}, 64, {v(AB)}')
e(f'v_and_b32 {v(T+3)}, 3, {v(LANE)}')
e(f'v_bfe_u32 {v(T+2)}, {v(LANE)}, 2, 2')
e(f'v_lshlrev_b32 {v(T+7)}, 3, {v(T+3)}')
e(f'v_lshl_add_u32 {v(T+7)}, {v(T+2)}, 7, {v(T+7)}')
e(f'v_and_b32 {v(T+6)}, 8, {v(LANE)}')
e(f'v_lshlrev_b32 {v(T+6)}, 3, {v(T+6)}')
e(f'v_lshl_add_u32 {v(AT)}, {v(VG)}, 5, {v(T+7)}')
e(f'v_xor_b32 {v(AT)}, {v(AT)}, {v(T+6)}')
e(f'v_add_u32 {v(AT)}, {s(S_RING)}, {v(AT)}')
e(f'v_xor_b32 {v(AT+1)}, 32, {v(AT)}')
e(f's_lshl_b32 {s(S_T1)}, {s(S_WAVE)}, 7')
e(f's_add_u32 {s(S_T1)}, {s(S_T1)}, {SCR}')
e(f'v_lshl_add_u32 {v(ASW)}, {v(T+2)}, 2, {v(VG)}')
e(f'v_lshl_add_u32 {v(ASW)}, {v(ASW)}, 2, {v(T+3)}')
e(f'v_lshl_add_u32 {v(ASW)}, {v(ASW)}, 1, {s(S_T1)}')
e(f'v_lshl_add_u32 {v(ASR)}, {v(VN)}, 3, {s(S_T1)}')
e(f'v_and_b32 {v(T+6)}, 0x60, {v(AO)}')
e(f'v_or_b32 {v(T+6)}, {v(T+6)}, {v(T+7)}')
e(f'v_lshl_add_u32 {v(TR)}, {v(VG)}, 10, {v(T+6)}')
e(f's_mul_i32 {s(S_T1)}, {s(S_WAVE)}, 0x1010')
e(f's_and_b32 {s(S_T1)}, {s(S_T1)}, 0x1060')
e(f'v_xor_b32 {v(TRW)}, {s(S_T1)}, {v(TR)}')
e(f'v_add_u32 {v(TR)}, {STG}, {v(TR)}')
e(f'v_add_u32 {v(TRW)}, {STG}, {v(TRW)}')
for t in range(1, 4): e(f'v_xor_b32 {v(TR+t)}, {32*t}, {v(TR)}')
e(f's_and_b32 {s(S_T3)}, {s(S_WAVE)}, 4')
e(f's_lshl_b32 {s(S_T3)}, {s(S_T3)}, 4')
e(f'v_xor_b32 {v(TRB)}, {s(S_T3)}, {v(TR)}')
e(f'v_xor_b32 {v(TRB+1)}, 32, {v(TRB)}')
e(f's_and_b32 {s(S_T1)}, {s(S_WAVE)}, 3')
e(f's_mul_i32 {s(S_T1)}, {s(S_T1)}, {16*TS}')
e(f's_lshl1_add_u32 {s(S_T1)}, {s(S_T3)}, {s(S_T1)}')
e(f's_add_u32 {s(S_T1)}, {s(S_T1)}, {TAB}')
e(f'v_mul_u32_u24 {v(PB)}, {TS}, {v(VN)}')
e(f'v_add3_u32 {v(PB)}, {v(PB)}, {v(G16)}, {s(S_T1)}')
e(f'v_lshl_add_u32 {v(B1A)}, {s(S_T3)}, 1, {v(G16)}')
e(f's_mul_i32 {s(S_T1)}, {s(S_WAVE)}, {8*TS}')
e(f's_add_u32 {s(S_T1)}, {s(S_T1)}, {TAB}')
e(f'v_and_b32 {v(TF)}, 0x70, {v(V16)}')
e(f'v_add3_u32 {v(TW)}, {v(TW)}, {v(TF)}, {s(S_T1)}')
e(f'v_add_u32 {v(TF)}, {v(TW)}, {v(TF)}')
e(f's_lshl_b32 {s(S_T1)}, {s(S_WAVE)}, 11')
e(f'v_add_u32 {v(WW)}, {s(S_T1)}, {v(V16)}')
tab = 0; st_ = 0
for w in range(NW): tab |= (st_ << 3 | NPAIR[w]) << 8*w; st_ += NPAIR[w]
e(f's_mov_b32 {s(S_TP)}, 0x{tab & 0xffffffff:x}')
e(f's_mov_b32 {s(S_TP+1)}, 0x{tab >> 32:x}')
e(f's_lshl_b32 {s(S_T1)}, {s(S_WAVE)}, 3')
e(f's_lshr_b64 {s(S_TP,2)}, {s(S_TP,2)}, {s(S_T1)}')
e(f's_and_b32 {s(S_NP)}, {s(S_TP)}, 7')
e(f's_bfe_u32 {s(S_P0)}, {s(S_TP)}, 0x50003')
e(f's_lshl1_add_u32 {s(S_P0)}, {s(S_P0)}, 16')
e(f's_mul_i32 {s(S_MO)}, {s(S_P0)}, 400')
fill = L[n0:]; del L[n0:]
pos = {0: [0]*5, 2: [0, 0, 0, len(fill), len(fill)], 3: [0, 0, 0, len(fill)//2, len(fill)//2]}[OPT['SP']]
for i in range(len(fill) + 1):
    for j, ld in enumerate(loads):
        if pos[j] == i: e(ld)
    if i < len(fill): L.append(fill[i])
pst(4, 3)
e(f's_cmp_eq_u32 {s(S_WAVE)}, 0')
e('s_waitcnt vmcnt(6) lgkmcnt(0)')
e('s_cbranch_scc1 P_M0')
e('s_waitcnt vmcnt(5)')
lab('P_M0')
stamp(2)
pst(4, 4)
if OPT['MM'] == 0: more_masks()
e(f's_call_b64 {s(S_RC,2)}, CMP')
e('s_branch P_C')
al()
lab('CMP')
if OPT['C2']:
    def cq(j): return f'v_cmp_eq_u16_sdwa {s(S_BAL+2*j,2)}, {v(MC+j//2)}, {s(S_ONE)} src0_sel:WORD_1 src1_sel:WORD_0' if j & 1 else f'v_cmp_eq_u16_e64 {s(S_BAL+2*j,2)}, {s(S_ONE)}, {v(MC+j//2)}'
    for i in range(4): e(f'v_bcnt_u32_b32 {v(T+7)}, {v(MC+i)}, {v(T+7) if i else 0}')
    e(f'v_add_u32 {v(T+4)}, {s(S_T0)}, {v(PA)}')
    e(f'v_mov_b32 {v(T+6)}, {v(T+7)}')
    e(f'ds_write_b64 {v(T+4)}, {v(FF,2)}')
    for i, d in enumerate(('row_shr:1', 'row_shr:2', 'row_shr:4', 'row_shr:8')):
        e(cq(2*i)); e(cq(2*i+1))
        e(f'v_add_u32_dpp {v(T+6)}, {v(T+6)}, {v(T+6)} {d} row_mask:0xf bank_mask:0xf bound_ctrl:0')
    e('s_nop 1')
    e(f'v_add_u32_dpp {v(T+6)}, {v(T+6)}, {v(T+6)} row_bcast:15 row_mask:0xa bank_mask:0xf')
    e(f'v_sub_u32 {v(T+6)}, {v(T+6)}, {v(T+7)}')
    e(f'v_mul_u32_u24 {v(T+6)}, 9363, {v(T+6)}')
    e(f'v_lshrrev_b32 {v(T+6)}, 16, {v(T+6)}')
    e(f'v_min_u32 {v(T+6)}, 200, {v(T+6)}')
    e(f'v_add3_u32 {v(AD)}, {v(T+6)}, {v(HB)}, {s(S_T0)}')
    e(f'v_readlane_b32 {s(S_T3)}, {v(T+6)}, 31')
    e(f'v_readlane_b32 {s(S_T2)}, {v(T+6)}, 63')
    for j in range(8): e(f'v_addc_co_u32_e64 {v(AD+j+1)}, vcc, 0, {v(AD+j)}, {s(S_BAL+2*j,2)}')
    for j in range(8):
        e(f's_mov_b64 exec, {s(S_BAL+2*j,2)}')
        e(f'ds_write_b8{"_d16_hi" if j & 1 else ""} {v(AD+j)}, {v(RJ+j//2)}')
    e('s_mov_b64 exec, -1')
    e(f'v_sub_u32 {v(T+6)}, {v(AD+8)}, {v(AD)}')
    e(f'v_mul_u32_u24 {v(T+6)}, 7, {v(T+6)}')
    e(f'v_cmp_ne_u32 vcc, {v(T+6)}, {v(T+7)}')
else:
    for j in range(8):
        if j & 1: e(f'v_cmp_eq_u16_sdwa {s(S_BAL+2*j,2)}, {v(MC+j//2)}, {s(S_ONE)} src0_sel:WORD_1 src1_sel:WORD_0')
        else: e(f'v_cmp_eq_u16_e64 {s(S_BAL+2*j,2)}, {s(S_ONE)}, {v(MC+j//2)}')
    e(f'v_lshrrev_b32 {v(T+7)}, 1, {v(V16)}')
    e(f'v_add_u32 {v(T+7)}, {s(S_T0)}, {v(T+7)}')
    e(f'v_mov_b64 {v(T+4,2)}, -1')
    e(f'ds_write_b64 {v(T+7)}, {v(T+4,2)}')
    al()
    for j in range(8):
        e(f'v_mbcnt_lo_u32_b32 {v(T+6)}, {s(S_BAL+2*j)}, {v(T+6) if j else 0}')
        e(f'v_mbcnt_hi_u32_b32 {v(T+6)}, {s(S_BAL+2*j+1)}, {v(T+6)}')
    e(f'v_bcnt_u32_b32 {v(T+7)}, {v(MC)}, 0')
    e(f'v_readlane_b32 {s(S_T3)}, {v(T+6)}, 31')
    e(f'v_readlane_b32 {s(S_T2)}, {v(T+6)}, 63')
    e(f'v_add_u32 {v(T+6)}, {s(S_T0)}, {v(T+6)}')
    e('s_mov_b32 exec_lo, 0')
    e(f's_sub_u32 {s(S_T1)}, 256, {s(S_T3)}')
    e(f'v_add_u32 {v(T+6)}, {s(S_T1)}, {v(T+6)}')
    e('s_mov_b32 exec_lo, -1')
    e(f'v_mad_u32_u24 {v(T+7)}, {v(T+6)}, 7, {v(T+7)}')
    e(f's_sub_u32 {s(S_T2)}, {s(S_T2)}, {s(S_T3)}')
    for j in range(8):
        e(f's_mov_b64 exec, {s(S_BAL+2*j,2)}')
        e(f'ds_write_b8{"_d16_hi" if j & 1 else ""} {v(T+6)}, {v(RJ+j//2)}')
        e(f'v_add_u32 {v(T+6)}, 1, {v(T+6)}')
    e('s_mov_b64 exec, -1')
    for i in range(1, 4): e(f'v_bcnt_u32_b32 {v(T+7)}, {v(MC+i)}, {v(T+7)}')
    e(f'v_mul_u32_u24 {v(T+6)}, 7, {v(T+6)}')
    e(f'v_cmp_ne_u32 vcc, {v(T+6)}, {v(T+7)}')
e(f's_min_u32 {s(S_BAD)}, vcc_lo, 1')
e(f's_min_u32 {s(S_BAD+1)}, vcc_hi, 1')
e(f's_lshl_b64 {s(S_BAD,2)}, {s(S_BAD,2)}, 15')
e(f's_or_b32 {s(S_T1)}, {s(S_T3)}, {s(S_BAD)}')
e(f's_or_b32 {s(S_T2)}, {s(S_T2)}, {s(S_BAD+1)}')
e(f's_setpc_b64 {s(S_RC,2)}')

lab('P_C')
pst(4, 5)
tile_fill(0)
pst(4, 6)
e(f's_lshl_b32 {s(S_B2)}, {s(S_B2)}, 16')
e(f's_cmp_lg_u32 {s(S_WAVE)}, 0')
e('s_waitcnt vmcnt(8)')
e('s_cbranch_scc1 P_SW_J')
e(f'v_lshlrev_b32 {v(SM+2)}, 16, {v(SM)}')
e(f'v_and_b32 {v(SM+3)}, 0xffff0000, {v(SM)}')
e(f'v_mov_b32 {v(T+4)}, -1')
e(f'v_mov_b32 {v(T+5)}, 0')
e(f'v_mov_b32 {v(T+6)}, 0x{VIRT:x}')
e(f'v_lshrrev_b32 {v(T)}, 1, {v(V16)}')
e(f'ds_write2st64_b32 {v(AO)}, {v(T+4)}, {v(T+5)} offset0:{FFB//256} offset1:{DESC//256}')
e('s_mov_b32 exec_hi, 0')
e(f'v_max3_f32 {v(T+2)}, abs({v(SM+2)}), abs({v(SM+3)}), abs({s(S_B2)})')
e(f'v_ldexp_f32 {v(SM+2)}, {v(SM+2)}, {OPT["BOOST"]}')
e(f'v_ldexp_f32 {v(SM+3)}, {v(SM+3)}, {OPT["BOOST"]}')
e(f'v_cmp_le_f32 vcc, 0x{(127+16-OPT["BOOST"]) << 23:08x}, {v(T+2)}')
e('s_mov_b32 exec_lo, 0x55')
e(f'v_mul_f32 {v(SM+2)}, {s(S_DC)}, {v(SM+2)}')
e(f'v_mul_f32 {v(SM+3)}, {s(S_DC)}, {v(SM+3)}')
e('s_mov_b32 exec_lo, -1')
if H: e(f'ds_write_b32 {v(AO)}, {v(T+5)} offset:{DESC + 4*NBW}')
e(f'ds_write_b32 {v(AO)}, {v(T+6)} offset:{DESC + 4*(NBW+H)}')
e('s_mov_b32 exec_hi, -1')
e(f's_movk_i32 {s(S_T0)}, 0x3ff')
e('s_cmp_lg_u64 vcc, 0')
e(f's_cmovk_i32 {s(S_T0)}, 0x207')
e(f'v_mov_b32 {v(T+6)}, {DESC + 4*NW}')
e(f'v_mov_b32 {v(T+7)}, {s(S_T0)}')
e(f'ds_write_b64 {v(T)}, {v(SM+2,2)} offset:{W2T}')
e(f'ds_write_b64 {v(T+5)}, {v(T+6,2)} offset:{TKT}')
lab('P_SW_J')
for i in range(2): e(f'ds_write_b128 {v(TW)}, {v(TT,4)} offset:{256+128*i}')
def ttab(r):
    for i in range(4):
        e(f'v_lshlrev_b32 {v(r+2*i)}, 16, {v(TT+i)}')
        e(f'v_and_b32 {v(r+2*i+1)}, 0xffff0000, {v(TT+i)}')
    for i in range(8): e(f'v_mul_f32 {v(r+i)}, {s(S_L2E)}, {v(r+i)}')
if not OPT['P2']:
    ttab(D)
    for i in range(2): e(f'ds_write_b128 {v(TF)}, {v(D+4*i,4)} offset:{16*i}')
pst(4, 2)
e(f's_waitcnt vmcnt(4) lgkmcnt({0 if OPT["P2"] else 2})')
stamp(3)
e('s_barrier')
stamp(4)
pst(3, 1); pst(4, 7)
q = LQ()
def trw(dst, a, ch, jh, tag=None): q.op(f'ds_read_b64_tr_b16 {v(dst,2)}, {v(a)} offset:{ch*4096 + 512*jh}', tag)
for m in range(2):
    for jh in range(2): trw(AC + 4*m + 2*jh, TRW, 4*m, jh)
for sx in range(2): q.op(f'ds_read_b128 {v(TB+4*sx,4)}, {v(PB)} offset:{256+64*sx}', 'ac')
for tl in range(2): q.op(f'ds_read_b128 {v(D+4*tl,4)}, {v(B1A)} offset:{B1T+64*tl}')
for grp in range(4):
    for tl in range(2):
        for jh in range(2): trw(WD + 32 + (grp*2+tl)*4 + 2*jh, TRB+tl, 2+grp, jh, ('b', grp))
pst(3, 2)
if OPT['MM'] == 1: more_masks()
desc(S_CUR, S_T1, 0, LP_)
e(f's_sub_u32 {s(S_PC)}, {s(S_T3)}, {LP_}')
desc(S_SV, S_T2, 1, 2)
if OPT['P2']: ttab(WD+16)
q.wait('ac')
for i in range(4):
    e(f'v_lshlrev_b32 {v(WD+2*i)}, 16, {v(AC+i)}')
    e(f'v_and_b32 {v(WD+2*i+1)}, 0xffff0000, {v(AC+i)}')
    e(f'v_lshlrev_b32 {v(WD+8+2*i)}, 16, {v(AC+4+i)}')
    e(f'v_and_b32 {v(WD+8+2*i+1)}, 0xffff0000, {v(AC+4+i)}')
for i in range(8): e(f'v_xor_b32 {v(TB+8+i)}, 0x80008000, {v(TB+i)}')
for grp in range(4):
    q.wait(('b', grp))
    for tl in range(2): e(M16(D+4*tl, WD+32+(grp*2+tl)*4, TB+4*grp, D+4*tl))
    for i in range(2): e(f'v_add_f32 {v(D+8+2*grp+i)}, {v(WD+2*grp+i)}, {v(WD+8+2*grp+i)}')
for t in range(4):
    for sx in range(2):
        for jh in range(2): trw(WE + (t*2+sx)*4 + 2*jh, TR+t, 6+sx, jh, ('d', t))
if OPT['MM'] == 2: more_masks()
for i in range(8): e(f'v_mul_f32 {v(D+8+i)}, {s(S_L2E)}, {v(D+8+i)}')
for i in range(2): q.op(f'ds_write_b128 {v(WW)}, {v(D+8+4*i,4)} offset:{WAC+1024*i}')
for i in range(8): e(f'v_mul_f32 {v(D+i)}, {s(S_L2E)}, {v(D+i)}')
for tl in range(2): q.op(f'ds_write_b128 {v(PB)}, {v(D+4*tl,4)} offset:{256+64*tl}')
if OPT['P2']:
    for i in range(2): q.op(f'ds_write_b128 {v(TF)}, {v(WD+16+4*i,4)} offset:{16*i}')
pst(3, 3)
for t in range(4): q.op(f'ds_read_b128 {v(W2+4*t,4)}, {v(G16)} offset:{W2T+64*t}')
q.op(f'ds_read_b32 {v(JUNK)}, {v(G16)} offset:{SCC_}')
e(f's_lshl2_add_u32 {s(S_T0)}, {s(S_WAVE)}, {DESC + 4*NW}')
e(f'v_mov_b32 {v(TK)}, {s(S_T0)}')
e(f'v_mov_b32 {v(TD)}, {s(S_SV)}')
q.op(f'ds_write_b32 {v(TK)}, {v(TD)}')
if OPT['MM'] == 3: more_masks()
pst(3, 4)
e(f'v_ldexp_f32 {v(T+2)}, {s(S_B2)}, {OPT["BOOST"]-2}')
e(f'v_add_u32 {v(AO)}, {OUT}, {v(AO)}')
for i in range(4): e(f'v_mov_b64 {v(B3+8+2*i,2)}, 0')
e(f'v_readfirstlane_b32 {s(S_B2Q)}, {v(T+2)}')
q.wait(('d', 1))
for i in range(16):
    e(f'v_lshlrev_b32 {v(WD+2*i)}, 16, {v(WE+i)}')
    e(f'v_and_b32 {v(WD+2*i+1)}, 0xffff0000, {v(WE+i)}')
if OPT['T1'] == 0: tile_fill(1)
def inits():
    e(f'v_add_u32 {v(ALI)}, {16*(LP_-1)}, {v(ALI)}')
    e(f's_mov_b64 {s(S_Q,2)}, 0')
    e(f's_mov_b32 {s(S_QN)}, 0')
    e(f's_movk_i32 {s(S_PREV)}, 0x1040')
    e(f's_mov_b32 {s(S_K)}, 3')
    e(f's_mov_b32 {s(S_M)}, {3 if OPT["STAMP"] else 0}')
    e(f's_mov_b32 {s(S_PS)}, 0')
    e(f'v_mov_b64 {v(T,2)}, 0')
    e(f'v_mov_b32 {v(T+2)}, 1.0')
    e(f'v_mov_b32 {v(T+3)}, 1.0')
if OPT['P2']:
    tile_fill(1, 1)
    inits()
e('s_waitcnt lgkmcnt(0)')
e('s_barrier')
pst(3, 5)
e(f'v_readfirstlane_b32 {s(S_CLS)}, {v(JUNK)}')
if OPT['T1'] == 1: tile_fill(1, 2 if OPT['P2'] else 3)
e(f's_cmp_eq_u32 {s(S_NP)}, 0')
e('s_cbranch_scc1 P_GO')
if OPT['LP']: e(f's_setprio {OPT["LP"]}')
e(f's_lshl_b32 {s(S_T0)}, {s(S_P0)}, 8')
e(f's_add_u32 {s(S_T0)}, {s(S_T0)}, {LIST}')
e(f's_waitcnt vmcnt({2*(LP_-2)})')
for i in range(max(NPAIR)):
    if i:
        e(f's_cmp_le_u32 {s(S_NP)}, {i}')
        e('s_cbranch_scc1 LATE_D')
        e(f's_add_u32 {s(S_T0)}, {s(S_T0)}, 512')
    for j in range(2): e(f'v_mov_b64 {v(MC+2*j,2)}, {v(X+4*i+2*j,2)}')
    e(f's_call_b64 {s(S_RC,2)}, CMP')
    e(f'v_writelane_b32 {v(CV)}, {s(S_T1)}, {2*i}')
    e(f'v_writelane_b32 {v(CV)}, {s(S_T2)}, {2*i+1}')
lab('LATE_D')
e(f'v_add_u32 {v(T+4)}, {s(S_P0)}, {v(LANE)}')
e(f's_lshl_b32 {s(S_T0)}, {s(S_NP)}, 1')
e(f'v_and_b32 {v(T+5)}, 0xff, {v(CV)}')
e(f'v_add_u32 {v(T+5)}, 15, {v(T+5)}')
e(f'v_lshrrev_b32 {v(CV)}, 8, {v(CV)}')
if OPT['XM']:
    assert H == 0
    e(f'v_and_b32 {v(T+6)}, 15, {v(T+5)}')
    e(f'v_lshl_or_b32 {v(CV)}, {v(T+6)}, 12, {v(CV)}')
e(f'v_lshrrev_b32 {v(T+5)}, 4, {v(T+5)}')
e(f'v_max_u32 {v(T+5)}, 2, {v(T+5)}')
e(f'v_or_b32 {v(CV)}, {v(CV)}, {v(T+4)}')
e(f'v_cmp_gt_u32 vcc, {NS}, {v(T+4)}')
e(f'v_lshl_or_b32 {v(T+6)}, {v(T+5)}, 8, {v(CV)}')
e(f'v_lshlrev_b32 {v(T+4)}, 2, {v(T+4)}')
e(f's_bfm_b64 {s(S_TP,2)}, {s(S_T0)}, 0')
e(f's_and_b64 exec, {s(S_TP,2)}, vcc')
e(f'ds_write_b32 {v(T+4)}, {v(T+6)} offset:{DESC}')
if H:
    e(f's_andn2_b64 exec, {s(S_TP,2)}, vcc')
    e(f'v_max_u32 {v(T+5)}, 4, {v(T+5)}')
    e(f'v_add_u32 {v(T+6)}, 1, {v(T+5)}')
    e(f'v_lshrrev_b32 {v(T+6)}, 1, {v(T+6)}')
    e(f'v_sub_u32 {v(T+5)}, {v(T+5)}, {v(T+6)}')
    e(f'v_lshl_or_b32 {v(T+7)}, {v(T+6)}, 4, {v(T+5)}')
    e(f'v_cmp_lt_u32 vcc, 0x7f, {v(CV)}')
    e(f'v_mov_b32 {v(T+5)}, 0xe2')
    e(f'v_lshl_or_b32 {v(T+6)}, {v(T+6)}, 8, {v(CV)}')
    e(f'v_cndmask_b32 {v(T+7)}, {v(T+7)}, {v(T+5)}, vcc')
    e(f'v_and_b32 {v(CV)}, 0x3f, {v(CV)}')
    e(f'v_lshl_or_b32 {v(T+7)}, {v(T+7)}, 8, {v(CV)}')
    e(f'v_lshlrev_b32 {v(T+4)}, 1, {v(T+4)}')
    e(f'ds_write_b64 {v(T+4)}, {v(T+6,2)} offset:{DESC - 4*NS}')
e('s_mov_b64 exec, -1')
if OPT['LP']: e('s_setprio 0')
lab('P_GO')
wr_reads()
for i in range(16, 32):
    e(f'v_lshlrev_b32 {v(WD+2*i)}, 16, {v(WE+i)}')
    e(f'v_and_b32 {v(WD+2*i+1)}, 0xffff0000, {v(WE+i)}')
if not OPT['P2']: inits()
for i in range(2): e(f'v_mov_b64 {v(O+2*i,2)}, 0')
e(f's_sub_u32 {s(S_PC)}, {s(S_PC)}, 2')
e('s_cbranch_scc1 DRAW_P')
lab('DRET_P')
if PX:
    e(f'v_mov_b32 {v(TD)}, {v(ALI)}')
    e(f'v_mov_b32 {v(ALI)}, {FFB}')
    e(f's_lshl_b32 {s(S_MO)}, {s(S_PC)}, 1')
    e(f's_or_b32 {s(S_MO)}, {s(S_MO)}, {s(S_PS)}')
    e(f's_mov_b32 {s(S_P0)}, {s(S_RING)}')
    e(f's_mov_b32 {s(S_RING)}, {DUM - 3*2048}')
    e(f's_mov_b32 {s(S_PC)}, 1')
    e(f's_mov_b32 {s(S_PS)}, 2')
    assert OPT['TS_'] and LA == 3
pst(3, 6)
e(f's_waitcnt vmcnt({2*(LP_-1)})')
for sx in range(2): e(f'ds_read_b128 {v(B+4*sx,4)}, {v(AB+sx)}')
e('s_branch BPF')
if OPT['STAMP']:
    lab('P_END')
    e(f's_mov_b32 {s(S_M)}, 0')
    pst(3, 7)
    stamp(5)

def chain():
    el = lambda k: v(D+2*k, 2); ww = lambda k: v(W2+2*k, 2)
    N = v(T, 2); Dn = v(T+2, 2)
    al()
    e(f'v_pk_fma_f32 {Dn}, {el(0)}, {s(S_DC,2)}, {s(S_DC,2)} op_sel_hi:[1,0,0]')
    e(f'v_pk_fma_f32 {N}, {ww(0)}, {el(1)}, {ww(0)}')
    e(f'v_pk_fma_f32 {N}, {ww(1)}, {Dn}, {N}')
    e(f'v_pk_fma_f32 {Dn}, {el(1)}, {Dn}, {Dn}')
    for k in range(2, 8):
        e(f'v_pk_fma_f32 {N}, {el(k)}, {N}, {N}')
        e(f'v_pk_fma_f32 {N}, {ww(k)}, {Dn}, {N}')
        e(f'v_pk_fma_f32 {Dn}, {el(k)}, {Dn}, {Dn}')
A3R = f'ds_read_b64 {v(A3,2)}, {v(ASR)}'
SCW = f'ds_write_b16 {v(ASW)}, {v(T)}'
def PM(par, qq): return f'v_mfma_f32_4x4x4_16b_bf16 {v(O,4)}, {v(A3,2)}, {v(B3+8*par+2*qq,2)}, {v(O,4)} cbsz:4 abid:{qq}'
TAIL = [[f'v_rcp_f32 {v(T+2)}, {v(T+2)}'], [f'v_rcp_f32 {v(T+3)}, {v(T+3)}'],
        [f'v_fma_f32 {v(T)}, {v(T)}, {v(T+2)}, {s(S_B2Q)}', f'v_fmac_f32 {v(T)}, {v(T+1)}, {v(T+3)}'],
        [f'v_cvt_pk_bf16_f32 {v(T)}, {v(T)}, {v(T)}']]
def draw():
    e('s_mov_b64 exec, 1')
    e(f'v_mov_b32 {v(TK)}, 4')
    e(f'ds_add_rtn_u32 {v(TK)}, {v(V16)}, {v(TK)} offset:{TKT}')
    e('s_mov_b64 exec, -1')
def dispatch(pre, add):
    for u in range(3):
        e(f's_cmp_eq_u32 {s(S_K)}, {u}')
        e(f's_cbranch_scc1 {pre}_{(u+add)%4}')
    e(f's_branch {pre}_{(3+add)%4}')

def unit(u):
    par = u & 1
    if OPT['SX']: sc = [M0S((u+LA)%4, 0), f's_mov_b32 {s(S_K)}, {u}', f's_sub_u32 {s(S_PC)}, {s(S_PC)}, 1', 's_cbranch_scc1 PEV', SCW, A3R, f's_sub_u32 {s(S_CC)}, {s(S_CC)}, 1', f's_waitcnt vmcnt({VW})']
    else: sc = [M0S((u+LA)%4, 0), f's_mov_b32 {s(S_K)}, {u}', f's_sub_u32 {s(S_PC)}, {s(S_PC)}, 1', 's_cbranch_scc1 PEV', None, None, f's_sub_u32 {s(S_CC)}, {s(S_CC)}, 1', f's_waitcnt vmcnt({VW})']
    va = TAIL + [[EX(i)] for i in range(4)]
    LW = OPT['LW']
    if LW == 1: sc[7] = None
    def brd():
        for sx in range(2): e(f'ds_read_b128 {v(B+4*sx,4)}, {v(AB+sx)} offset:{((u+1)%4)*2048}')
    for i in range(8):
        e(MM1(i >> 1, i & 1))
        if sc[i]: e(sc[i])
        if i == 3:
            e(f'v_add_u32 {v(ALI)}, 16, {v(ALI)}')
            lab(f'RET_{u}')
        for x in va[i]: e(x)
    if not OPT['SX']: e(SCW); e(A3R)
    for qq in range(4): e(f'ds_read_b64_tr_b16 {v(B3+8*par+2*qq,2)}, {v(AT+(qq&1))} offset:{u*2048+512*qq}')
    e(IDXR(IDX, 0)); e(IDXR(IDX+2, 8))
    if not OPT['TS_']: e(f'ds_read_b32 {v(TD)}, {v(TK)}')
    if LW != 1: brd()
    n0 = 4 if OPT['SX'] else 8
    for i in range(4, n0): e(EX(i))
    e(f's_waitcnt lgkmcnt({(7 if LW == 1 else 9) - OPT["TS_"]})')
    for qq in range(4):
        e(PM(1-par, qq)); e(EX(n0+2*qq)); e(EX(n0+1+2*qq))
    for i in range(n0+8, 16): e(EX(i))
    if LW:
        e('s_waitcnt lgkmcnt(0)')
        e(DMA(IDX, 0))
        e(DMA(IDX+2, 1))
        if LW == 1:
            e(f's_waitcnt vmcnt({VW})')
            brd()
    if OPT['XM']: e(f's_cselect_b64 exec, {s(S_EX,2)}, -1')
    HI()
    chain()
    LO()
    if OPT['XM']: e('s_mov_b64 exec, -1')
    if LW != 2: e('s_waitcnt lgkmcnt(0)')
    if not LW:
        e(DMA(IDX, 0))
        e(DMA(IDX+2, 1))

INLOOP[0] = 1
for u in range(4):
    lab(f'U_{u}')
    if u & 1 == 0: bstamp()
    unit(u)
    e('s_cbranch_scc1 CEV' if u < 3 else 's_cbranch_scc0 U_0')
INLOOP[0] = 2
lab('CEV')
e(f's_cmp_eq_u32 {s(S_CS)}, 0')
e('s_cbranch_scc1 EPI')
e(f's_mov_b32 {s(S_PREV)}, {s(S_CUR)}')
e(f's_and_b32 {s(S_CUR)}, {s(S_Q)}, 0xffff')
e(f's_lshr_b64 {s(S_Q,2)}, {s(S_Q,2)}, 16')
e(f's_sub_u32 {s(S_QN)}, {s(S_QN)}, 16')
e(f's_bitcmp1_b32 {s(S_CUR)}, 6')
e('s_cbranch_scc1 DRAIN')
lab('BPF')
q = LQ()
e(f's_and_b32 {s(S_T1)}, {s(S_CUR)}, 63')
e(f's_mul_i32 {s(S_T1)}, {s(S_T1)}, {TS}')
e(f's_add_u32 {s(S_T1)}, {s(S_T1)}, {TAB}')
e(f'v_lshl_add_u32 {v(T+6)}, {v(G16)}, 1, {s(S_T1)}')
e(f'v_add_u32 {v(T+7)}, {s(S_T1)}, {v(G16)}')
for jh in range(2): q.op(f'ds_read_b128 {v(D+4*jh,4)}, {v(T+6)} offset:{jh*16}', 't0')
for jh in range(2): q.op(f'ds_read_b128 {v(CB+8+4*jh,4)}, {v(V16)} offset:{WAC+(12+jh)*1024}')
for jh in range(2): q.op(f'ds_read_b128 {v(D+8+4*jh,4)}, {v(T+6)} offset:{128+jh*16}')
e(f's_mov_b32 {s(S_CC)}, 0')
e(f's_mov_b32 {s(S_CS)}, 0')
if OPT['XM']: e(f's_mov_b64 {s(S_EX,2)}, -1')
e(f's_cmp_lg_u32 {s(S_M)}, 0')
q.wait('t0')
for c in (0, 2, 4, 6, 1, 3, 5, 7):
    x = CB + 8 if c == 6 else D if c & 1 else CB
    if c == 6: e('s_waitcnt lgkmcnt(0)')
    if c in (0, 6): al()
    for p in range(4): e(f'v_pk_fma_f32 {v(x+2*p,2)}, {v(WD+c*8+2*p,2)}, {v(D+8*(c&1)+2*p,2)}, {v(WRF(c)+2*p,2)}')
    for p in range(4): e(f'v_cvt_pk_bf16_f32 {v(WE+c*4+p)}, {v(x+2*p)}, {v(x+2*p+1)}')
    if c == 6:
        for t in range(4): e(f'ds_read_b128 {v(CB+4*t,4)}, {v(T+7)} offset:{256+64*t}')
e('s_waitcnt lgkmcnt(0)')
e('s_cbranch_scc1 BP_X')
lab('NEXT')
dispatch('U', 1)
lab('EPI')
e(f's_and_b32 {s(S_T0)}, {s(S_PREV)}, 0x7f')
if H:
    e(f's_cmpk_ge_u32 {s(S_PREV)}, 0x1000')
    e(f's_cselect_b32 {s(S_T1)}, {H}, 0')
    e(f's_add_u32 {s(S_T0)}, {s(S_T0)}, {s(S_T1)}')
e(f'v_pk_add_f32 {v(T+4,2)}, {v(O,2)}, {v(O+2,2)}')
e(f'v_add_f32 {v(T+4)}, {v(T+4)}, {v(T+5)}')
e(f'v_lshl_add_u32 {v(T+5)}, {s(S_T0)}, 8, {v(AO)}')
e(f'v_mul_f32 {v(T+4)}, {s(S_INV)}, {v(T+4)}')
e(f's_bitcmp1_b32 {s(S_PREV)}, 7')
e(f'v_cmp_class_f32_e64 vcc, {v(T+4)}, {s(S_CLS)}')
for i in range(2): e(f'v_mov_b64 {v(O+2*i,2)}, 0')
e(f'ds_write_b32 {v(T+5)}, {v(T+4)}')
if OPT['FSLOW']: e('s_branch SLOW')
e('s_cbranch_scc1 SLOW')
e('s_cbranch_vccnz SLOW')
lab('EPI_R')
e(f's_bitcmp1_b32 {s(S_CUR)}, 6')
e('s_cbranch_scc1 L_DONE')
lab('EPI_C')
e(f's_bfe_u32 {s(S_CC)}, {s(S_CUR)}, 0x40008')
e(f's_sub_u32 {s(S_CC)}, {s(S_CC)}, 2')
e(f's_mov_b32 {s(S_CS)}, 1')
if OPT['XM']:
    e(f's_lshr_b32 {s(S_T0)}, {s(S_CUR)}, 12')
    e(f's_lshl_b32 {s(S_EX)}, 0x20002, {s(S_T0)}')
    e(f's_sub_u32 {s(S_EX)}, {s(S_EX)}, 0x10001')
    e(f's_mov_b32 {s(S_EX+1)}, {s(S_EX)}')
dispatch('U', 1)
lab('PEV')
e(f's_cmp_eq_u32 {s(S_PS)}, 0')
e('s_cbranch_scc1 P_DR')
if PX:
    e(f's_cmp_eq_u32 {s(S_PS)}, 2')
    e('s_cbranch_scc1 P_FIX')
if OPT['TS_']:
    e(f'ds_read_b32 {v(TD)}, {v(TK)}')
    e('s_waitcnt lgkmcnt(0)')
lab('ADV')
e(f'v_readfirstlane_b32 {s(S_TP)}, {v(TD)}')
e(f's_mov_b32 {s(S_TP+1)}, 0')
e(f's_and_b32 {s(S_T0)}, {s(S_TP)}, 63')
e(f's_bfe_u32 {s(S_PC)}, {s(S_TP)}, 0x40008')
e('s_cbranch_scc0 AW')
if OPT['SMODE'] == 4:
    e(f's_cmp_lg_u32 {s(S_T0)}, {OPT["SEL"]}')
    e('s_cbranch_scc1 L_MS')
    e(f's_memrealtime {s(S_ST+2,2)}')
    e('s_waitcnt lgkmcnt(0)')
    lab('L_MS')
goff(S_PSOFF, S_T0, 3, 25600, S_T1)
if H:
    e(f's_lshr_b32 {s(S_T1)}, {s(S_TP)}, 12')
    e(f's_lshl4_add_u32 {s(S_T0)}, {s(S_T0)}, {s(S_T1)}')
    e(f'v_lshl_add_u32 {v(ALI)}, {s(S_T0)}, 4, {v(ALB)}')
else: e(f'v_lshl_add_u32 {v(ALI)}, {s(S_T0)}, 8, {v(ALB)}')
if OPT['NOMEM']: e(f's_mov_b32 {s(S_PSOFF)}, 0')
else: e(f's_add_u32 {s(S_PSOFF)}, {s(S_PSOFF)}, {s(S_WGH)}')
e(f's_add_u32 {s(S_PS1)}, {s(S_PSOFF)}, 1024')
e(f's_lshl_b64 {s(S_BAD,2)}, {s(S_TP,2)}, {s(S_QN)}')
e(f's_or_b64 {s(S_Q,2)}, {s(S_Q,2)}, {s(S_BAD,2)}')
e(f's_add_u32 {s(S_QN)}, {s(S_QN)}, 16')
e(f's_mov_b32 {s(S_PS)}, 0')
e(f's_sub_u32 {s(S_PC)}, {s(S_PC)}, 3')
e('s_cbranch_scc1 P_2')
lab('P_RET')
dispatch('RET', 0)
lab('P_DR')
e(f'v_add_u32 {v(ALI)}, 16, {v(ALI)}')
lab('P_D2')
draw()
e(f's_mov_b32 {s(S_PC)}, 1')
e(f's_mov_b32 {s(S_PS)}, 1')
dispatch('RET', 0)
lab('P_2')
e(f's_bitcmp1_b32 {s(S_TP)}, 6')
e('s_cbranch_scc0 P_D2')
e(f'v_mov_b32 {v(ALI)}, {FFB}')
e(f's_movk_i32 {s(S_PC)}, 0x100')
e('s_branch P_RET')
lab('DRAIN')
for x in sum(TAIL, []): e(x)
e(f's_bitcmp1_b32 {s(S_K)}, 0')
e(SCW); e(A3R)
e('s_waitcnt lgkmcnt(0)')
e('s_cbranch_scc1 DRAIN1')
for par in range(2):
    if par: lab('DRAIN1')
    for qq in range(4):
        e(PM(par, qq)); e('s_nop 1' if qq < 3 else 's_nop 2')
    e('s_branch EPI')

INLOOP[0] = False
lab('L_DONE')
stamp(6)
e(f's_lshl_b32 {s(S_T0)}, {s(S_WAVE)}, 11')
e(f's_add_u32 {s(S_T0)}, {s(S_T0)}, {OUT}')
e(f'v_lshl_add_u32 {v(T)}, {v(V16)}, 1, {s(S_T0)}')
e(f's_lshl_b32 {s(S_T0)}, {s(S_WAVE)}, {18 if MAP else 10}')
e('s_waitcnt lgkmcnt(0)')
e('s_barrier')
for i in range(2): e(f'ds_read_b128 {v(D+4*i,4)}, {v(T)} offset:{16*i}')
if H:
    e(f'v_cmp_le_u32 vcc, {OUT + NS*256}, {v(T)}')
    e('s_and_b64 exec, exec, vcc')
    e('s_cbranch_execz L_ST')
    for i in range(2): e(f'ds_read_b128 {v(D+8+4*i,4)}, {v(T)} offset:{H*256+16*i}')
    e('s_waitcnt lgkmcnt(0)')
    for i in range(4): e(f'v_pk_add_f32 {v(D+2*i,2)}, {v(D+2*i,2)}, {v(D+8+2*i,2)}')
    lab('L_ST')
    e('s_mov_b64 exec, -1')
e('s_waitcnt lgkmcnt(0)')
for p in range(4): e(f'v_cvt_pk_bf16_f32 {v(B+p)}, {v(D+2*p)}, {v(D+2*p+1)}')
e(f'buffer_store_dwordx4 {v(B,4)}, {v(V16)}, {s(SRD_O,4)}, {s(S_T0)} offen{POL[OPT["STP"]]}')
lab('L_FIN')
if OPT['STAMP']:
    e('s_waitcnt vmcnt(0)')
    stamp(7)
    if OPT['STAMP'] == 7:
        e(f's_sub_u32 {s(S_T0)}, {s(S_ST+2*(1 if OPT["SMODE"] == 4 else OPT["SEL"]))}, {s(S_ST)}')
        e(f's_lshl_b32 {s(S_T0)}, {s(S_T0)}, {1 if OPT["SMODE"] == 4 else 2}')
        if OPT['SMODE'] == 1:
            e(f's_sub_u32 {s(S_T0)}, {s(S_ST+8)}, {s(S_ST+6)}')
            e(f's_lshr_b32 {s(S_T0)}, {s(S_T0)}, 4')
        if OPT['SMODE'] == 2:
            e(f's_sub_u32 {s(S_T0)}, {s(S_ST+12)}, {s(S_ST+10)}')
        if OPT['SMODE'] == 3:
            e(f's_sub_u32 {s(S_T0)}, {s(S_ST+14)}, {s(S_ST)}')
            e(f's_lshl_b32 {s(S_T0)}, {s(S_T0)}, 1')
        if OPT['SELW'] >= 0:
            e(f's_cmp_eq_u32 {s(S_WAVE)}, {OPT["SELW"]}')
            e(f's_cselect_b32 {s(S_T0)}, {s(S_T0)}, 0')
        if OPT['SELG'] >= 0:
            e(f's_cmp_eq_u32 s2, {OPT["SELG"]}')
            e(f's_cselect_b32 {s(S_T0)}, {s(S_T0)}, 0')
        e(f's_add_u32 {s(S_T0)}, {s(S_T0)}, {OPT["SPIN"]}')
        lab('L_SPIN')
        e('s_sleep 1')
        e('s_memrealtime s[4:5]')
        e('s_waitcnt lgkmcnt(0)')
        e(f's_sub_u32 {s(S_T1)}, s4, {s(S_ST)}')
        e(f's_cmp_lt_u32 {s(S_T1)}, {s(S_T0)}')
        e('s_cbranch_scc1 L_SPIN')
    else:
        e('s_load_dwordx2 s[4:5], s[0:1], 72')
        e('s_waitcnt lgkmcnt(0)')
        e('s_mov_b32 s6, 0x1000000')
        e('s_mov_b32 s7, 0x20000')
        e(f's_mul_i32 {s(S_T0)}, s2, {NW}')
        e(f's_add_u32 {s(S_T0)}, {s(S_T0)}, {s(S_WAVE)}')
        if OPT['STAMP'] == 8:
            e(f's_lshl_b32 {s(S_T0)}, {s(S_T0)}, 8')
            e(f'v_lshrrev_b32 {v(T)}, 2, {v(V16)}')
            e(f'buffer_store_dword {v(TSV)}, {v(T)}, s[4:7], {s(S_T0)} offen')
        else:
            e(f's_lshl_b32 {s(S_T0)}, {s(S_T0)}, 5')
            e(f'v_mov_b32 {v(T+1)}, {s(S_T0)}')
            for i in range(8):
                e(f'v_mov_b32 {v(T)}, {s(S_ST+2*i)}')
                e(f'buffer_store_dword {v(T)}, {v(T+1)}, s[4:7], 0 offen offset:{4*i}')
e('s_endpgm')

lab('AW')
e('s_sleep 1')
e(f'ds_read_b32 {v(TD)}, {v(TK)}')
e('s_waitcnt lgkmcnt(0)')
e('s_branch ADV')
lab('DRAW_P')
draw()
e(f's_add_u32 {s(S_PC)}, {s(S_PC)}, 2')
e(f's_mov_b32 {s(S_PS)}, 1')
if not OPT['TS_']:
    e('s_waitcnt lgkmcnt(0)')
    e(f'ds_read_b32 {v(TD)}, {v(TK)}')
e('s_branch DRET_P')
if PX:
    lab('P_FIX')
    e(f's_mov_b32 {s(S_RING)}, {s(S_P0)}')
    e(f's_mov_b32 m0, {s(S_RING)}')
    e(f'v_mov_b32 {v(ALI)}, {v(TD)}')
    e(f's_and_b32 {s(S_PS)}, {s(S_MO)}, 1')
    e(f's_lshr_b32 {s(S_PC)}, {s(S_MO)}, 1')
    e(f's_sub_u32 {s(S_PC)}, {s(S_PC)}, 1')
    e('s_cbranch_scc1 PEV')
    e(f'v_add_u32 {v(ALI)}, 16, {v(ALI)}')
    e('s_branch RET_1')
lab('BP_X')
if OPT['STAMP']:
    e(f's_cmp_eq_u32 {s(S_M)}, 3')
    e('s_cbranch_scc1 P_END')
e(f's_cmp_eq_u32 {s(S_M)}, 1')
e(f's_mov_b32 {s(S_M)}, 0')
e('s_cbranch_scc1 SLOW_W')
e('s_branch EPI_C')

lab('SLOW')
ACC = WR; BS_ = WR + 16; Y = WR + 24; Z = WR + 28
e(f's_bitcmp1_b32 {s(S_PREV)}, 6')
e('s_cbranch_scc1 EPI_R')
if OPT['STAMP'] == 9: e(f's_add_u32 {s(S_ST)}, {s(S_ST)}, 1')
e(f's_mov_b32 {s(S_SV)}, {s(S_CUR)}')
e(f's_mov_b32 {s(S_CUR)}, {s(S_PREV)}')
e(f's_mov_b32 {s(S_M)}, 1')
e(f'ds_write_b32 {v(T+5)}, {v(O)}')
e('s_branch BPF')
lab('SLOW_W')
e(f's_mov_b32 {s(S_CUR)}, {s(S_SV)}')
e(f's_and_b32 {s(S_T0)}, {s(S_PREV)}, 63')
e(f's_mov_b32 {s(S_T1)}, 0' if OPT['XM'] else f's_lshr_b32 {s(S_T1)}, {s(S_PREV)}, 12')
e(f's_bfe_u32 {s(S_T3)}, {s(S_PREV)}, 0x40008')
e(f's_lshl4_add_u32 {s(S_T1)}, {s(S_T0)}, {s(S_T1)}')
e(f's_lshl_b32 {s(S_T1)}, {s(S_T1)}, 4')
e(f's_add_u32 {s(S_SV)}, {s(S_T1)}, {LIST}')
e(f's_bitcmp1_b32 {s(S_PREV)}, 7')
e(f's_cselect_b64 {s(S_TP,2)}, -1, 0')
e(f's_cselect_b32 {s(S_T3)}, 13, {s(S_T3)}')
e(f'v_bfe_u32 {v(Y)}, {v(V16)}, 4, 4')
e(f'v_mov_b32 {v(Y+3)}, {v(G16)}')
for i in range(8): e(f'v_mov_b64 {v(ACC+2*i,2)}, 0')
goff(S_T1, S_T0, 3, 25600, S_T2)
e(f's_add_u32 {s(S_T1)}, {s(S_T1)}, {s(S_WGH)}')
goff(S_T2, S_T0, 3, 400, S_BAD)
lab('SLOW_L')
e(f'v_add_u32 {v(Y+1)}, {s(S_SV)}, {v(Y)}')
e(f'ds_read_u8 {v(Y+2)}, {v(Y+1)}')
e('s_waitcnt lgkmcnt(0)')
e(f'v_cndmask_b32_e64 {v(Y+2)}, {v(Y+2)}, {v(Y)}, {s(S_TP,2)}')
e(f'v_lshlrev_b32 {v(Y+1)}, 1, {v(Y+2)}')
for sx in range(2): e(f'buffer_load_dwordx4 {v(BS_+4*sx,4)}, {v(Y+2,2)}, {s(SRD_H,4)}, {s(S_T1)} idxen offen offset:{1024+64*sx}')
e(f'buffer_load_ushort {v(Y+1)}, {v(Y+1)}, {s(SRD_M,4)}, {s(S_T2)} offen')
e(f'v_cmp_gt_u32 vcc, 200, {v(Y+2)}')
e(f'v_add_u32 {v(Y)}, 16, {v(Y)}')
e('s_waitcnt vmcnt(0)')
for t in range(4):
    for sx in range(2): e(MM1(t, sx, BS_))
e(f'v_lshlrev_b32 {v(Y+1)}, 16, {v(Y+1)}')
e(f'v_cndmask_b32 {v(Y+1)}, 0, {v(Y+1)}, vcc')
e('s_nop 7')
for i in range(16): e(EX(i))
for i in range(16): e(f'v_add_f32 {v(D+i)}, 1.0, {v(D+i)}')
for i in range(16): e(f'v_rcp_f32 {v(D+i)}, {v(D+i)}')
e(f'v_mul_f32 {v(Z)}, {v(D)}, {v(W2)}')
for i in range(1, 16):
    e(f'v_fmac_f32 {v(Z)}, {v(D+i)}, {v(W2+i)}')
    if i == 1: e(f'v_ldexp_f32 {v(Z)}, {v(Z)}, {OPT["DS"]}')
e(f'v_mov_b32 {v(Z+1)}, {v(Z)}')
e('s_nop 1')
e(f'v_permlane32_swap_b32 {v(Z)}, {v(Z+1)}')
e(f'v_add_f32 {v(Z)}, {v(Z)}, {v(Z+1)}')
e(f'v_mov_b32 {v(Z+1)}, {v(Z)}')
e('s_nop 1')
e(f'v_permlane16_swap_b32 {v(Z)}, {v(Z+1)}')
e(f'v_add_f32 {v(Z)}, {v(Z)}, {v(Z+1)}')
e(f'v_mul_f32 {v(Z)}, {s(S_INV)}, {v(Z)}')
e(f'v_add_f32 {v(Z)}, {s(S_B2)}, {v(Z)}')
e(f'v_mul_f32 {v(Z)}, {v(Z)}, {v(Y+1)}')
for i in range(8):
    e(f'v_lshlrev_b32 {v(Z+1)}, 16, {v(BS_+i)}')
    e(f'v_and_b32 {v(Z+2)}, 0xffff0000, {v(BS_+i)}')
    e(f'v_fmac_f32 {v(ACC+2*i)}, {v(Z)}, {v(Z+1)}')
    e(f'v_fmac_f32 {v(ACC+2*i+1)}, {v(Z)}, {v(Z+2)}')
e(f's_sub_u32 {s(S_T3)}, {s(S_T3)}, 1')
e(f's_cmp_lg_u32 {s(S_T3)}, 0')
e('s_cbranch_scc1 SLOW_L')
e(f'v_readfirstlane_b32 {s(S_T0)}, {v(T+5)}')
e('s_nop 1')
e(f'v_lshl_add_u32 {v(Z)}, {v(G16)}, 1, {s(S_T0)}')
for i in range(16): e(f'ds_add_f32 {v(Z)}, {v(ACC+i)} offset:{128*(i>>3)+4*(i&7)}')
e('s_waitcnt lgkmcnt(0)')
e(f's_bitcmp1_b32 {s(S_CUR)}, 6')
e('s_cbranch_scc1 L_DONE')
wr_reads()
e(f's_mov_b32 {s(S_M)}, 2')
e('s_branch BPF')
lab('L_END')
e('s_endpgm')
L.append(f""".section .rodata,"a"
.p2align 6
.amdhsa_kernel {KN}
  .amdhsa_next_free_vgpr {NVGPR}
  .amdhsa_next_free_sgpr {NSGPR}
  .amdhsa_accum_offset {(NVGPR+3)//4*4}
  .amdhsa_group_segment_fixed_size 0
  .amdhsa_kernarg_size 80
  .amdhsa_user_sgpr_count 2
  .amdhsa_user_sgpr_kernarg_segment_ptr 1
  .amdhsa_system_sgpr_workgroup_id_x 1
.end_amdhsa_kernel""")

text = '\n'.join(L) + '\n'
outs = [a for a in sys.argv[1:] if '=' not in a]
if outs:
    open(outs[0], 'w').write(text)
    import hazard
    n = hazard.check(text, verbose=not OPT['KILL'])
    print(f'{outs[0]}: vgpr={NVGPR} lds={LDS_BYTES} hazards={n}', file=sys.stderr)
else:
    sys.stdout.write(text)
```

```python
import sys, os
sys.path.insert(0, os.path.join(os.path.dirname(os.path.abspath(__file__)), 'exp'))

OPT = dict(STAMP=0, NOMEM=0, KILL=0, HP=1, MP=1, TP=1, STP=1, CPF=1, YP=0, SPIN=0, SEL=0, SELW=-1, SELG=-1, SMODE=0, FSLOW=0, BOOST=40, SEC=0, PP=1, RAMP=0x65433210, SP=2, T1=1, AL=1, LP=0, SX=0, LA=3, VW=2, H=0, MM=2, EW=0, C2=1, P2=1, MAP=1, LW=2, XM=1, TS_=1, DS=60, PX=0, P3=0, SK=0, SKP=6)
for a in sys.argv[1:]:
    if '=' in a:
        k, v_ = a.split('='); assert k in OPT, k; OPT[k] = int(v_, 0)
NW = 8; NBW = 64; NWG = 16384 // NBW
NPAIR = [(OPT['RAMP'] >> 4*w) & 15 for w in range(NW)]
assert sum(NPAIR) == 24 and max(NPAIR) <= 6
LA = OPT['LA']; VW = OPT['VW'] if OPT['VW'] >= 0 else 2*(LA-2)
H = OPT['H']; NS = NBW - H
assert H % 4 == 0 and H <= 2*NPAIR[7]
MAP = OPT['MAP']
WB = 8 if MAP else NBW
PX = OPT['PX']
LP_ = LA + PX
assert LP_ <= 4
POL = ['', ' nt', ' sc1', ' sc0 sc1', ' sc1 nt', ' sc0 nt', ' sc0 sc1 nt', ' sc0']
NL2E = 0xBFB8AA3B

WAC = 0
W2T = 16384; B1T = W2T + 256
FFB = W2T + 512
DESC = FFB + 256
TKT = DESC + 448; SCC_ = TKT + 4
RING = DESC + 512
TAB = RING + NW * 8192
TS = 528
LIST = TAB + NBW * TS
OUT = LIST + NBW * 256
SCR = OUT + (NBW + H + 1) * 256
STG = LIST + 16 * 256
if OPT['P3']: STG = SCR + NW * 128 - 24576
LDS_BYTES = max(SCR + NW * 128, STG + 32768)
DUM = LDS_BYTES
LDS_BYTES += 2048 * PX
assert LDS_BYTES <= 163840 and RING % 256 == 0 and STG % 128 == 0

L = []
INLOOP = [False]
def e(s):
    K = OPT['KILL'] if INLOOP[0] else 0
    if K & 256 and s.startswith(('v_exp', 'v_mfma')): s = 's_nop 0'
    if K & 256 and s.startswith(('v_pk', 'v_rcp', 'v_cvt')): return
    if K & 1024 and s.startswith('v_pk') and INLOOP[0] == 1: return
    if K & 1 and s.startswith('v_mfma') and '4x4x4' in s: s = 's_nop 0'
    if K & 2 and INLOOP[0] == 2 and s.startswith(('v_pk_fma', 'v_cvt')): return
    if K & 4 and INLOOP[0] == 2 and s.startswith('ds_read_b128') and f', {v(V16)} ' in s: return
    if K & 8 and s.startswith('v_mfma') and '4x4x4' not in s: s = 's_nop 0'
    if K & 8 and s.startswith('v_exp'): s = s.split(',')[0] + f', v{int(s.split("v")[-1]) - D + WE}'
    if K & 64 and s.startswith('buffer_load'): return
    if K & 128 and s.startswith('ds_read_u8'): return
    if K & 16 and INLOOP[0] == 1 and s.startswith('ds_read_b128'): return
    if K & 32 and INLOOP[0] == 1 and s.startswith('ds_read_b64_tr'): return
    if K & 2048 and s.startswith('v_exp'): s = 's_nop 0'
    if K and s.startswith('s_cbranch_vccnz SLOW'): return
    L.append('    ' + s)
def lab(s): L.append(s + ':')
def al():
    if OPT['AL']: L.append('    .p2align 3')

_v = [0]
def valloc(n, al=1):
    b = (_v[0] + al - 1) // al * al
    _v[0] = b + n
    return b
T = valloc(8, 2)
WD = valloc(64, 4); WE = valloc(32, 4); D = valloc(16, 4); W2 = valloc(16, 4); CB = valloc(16, 4)
B = valloc(8, 4); B3 = valloc(16, 4); O = valloc(4, 4); WR = valloc(56, 4)
A3 = valloc(2, 2); IDX = valloc(4, 2); AB = valloc(2); AT = valloc(2)
ALI = valloc(1); ALB = valloc(1); ASR = valloc(1); ASW = valloc(1); AO = valloc(1); V16 = valloc(1); G16 = valloc(1)
TK = valloc(1); TD = valloc(1)
X = WR; MC = WR + 24; RJ = WR + 28; CV = WR + 32; HB = WR + 33; FF = WR + 34; PA = WR + 36; AD = WR + 46
TSV = valloc(1) if OPT['STAMP'] == 8 else None
NVGPR = _v[0]
assert NVGPR <= 256, NVGPR

def v(n, c=1): return f'v{n}' if c == 1 else f'v[{n}:{n+c-1}]'
def s(n, c=1): return f's{n}' if c == 1 else f's[{n}:{n+c-1}]'

SRD_H, SRD_M, SRD_O, SRD_T, SRD_W1, SRD_C = 20, 24, 28, 32, 36, 40
S_RA = 32; S_RB = 34; S_RC = 36
S_B2Q = 44; S_INV = 46
(S_WAVE, S_WGH, S_PC, S_PSOFF, S_CUR, S_PREV, S_RING, S_PS, S_T0, S_T1, S_T2, S_T3, S_L2E, S_ONE, S_CC, S_B2) = range(48, 64)
S_BAL = 4
S_BAD = 64
S_TP = 66
S_Q = 68
S_CLS = 45; S_NP = 47; S_P0 = 70; S_MO = 71; S_PS1 = 72; S_K = 73; S_SV = 74; S_QN = 75; S_CS = 76; S_M = 77; S_EX = 78; S_DC = 42; S_CM = 40
NSGPR = 80
S_ST = 80
if OPT['STAMP']: NSGPR = 100
def bstamp():
    if OPT['STAMP'] == 8:
        e(f's_memrealtime {s(S_ST+2,2)}')
        e('s_waitcnt lgkmcnt(0)')
        e(f's_lshl_b64 exec, 1, {s(S_ST+4)}')
        e(f'v_mov_b32 {v(TSV)}, {s(S_ST+2)}')
        e('s_mov_b64 exec, -1')
        e(f's_add_u32 {s(S_ST+4)}, {s(S_ST+4)}, 1')
def tic(i, op='s_sub_u32'):
    if OPT['STAMP'] == 9 and OPT['SEC'] >> i & 1:
        e(f's_cselect_b32 {s(S_ST+1)}, 1, 0')
        e('s_memtime s[98:99]')
        e('s_waitcnt lgkmcnt(0)')
        e(f'{op} {s(S_ST+2*i)}, {s(S_ST+2*i)}, s98')
        e(f's_cmp_lg_u32 {s(S_ST+1)}, 0')
def toc(i): tic(i, 's_add_u32')
def pst(mode, i):
    if OPT['STAMP'] == mode: e(f's_memrealtime {s(S_ST+2*i,2)}')
def stamp(i):
    if OPT['STAMP'] in (3, 4):
        if i == 0: e(f's_memrealtime {s(S_ST,2)}')
        if i == 7: e('s_waitcnt lgkmcnt(0)')
        return
    if OPT['STAMP'] and i == 0: e(f's_mov_b32 {s(S_ST+17)}, 0')
    if OPT['STAMP'] == 9:
        if i == 0:
            for j in range(8): e(f's_mov_b32 {s(S_ST+2*j)}, 0')
        return
    if OPT['STAMP'] == 8:
        if i == 0:
            e(f's_mov_b32 {s(S_ST+4)}, 0')
            e(f'v_mov_b32 {v(TSV)}, 0')
            bstamp()
        if i in (5, 7): bstamp()
        return
    if OPT['STAMP']:
        if (OPT['STAMP'] == 2 or OPT['SMODE']) and i in (3, 4): return
        e(f's_memrealtime {s(S_ST+2*i,2)}')
        if (OPT['STAMP'] == 2 or OPT['SMODE']) and i in (5, 6): e(f's_memtime {s(S_ST+2*(i-2),2)}')
        e('s_waitcnt lgkmcnt(0)')

KN = 'standalone__sequential_behavior_din__recsys_kernel'

class LQ:
    def __init__(self): self.q = []
    def op(self, text, tag=None): e(text); self.q.append(tag)
    def wait(self, tag):
        i = max(j for j, t in enumerate(self.q) if t == tag)
        e(f's_waitcnt lgkmcnt({min(len(self.q) - 1 - i, 15)})')

def M16(d, a, b, c): return f'v_mfma_f32_16x16x32_bf16 {v(d,4)}, {v(a,4)}, {v(b,4)}, ' + (v(c,4) if c is not None else '0')
def MM1(t, sx, b=None): return M16(D+4*t, WE+4*(2*t+sx), (B if b is None else b)+4*sx, D+4*t if sx else CB+4*t)
def EX(i): return f'v_exp_f32 {v(D+i)}, {v(D+i)}'
def M0S(u, c): return f's_add_u32 m0, {s(S_RING)}, {u*2048 + c*1024}'
def DMA(r, c=0):
    return f'buffer_load_dwordx4 {v(r,2)}, {s(SRD_H,4)}, {s(S_PSOFF if c else S_PS1)} idxen offen{" offset:1024" if c else ""}{POL[OPT["HP"]]} lds'
def IDXR(r, off): return f'ds_read_u8 {v(r)}, {v(ALI)} offset:{off}'
def HI():
    if OPT['YP']: e('s_setprio 1')
def LO():
    if OPT['YP']: e('s_setprio 0')
VIRT = 0x240
def goff(dst, b, sh, row, tmp):
    if MAP: e(f's_lshr_b32 {s(tmp)}, {s(b)}, {sh}')
    e(f's_mul_i32 {s(dst)}, {s(b)}, {row}')
    if MAP:
        e(f's_mul_i32 {s(tmp)}, {s(tmp)}, {255*(row << sh)}')
        e(f's_add_u32 {s(dst)}, {s(dst)}, {s(tmp)}')
def WRF(c): return CB + 8 if c == 6 else WR + 8*(c if c < 6 else 6)

L.append(f'''; Kernarg layout for this problem (80 bytes, ptrs only, base s[0:1]):
; @launch grid=({NWG},1,1) block=({NW*64},1,1) lds={LDS_BYTES}
.amdgcn_target "amdgcn-amd-amdhsa--gfx950"
.text
.globl {KN}
.p2align 8
.type {KN},@function
{KN}:''')

LANE = O; VG = O + 1; VN = O + 2; LMX = O + 3
TB = B3
TR = CB; TRB = CB + 4; B1A = CB + 6; TW = CB + 7; TRW = CB + 8; PB = CB + 9; SM = CB + 10; JUNK = CB + 14; WW = CB + 15
IX2 = B; WA = W2; TT = W2 + 4; AC = WR + 38; TF = T + 3
def MLD(dst, off=0): return f'buffer_load_dwordx4 {v(dst,4)}, {v(LMX)}, {s(SRD_M,4)}, {s(S_MO)} offen offset:{off}{POL[OPT["MP"]]}'
def desc(dst, cw, add, umin):
    e(f's_and_b32 {s(S_T3)}, {s(cw)}, 0xff')
    e(f's_lshr_b32 {s(cw)}, {s(cw)}, 8')
    e(f's_add_u32 {s(S_T3)}, {s(S_T3)}, 15')
    if OPT['XM']:
        e(f's_and_b32 {s(dst)}, {s(S_T3)}, 15')
        e(f's_lshl_b32 {s(dst)}, {s(dst)}, 12')
        e(f's_or_b32 {s(cw)}, {s(cw)}, {s(dst)}')
    e(f's_lshr_b32 {s(S_T3)}, {s(S_T3)}, 4')
    e(f's_max_u32 {s(S_T3)}, {s(S_T3)}, {umin}')
    e(f's_lshl1_add_u32 {s(dst)}, {s(S_WAVE)}, {s(cw)}')
    e(f's_lshl_b32 {s(cw)}, {s(S_T3)}, 8')
    e(f's_or_b32 {s(dst)}, {s(dst)}, {s(cw)}')
    if add: e(f's_or_b32 {s(dst)}, {s(dst)}, 1')
def tile_fill(k, part=3):
    rr = (IDX, IDX+2, IX2, IX2+2)[:2*(LP_-2) if k else 4]
    if part & 1:
        for c, r in enumerate(rr): e(IDXR(r, 32*k+8*c))
        e(M0S(2*k, 0))
    if part & 2:
        for c, r in enumerate(rr):
            if part & 1: e(f's_waitcnt lgkmcnt({len(rr)-1-c})')
            e(DMA(r, c & 1))
            if c == 1 and len(rr) > 2:
                e(M0S(2*k+1, 0))
                if not part & 1: e('s_nop 0')
def more_masks():
    for i in range(max(NPAIR)):
        e(f's_cmp_le_u32 {s(S_NP)}, {i}')
        e('s_cbranch_scc1 P_MJ')
        if MAP:
            e(f's_lshr_b32 {s(S_T0)}, {s(S_P0)}, 1')
            if i: e(f's_add_u32 {s(S_T0)}, {s(S_T0)}, {i}')
            goff(S_MO, S_T0, 2, 800, S_T3)
        e(MLD(X+4*i, 0 if MAP else 800*i))
    lab('P_MJ')
def swz(dst, src):
    e(f'v_bfrev_b32 {v(dst)}, {v(src)}')
    e(f'v_lshrrev_b32 {v(dst)}, 28, {v(dst)}')
    e(f'v_and_b32 {v(dst)}, 6, {v(dst)}')
def wr_reads():
    for c in (0, 2, 4, 1, 3, 5, 7):
        for jh in range(2): e(f'ds_read_b128 {v(WRF(c)+4*jh,4)}, {v(V16)} offset:{WAC+(c*2+jh)*1024}')

e(f's_cmpk_ge_u32 s2, {NWG}')
e('s_cbranch_scc1 L_END')
stamp(0)
e('s_load_dwordx16 s[4:19], s[0:1], 0')
if OPT['EW']:
    e('s_waitcnt lgkmcnt(0)')
    stamp(3)
    _s3 = stamp
    def stamp(i):
        if i != 3: _s3(i)
if OPT['PP']: e('s_setprio 3')
e(f'v_lshrrev_b32 {v(T+1)}, 6, v0')
e(f'v_and_b32 {v(LANE)}, 63, v0')
e(f'v_readfirstlane_b32 {s(S_WAVE)}, {v(T+1)}')
if OPT['CPF']:
    e(f's_getpc_b64 {s(SRD_C,2)}')
    lab('L_PC')
    e(f's_cmp_lt_u32 {s(S_WAVE)}, 5')
    e('s_cbranch_scc1 P_NC')
    e(f's_mov_b32 {s(SRD_C+2)}, L_END-L_PC')
    e(f's_mov_b32 {s(SRD_C+3)}, 0x20000')
    e(f'v_subrev_u32 {v(JUNK)}, 320, v0')
    e(f'v_lshlrev_b32 {v(JUNK)}, 6, {v(JUNK)}')
    e(f'buffer_load_dword {v(JUNK)}, {v(JUNK)}, {s(SRD_C,4)}, 0 offen')
    lab('P_NC')
e(f'v_and_b32 {v(T+2)}, 31, v0')
e(f'v_bfe_u32 {v(T+3)}, v0, 5, 1')
e(f'v_cmp_gt_u32 vcc, 25, {v(T+2)}')
e(f'v_mul_u32_u24 {v(T+4)}, 400, {v(T+3)}')
e(f'v_lshl_add_u32 {v(LMX)}, {v(T+2)}, 4, {v(T+4)}')
e(f'v_bfrev_b32 {v(T+4)}, 8')
e(f'v_cndmask_b32 {v(LMX)}, {v(T+4)}, {v(LMX)}, vcc')
e(f's_mul_i32 {s(S_T1)}, s2, {WB*400}')
e(f's_sub_u32 {s(SRD_M+2)}, {16384*400}, {s(S_T1)}')
goff(S_MO, S_WAVE, 2, 800, S_T3)
e(f's_mov_b32 {s(SRD_M+3)}, 0x20000')
e(f's_lshl_b32 {s(S_SV)}, {s(S_WAVE)}, 12')
e(f's_lshl_b32 {s(S_PREV)}, s2, {10 if MAP else 13}')
e(f'v_lshlrev_b32 {v(V16)}, 4, {v(LANE)}')
e(f'v_lshlrev_b32 {v(WA)}, 1, {v(LANE)}')
e(f'v_and_b32 {v(WA)}, 32, {v(WA)}')
e(f'v_xor_b32 {v(WA)}, {v(WA)}, {v(V16)}')
e(f'v_xor_b32 {v(WA+1)}, 64, {v(WA)}')
e(f's_mov_b32 {s(SRD_W1+2)}, 32768')
e(f's_mov_b32 {s(SRD_W1+3)}, {s(SRD_M+3)}')
e(f's_lshl_b32 {s(S_T2)}, {s(S_WAVE)}, {18 if MAP else 10}')
e(f's_sub_u32 {s(SRD_T+2)}, {16384*128}, {s(S_PREV)}')
e(f's_mov_b32 {s(SRD_T+3)}, {s(SRD_M+3)}')
e(f's_add_u32 m0, {s(S_SV)}, {STG}')
e(f'v_and_b32 {v(VN)}, 15, {v(LANE)}')
e(f'v_lshrrev_b32 {v(VG)}, 4, {v(LANE)}')
e(f'v_lshlrev_b32 {v(G16)}, 4, {v(VG)}')
e(f'v_mul_u32_u24 {v(RJ)}, 0x80008, {v(T+2)}')
e(f'v_lshrrev_b32 {v(IDX)}, 3, {v(LANE)}')
e(f'v_add_u32 {v(RJ)}, 0x10000, {v(RJ)}')
e(f'v_cmp_gt_u32 vcc, 32, {v(LANE)}')
e('s_waitcnt lgkmcnt(0)')
stamp(1)
e(f's_add_u32 {s(SRD_M)}, s8, {s(S_T1)}')
e(f's_addc_u32 {s(SRD_M+1)}, s9, 0')
e(f's_mov_b64 {s(SRD_W1,2)}, s[10:11]')
e(MLD(MC))
pst(4, 1)
if OPT['PP']: e('s_setprio 0')
e(f's_add_u32 {s(SRD_T)}, s4, {s(S_PREV)}')
e(f's_addc_u32 {s(SRD_T+1)}, s5, 0')
e(f's_load_dword {s(S_B2)}, s[16:17], 0')
e(f's_cmp_lg_u32 {s(S_WAVE)}, 0')
e('s_cbranch_scc1 P_LJ')
e(f'v_mov_b32 {v(SM)}, s12')
e(f'v_mov_b32 {v(SM+1)}, s13')
e(f'v_mov_b32 {v(SM+2)}, s14')
e(f'v_mov_b32 {v(SM+3)}, s15')
e(f'v_lshlrev_b32 {v(T+4)}, 2, {v(T+2)}')
e(f'v_cndmask_b32 {v(SM)}, {v(SM)}, {v(SM+2)}, vcc')
e(f'v_cndmask_b32 {v(SM+1)}, {v(SM+1)}, {v(SM+3)}, vcc')
e(f'v_add_co_u32 {v(SM)}, vcc, {v(SM)}, {v(T+4)}')
e('s_nop 1')
e(f'v_addc_co_u32 {v(SM+1)}, vcc, 0, {v(SM+1)}, vcc')
e(f'global_load_dword {v(SM)}, {v(SM,2)}, off')
lab('P_LJ')
loads = [f'buffer_load_dwordx4 {v(TT,4)}, {v(V16)}, {s(SRD_T,4)}, {s(S_T2)} offen{POL[OPT["TP"]]}']
loads += [f'buffer_load_dwordx4 {v(WA+(c&1))}, {s(SRD_W1,4)}, {s(S_SV)} offen offset:{1024*c} lds' for c in range(4)]
n0 = len(L)
e(f's_lshl1_add_u32 {s(S_RING)}, {s(S_SV)}, {RING}')
e(f's_mul_i32 {s(S_WGH)}, s2, {WB*25600}')
e(f's_lshl_b32 {s(S_T1)}, {s(S_WAVE)}, 9')
e(f'v_add_u32 {v(ALB)}, {LIST}, {v(IDX)}')
e(f'v_add_u32 {v(ALI)}, {s(S_T1)}, {v(ALB)}')
e(f's_add_u32 {s(S_T0)}, {s(S_T1)}, {LIST}')
for i in range(1, 4): e(f'v_add_u32 {v(RJ+i)}, 0x{0x20002*i:x}, {v(RJ)}')
e(f's_sub_u32 {s(SRD_H)}, s6, 1024')
e(f's_subb_u32 {s(SRD_H+1)}, s7, 0')
e(f's_or_b32 {s(SRD_H+1)}, {s(SRD_H+1)}, 0x800000')
e(f's_movk_i32 {s(SRD_H+2)}, 200')
e(f's_mov_b32 {s(SRD_H+3)}, {s(SRD_M+3)}')
e(f's_movk_i32 {s(S_ONE)}, 0x3f80')
e(f'v_lshrrev_b32 {v(PA)}, 1, {v(V16)}')
e(f'v_and_b32 {v(HB)}, 0x100, {v(PA)}')
e(f'v_mov_b64 {v(FF,2)}, -1')
e(f'v_lshlrev_b32 {v(AO)}, 2, {v(LANE)}')
swz(T+2, IDX)
e(f'v_xor_b32 {v(T+2)}, {v(T+2)}, {v(LANE)}')
e(f'v_and_b32 {v(T+2)}, 7, {v(T+2)}')
e(f'v_mul_u32_u24 {v(TW)}, {TS}, {v(IDX)}')
for r in (IDX+1, IDX+3, IX2+1, IX2+3): e(f'v_lshlrev_b32 {v(r)}, 4, {v(T+2)}')
e(f's_add_u32 {s(SRD_O)}, s18, {s(S_PREV)}')
e(f's_addc_u32 {s(SRD_O+1)}, s19, 0')
e(f's_sub_u32 {s(SRD_O+2)}, {16384*128}, {s(S_PREV)}')
e(f's_mov_b32 {s(SRD_O+3)}, {s(SRD_M+3)}')
e(f's_mov_b32 {s(S_L2E)}, 0x{NL2E:08x}')
e(f's_mov_b32 {s(S_DC)}, 0x{(127-OPT["DS"]) << 23:08x}')
e(f's_mov_b32 {s(S_INV)}, 0x{(127-OPT["BOOST"]) << 23:08x}')
goff(S_PSOFF, S_WAVE, 2, 51200, S_T3)
if OPT['NOMEM']: e(f's_mov_b32 {s(S_PSOFF)}, 0')
else: e(f's_add_u32 {s(S_PSOFF)}, {s(S_PSOFF)}, {s(S_WGH)}')
e(f's_add_u32 {s(S_PS1)}, {s(S_PSOFF)}, 1024')
swz(T+2, VN)
e(f'v_xor_b32 {v(T+2)}, {v(T+2)}, {v(VG)}')
e(f'v_lshl_add_u32 {v(T+2)}, {v(T+2)}, 4, {s(S_RING)}')
e(f'v_lshl_add_u32 {v(AB)}, {v(VN)}, 7, {v(T+2)}')
e(f'v_xor_b32 {v(AB+1)}, 64, {v(AB)}')
e(f'v_and_b32 {v(T+3)}, 3, {v(LANE)}')
e(f'v_bfe_u32 {v(T+2)}, {v(LANE)}, 2, 2')
e(f'v_lshlrev_b32 {v(T+7)}, 3, {v(T+3)}')
e(f'v_lshl_add_u32 {v(T+7)}, {v(T+2)}, 7, {v(T+7)}')
e(f'v_and_b32 {v(T+6)}, 8, {v(LANE)}')
e(f'v_lshlrev_b32 {v(T+6)}, 3, {v(T+6)}')
e(f'v_lshl_add_u32 {v(AT)}, {v(VG)}, 5, {v(T+7)}')
e(f'v_xor_b32 {v(AT)}, {v(AT)}, {v(T+6)}')
e(f'v_add_u32 {v(AT)}, {s(S_RING)}, {v(AT)}')
e(f'v_xor_b32 {v(AT+1)}, 32, {v(AT)}')
e(f's_lshl_b32 {s(S_T1)}, {s(S_WAVE)}, 7')
e(f's_add_u32 {s(S_T1)}, {s(S_T1)}, {SCR}')
e(f'v_lshl_add_u32 {v(ASW)}, {v(T+2)}, 2, {v(VG)}')
e(f'v_lshl_add_u32 {v(ASW)}, {v(ASW)}, 2, {v(T+3)}')
e(f'v_lshl_add_u32 {v(ASW)}, {v(ASW)}, 1, {s(S_T1)}')
e(f'v_lshl_add_u32 {v(ASR)}, {v(VN)}, 3, {s(S_T1)}')
e(f'v_and_b32 {v(T+6)}, 0x60, {v(AO)}')
e(f'v_or_b32 {v(T+6)}, {v(T+6)}, {v(T+7)}')
e(f'v_lshl_add_u32 {v(TR)}, {v(VG)}, 10, {v(T+6)}')
e(f's_mul_i32 {s(S_T1)}, {s(S_WAVE)}, 0x1010')
e(f's_and_b32 {s(S_T1)}, {s(S_T1)}, 0x1060')
e(f'v_xor_b32 {v(TRW)}, {s(S_T1)}, {v(TR)}')
e(f'v_add_u32 {v(TR)}, {STG}, {v(TR)}')
e(f'v_add_u32 {v(TRW)}, {STG}, {v(TRW)}')
for t in range(1, 4): e(f'v_xor_b32 {v(TR+t)}, {32*t}, {v(TR)}')
e(f's_and_b32 {s(S_T3)}, {s(S_WAVE)}, 4')
e(f's_lshl_b32 {s(S_T3)}, {s(S_T3)}, 4')
e(f'v_xor_b32 {v(TRB)}, {s(S_T3)}, {v(TR)}')
e(f'v_xor_b32 {v(TRB+1)}, 32, {v(TRB)}')
e(f's_and_b32 {s(S_T1)}, {s(S_WAVE)}, 3')
e(f's_mul_i32 {s(S_T1)}, {s(S_T1)}, {16*TS}')
e(f's_lshl1_add_u32 {s(S_T1)}, {s(S_T3)}, {s(S_T1)}')
e(f's_add_u32 {s(S_T1)}, {s(S_T1)}, {TAB}')
e(f'v_mul_u32_u24 {v(PB)}, {TS}, {v(VN)}')
e(f'v_add3_u32 {v(PB)}, {v(PB)}, {v(G16)}, {s(S_T1)}')
e(f'v_lshl_add_u32 {v(B1A)}, {s(S_T3)}, 1, {v(G16)}')
e(f's_mul_i32 {s(S_T1)}, {s(S_WAVE)}, {8*TS}')
e(f's_add_u32 {s(S_T1)}, {s(S_T1)}, {TAB}')
e(f'v_and_b32 {v(TF)}, 0x70, {v(V16)}')
e(f'v_add3_u32 {v(TW)}, {v(TW)}, {v(TF)}, {s(S_T1)}')
e(f'v_add_u32 {v(TF)}, {v(TW)}, {v(TF)}')
e(f's_lshl_b32 {s(S_T1)}, {s(S_WAVE)}, 11')
e(f'v_add_u32 {v(WW)}, {s(S_T1)}, {v(V16)}')
tab = 0; st_ = 0
for w in range(NW): tab |= (st_ << 3 | NPAIR[w]) << 8*w; st_ += NPAIR[w]
e(f's_mov_b32 {s(S_TP)}, 0x{tab & 0xffffffff:x}')
e(f's_mov_b32 {s(S_TP+1)}, 0x{tab >> 32:x}')
e(f's_lshl_b32 {s(S_T1)}, {s(S_WAVE)}, 3')
e(f's_lshr_b64 {s(S_TP,2)}, {s(S_TP,2)}, {s(S_T1)}')
e(f's_and_b32 {s(S_NP)}, {s(S_TP)}, 7')
e(f's_bfe_u32 {s(S_P0)}, {s(S_TP)}, 0x50003')
e(f's_lshl1_add_u32 {s(S_P0)}, {s(S_P0)}, 16')
e(f's_mul_i32 {s(S_MO)}, {s(S_P0)}, 400')
fill = L[n0:]; del L[n0:]
pos = {0: [0]*5, 2: [0, 0, 0, len(fill), len(fill)], 3: [0, 0, 0, len(fill)//2, len(fill)//2]}[OPT['SP']]
for i in range(len(fill) + 1):
    for j, ld in enumerate(loads):
        if pos[j] == i: e(ld)
    if i < len(fill): L.append(fill[i])
pst(4, 3)
e(f's_cmp_eq_u32 {s(S_WAVE)}, 0')
e('s_waitcnt vmcnt(6) lgkmcnt(0)')
e('s_cbranch_scc1 P_M0')
e('s_waitcnt vmcnt(5)')
lab('P_M0')
stamp(2)
pst(4, 4)
if OPT['MM'] == 0: more_masks()
e(f's_call_b64 {s(S_RC,2)}, CMP')
e('s_branch P_C')
al()
lab('CMP')
if OPT['C2']:
    def cq(j): return f'v_cmp_eq_u16_sdwa {s(S_BAL+2*j,2)}, {v(MC+j//2)}, {s(S_ONE)} src0_sel:WORD_1 src1_sel:WORD_0' if j & 1 else f'v_cmp_eq_u16_e64 {s(S_BAL+2*j,2)}, {s(S_ONE)}, {v(MC+j//2)}'
    for i in range(4): e(f'v_bcnt_u32_b32 {v(T+7)}, {v(MC+i)}, {v(T+7) if i else 0}')
    e(f'v_add_u32 {v(T+4)}, {s(S_T0)}, {v(PA)}')
    e(f'v_mov_b32 {v(T+6)}, {v(T+7)}')
    e(f'ds_write_b64 {v(T+4)}, {v(FF,2)}')
    for i, d in enumerate(('row_shr:1', 'row_shr:2', 'row_shr:4', 'row_shr:8')):
        e(cq(2*i)); e(cq(2*i+1))
        e(f'v_add_u32_dpp {v(T+6)}, {v(T+6)}, {v(T+6)} {d} row_mask:0xf bank_mask:0xf bound_ctrl:0')
    e('s_nop 1')
    e(f'v_add_u32_dpp {v(T+6)}, {v(T+6)}, {v(T+6)} row_bcast:15 row_mask:0xa bank_mask:0xf')
    e(f'v_sub_u32 {v(T+6)}, {v(T+6)}, {v(T+7)}')
    e(f'v_mul_u32_u24 {v(T+6)}, 9363, {v(T+6)}')
    e(f'v_lshrrev_b32 {v(T+6)}, 16, {v(T+6)}')
    e(f'v_min_u32 {v(T+6)}, 200, {v(T+6)}')
    e(f'v_add3_u32 {v(AD)}, {v(T+6)}, {v(HB)}, {s(S_T0)}')
    e(f'v_readlane_b32 {s(S_T3)}, {v(T+6)}, 31')
    e(f'v_readlane_b32 {s(S_T2)}, {v(T+6)}, 63')
    for j in range(8): e(f'v_addc_co_u32_e64 {v(AD+j+1)}, vcc, 0, {v(AD+j)}, {s(S_BAL+2*j,2)}')
    for j in range(8):
        e(f's_mov_b64 exec, {s(S_BAL+2*j,2)}')
        e(f'ds_write_b8{"_d16_hi" if j & 1 else ""} {v(AD+j)}, {v(RJ+j//2)}')
    e('s_mov_b64 exec, -1')
    e(f'v_sub_u32 {v(T+6)}, {v(AD+8)}, {v(AD)}')
    e(f'v_mul_u32_u24 {v(T+6)}, 7, {v(T+6)}')
    e(f'v_cmp_ne_u32 vcc, {v(T+6)}, {v(T+7)}')
else:
    for j in range(8):
        if j & 1: e(f'v_cmp_eq_u16_sdwa {s(S_BAL+2*j,2)}, {v(MC+j//2)}, {s(S_ONE)} src0_sel:WORD_1 src1_sel:WORD_0')
        else: e(f'v_cmp_eq_u16_e64 {s(S_BAL+2*j,2)}, {s(S_ONE)}, {v(MC+j//2)}')
    e(f'v_lshrrev_b32 {v(T+7)}, 1, {v(V16)}')
    e(f'v_add_u32 {v(T+7)}, {s(S_T0)}, {v(T+7)}')
    e(f'v_mov_b64 {v(T+4,2)}, -1')
    e(f'ds_write_b64 {v(T+7)}, {v(T+4,2)}')
    al()
    for j in range(8):
        e(f'v_mbcnt_lo_u32_b32 {v(T+6)}, {s(S_BAL+2*j)}, {v(T+6) if j else 0}')
        e(f'v_mbcnt_hi_u32_b32 {v(T+6)}, {s(S_BAL+2*j+1)}, {v(T+6)}')
    e(f'v_bcnt_u32_b32 {v(T+7)}, {v(MC)}, 0')
    e(f'v_readlane_b32 {s(S_T3)}, {v(T+6)}, 31')
    e(f'v_readlane_b32 {s(S_T2)}, {v(T+6)}, 63')
    e(f'v_add_u32 {v(T+6)}, {s(S_T0)}, {v(T+6)}')
    e('s_mov_b32 exec_lo, 0')
    e(f's_sub_u32 {s(S_T1)}, 256, {s(S_T3)}')
    e(f'v_add_u32 {v(T+6)}, {s(S_T1)}, {v(T+6)}')
    e('s_mov_b32 exec_lo, -1')
    e(f'v_mad_u32_u24 {v(T+7)}, {v(T+6)}, 7, {v(T+7)}')
    e(f's_sub_u32 {s(S_T2)}, {s(S_T2)}, {s(S_T3)}')
    for j in range(8):
        e(f's_mov_b64 exec, {s(S_BAL+2*j,2)}')
        e(f'ds_write_b8{"_d16_hi" if j & 1 else ""} {v(T+6)}, {v(RJ+j//2)}')
        e(f'v_add_u32 {v(T+6)}, 1, {v(T+6)}')
    e('s_mov_b64 exec, -1')
    for i in range(1, 4): e(f'v_bcnt_u32_b32 {v(T+7)}, {v(MC+i)}, {v(T+7)}')
    e(f'v_mul_u32_u24 {v(T+6)}, 7, {v(T+6)}')
    e(f'v_cmp_ne_u32 vcc, {v(T+6)}, {v(T+7)}')
e(f's_min_u32 {s(S_BAD)}, vcc_lo, 1')
e(f's_min_u32 {s(S_BAD+1)}, vcc_hi, 1')
e(f's_lshl_b64 {s(S_BAD,2)}, {s(S_BAD,2)}, 15')
e(f's_or_b32 {s(S_T1)}, {s(S_T3)}, {s(S_BAD)}')
e(f's_or_b32 {s(S_T2)}, {s(S_T2)}, {s(S_BAD+1)}')
e(f's_setpc_b64 {s(S_RC,2)}')

lab('P_C')
pst(4, 5)
tile_fill(0)
pst(4, 6)
e(f's_lshl_b32 {s(S_B2)}, {s(S_B2)}, 16')
e(f's_cmp_lg_u32 {s(S_WAVE)}, 0')
e('s_waitcnt vmcnt(8)')
e('s_cbranch_scc1 P_SW_J')
e(f'v_lshlrev_b32 {v(SM+2)}, 16, {v(SM)}')
e(f'v_and_b32 {v(SM+3)}, 0xffff0000, {v(SM)}')
e(f'v_mov_b32 {v(T+4)}, -1')
e(f'v_mov_b32 {v(T+5)}, 0')
e(f'v_mov_b32 {v(T+6)}, 0x{VIRT:x}')
e(f'v_lshrrev_b32 {v(T)}, 1, {v(V16)}')
e(f'ds_write2st64_b32 {v(AO)}, {v(T+4)}, {v(T+5)} offset0:{FFB//256} offset1:{DESC//256}')
e('s_mov_b32 exec_hi, 0')
e(f'v_max3_f32 {v(T+2)}, abs({v(SM+2)}), abs({v(SM+3)}), abs({s(S_B2)})')
e(f'v_ldexp_f32 {v(SM+2)}, {v(SM+2)}, {OPT["BOOST"]}')
e(f'v_ldexp_f32 {v(SM+3)}, {v(SM+3)}, {OPT["BOOST"]}')
e(f'v_cmp_le_f32 vcc, 0x{(127+16-OPT["BOOST"]) << 23:08x}, {v(T+2)}')
e('s_mov_b32 exec_lo, 0x55')
e(f'v_mul_f32 {v(SM+2)}, {s(S_DC)}, {v(SM+2)}')
e(f'v_mul_f32 {v(SM+3)}, {s(S_DC)}, {v(SM+3)}')
e('s_mov_b32 exec_lo, -1')
if H: e(f'ds_write_b32 {v(AO)}, {v(T+5)} offset:{DESC + 4*NBW}')
e(f'ds_write_b32 {v(AO)}, {v(T+6)} offset:{DESC + 4*(NBW+H)}')
e('s_mov_b32 exec_hi, -1')
e(f's_movk_i32 {s(S_T0)}, 0x3ff')
e('s_cmp_lg_u64 vcc, 0')
e(f's_cmovk_i32 {s(S_T0)}, 0x207')
e(f'v_mov_b32 {v(T+6)}, {DESC + 4*NW}')
e(f'v_mov_b32 {v(T+7)}, {s(S_T0)}')
e(f'ds_write_b64 {v(T)}, {v(SM+2,2)} offset:{W2T}')
e(f'ds_write_b64 {v(T+5)}, {v(T+6,2)} offset:{TKT}')
lab('P_SW_J')
for i in range(2): e(f'ds_write_b128 {v(TW)}, {v(TT,4)} offset:{256+128*i}')
def ttab(r):
    for i in range(4):
        e(f'v_lshlrev_b32 {v(r+2*i)}, 16, {v(TT+i)}')
        e(f'v_and_b32 {v(r+2*i+1)}, 0xffff0000, {v(TT+i)}')
    for i in range(8): e(f'v_mul_f32 {v(r+i)}, {s(S_L2E)}, {v(r+i)}')
if not OPT['P2']:
    ttab(D)
    for i in range(2): e(f'ds_write_b128 {v(TF)}, {v(D+4*i,4)} offset:{16*i}')
pst(4, 2)
e(f's_waitcnt vmcnt(4) lgkmcnt({0 if OPT["P2"] else 2})')
stamp(3)
e('s_barrier')
stamp(4)
pst(3, 1); pst(4, 7)
q = LQ()
def trw(dst, a, ch, jh, tag=None): q.op(f'ds_read_b64_tr_b16 {v(dst,2)}, {v(a)} offset:{ch*4096 + 512*jh}', tag)
for m in range(2):
    for jh in range(2): trw(AC + 4*m + 2*jh, TRW, 4*m, jh)
for sx in range(2): q.op(f'ds_read_b128 {v(TB+4*sx,4)}, {v(PB)} offset:{256+64*sx}', 'ac')
for tl in range(2): q.op(f'ds_read_b128 {v(D+4*tl,4)}, {v(B1A)} offset:{B1T+64*tl}')
for grp in range(4):
    for tl in range(2):
        for jh in range(2): trw(WD + 32 + (grp*2+tl)*4 + 2*jh, TRB+tl, 2+grp, jh, ('b', grp))
pst(3, 2)
if OPT['MM'] == 1: more_masks()
desc(S_CUR, S_T1, 0, LP_)
e(f's_sub_u32 {s(S_PC)}, {s(S_T3)}, {LP_}')
desc(S_SV, S_T2, 1, 2)
if OPT['P2']: ttab(WD+16)
q.wait('ac')
for i in range(4):
    e(f'v_lshlrev_b32 {v(WD+2*i)}, 16, {v(AC+i)}')
    e(f'v_and_b32 {v(WD+2*i+1)}, 0xffff0000, {v(AC+i)}')
    e(f'v_lshlrev_b32 {v(WD+8+2*i)}, 16, {v(AC+4+i)}')
    e(f'v_and_b32 {v(WD+8+2*i+1)}, 0xffff0000, {v(AC+4+i)}')
for i in range(8): e(f'v_xor_b32 {v(TB+8+i)}, 0x80008000, {v(TB+i)}')
for grp in range(4):
    q.wait(('b', grp))
    for tl in range(2): e(M16(D+4*tl, WD+32+(grp*2+tl)*4, TB+4*grp, D+4*tl))
    for i in range(2): e(f'v_add_f32 {v(D+8+2*grp+i)}, {v(WD+2*grp+i)}, {v(WD+8+2*grp+i)}')
def wd_reads():
    for t in range(4):
        for sx in range(2):
            for jh in range(2): trw(WE + (t*2+sx)*4 + 2*jh, TR+t, 6+sx, jh, ('d', t))
def w2_reads():
    for t in range(4): q.op(f'ds_read_b128 {v(W2+4*t,4)}, {v(G16)} offset:{W2T+64*t}')
def unpack(a, b):
    for i in range(a, b):
        e(f'v_lshlrev_b32 {v(WD+2*i)}, 16, {v(WE+i)}')
        e(f'v_and_b32 {v(WD+2*i+1)}, 0xffff0000, {v(WE+i)}')
if not OPT['P3']: wd_reads()
if OPT['MM'] == 2: more_masks()
for i in range(8): e(f'v_mul_f32 {v(D+8+i)}, {s(S_L2E)}, {v(D+8+i)}')
for i in range(2): q.op(f'ds_write_b128 {v(WW)}, {v(D+8+4*i,4)} offset:{WAC+1024*i}')
for i in range(8): e(f'v_mul_f32 {v(D+i)}, {s(S_L2E)}, {v(D+i)}')
for tl in range(2): q.op(f'ds_write_b128 {v(PB)}, {v(D+4*tl,4)} offset:{256+64*tl}')
if OPT['P2']:
    for i in range(2): q.op(f'ds_write_b128 {v(TF)}, {v(WD+16+4*i,4)} offset:{16*i}')
pst(3, 3)
if not OPT['P3']: w2_reads()
q.op(f'ds_read_b32 {v(JUNK)}, {v(G16)} offset:{SCC_}')
e(f's_lshl2_add_u32 {s(S_T0)}, {s(S_WAVE)}, {DESC + 4*NW}')
e(f'v_mov_b32 {v(TK)}, {s(S_T0)}')
e(f'v_mov_b32 {v(TD)}, {s(S_SV)}')
q.op(f'ds_write_b32 {v(TK)}, {v(TD)}')
if OPT['MM'] == 3: more_masks()
pst(3, 4)
e(f'v_ldexp_f32 {v(T+2)}, {s(S_B2)}, {OPT["BOOST"]-2}')
e(f'v_add_u32 {v(AO)}, {OUT}, {v(AO)}')
for i in range(4): e(f'v_mov_b64 {v(B3+8+2*i,2)}, 0')
e(f'v_readfirstlane_b32 {s(S_B2Q)}, {v(T+2)}')
if not OPT['P3']:
    q.wait(('d', 1))
    unpack(0, 16)
if OPT['T1'] == 0: tile_fill(1)
def inits():
    e(f'v_add_u32 {v(ALI)}, {16*(LP_-1)}, {v(ALI)}')
    e(f's_mov_b64 {s(S_Q,2)}, 0')
    e(f's_mov_b32 {s(S_QN)}, 0')
    e(f's_movk_i32 {s(S_PREV)}, 0x1040')
    e(f's_mov_b32 {s(S_K)}, 3')
    e(f's_mov_b32 {s(S_M)}, {3 if OPT["STAMP"] else 0}')
    e(f's_mov_b32 {s(S_PS)}, 0')
    e(f'v_mov_b64 {v(T,2)}, 0')
    e(f'v_mov_b32 {v(T+2)}, 1.0')
    e(f'v_mov_b32 {v(T+3)}, 1.0')
if OPT['P2']:
    tile_fill(1, 1)
    inits()
e('s_waitcnt lgkmcnt(0)')
e('s_barrier')
pst(3, 5)
e(f'v_readfirstlane_b32 {s(S_CLS)}, {v(JUNK)}')
if OPT['T1'] == 1: tile_fill(1, 2 if OPT['P2'] else 3)
e(f's_cmp_eq_u32 {s(S_NP)}, 0')
e('s_cbranch_scc1 P_GO')
if OPT['LP']: e(f's_setprio {OPT["LP"]}')
e(f's_lshl_b32 {s(S_T0)}, {s(S_P0)}, 8')
e(f's_add_u32 {s(S_T0)}, {s(S_T0)}, {LIST}')
e(f's_waitcnt vmcnt({2*(LP_-2)})')
for i in range(max(NPAIR)):
    if i:
        e(f's_cmp_le_u32 {s(S_NP)}, {i}')
        e('s_cbranch_scc1 LATE_D')
        e(f's_add_u32 {s(S_T0)}, {s(S_T0)}, 512')
    for j in range(2): e(f'v_mov_b64 {v(MC+2*j,2)}, {v(X+4*i+2*j,2)}')
    e(f's_call_b64 {s(S_RC,2)}, CMP')
    e(f'v_writelane_b32 {v(CV)}, {s(S_T1)}, {2*i}')
    e(f'v_writelane_b32 {v(CV)}, {s(S_T2)}, {2*i+1}')
lab('LATE_D')
e(f'v_add_u32 {v(T+4)}, {s(S_P0)}, {v(LANE)}')
e(f's_lshl_b32 {s(S_T0)}, {s(S_NP)}, 1')
e(f'v_and_b32 {v(T+5)}, 0xff, {v(CV)}')
e(f'v_add_u32 {v(T+5)}, 15, {v(T+5)}')
e(f'v_lshrrev_b32 {v(CV)}, 8, {v(CV)}')
if OPT['XM']:
    assert H == 0
    e(f'v_and_b32 {v(T+6)}, 15, {v(T+5)}')
    e(f'v_lshl_or_b32 {v(CV)}, {v(T+6)}, 12, {v(CV)}')
e(f'v_lshrrev_b32 {v(T+5)}, 4, {v(T+5)}')
e(f'v_max_u32 {v(T+5)}, 2, {v(T+5)}')
e(f'v_or_b32 {v(CV)}, {v(CV)}, {v(T+4)}')
e(f'v_cmp_gt_u32 vcc, {NS}, {v(T+4)}')
e(f'v_lshl_or_b32 {v(T+6)}, {v(T+5)}, 8, {v(CV)}')
e(f'v_lshlrev_b32 {v(T+4)}, 2, {v(T+4)}')
e(f's_bfm_b64 {s(S_TP,2)}, {s(S_T0)}, 0')
e(f's_and_b64 exec, {s(S_TP,2)}, vcc')
e(f'ds_write_b32 {v(T+4)}, {v(T+6)} offset:{DESC}')
if H:
    e(f's_andn2_b64 exec, {s(S_TP,2)}, vcc')
    e(f'v_max_u32 {v(T+5)}, 4, {v(T+5)}')
    e(f'v_add_u32 {v(T+6)}, 1, {v(T+5)}')
    e(f'v_lshrrev_b32 {v(T+6)}, 1, {v(T+6)}')
    e(f'v_sub_u32 {v(T+5)}, {v(T+5)}, {v(T+6)}')
    e(f'v_lshl_or_b32 {v(T+7)}, {v(T+6)}, 4, {v(T+5)}')
    e(f'v_cmp_lt_u32 vcc, 0x7f, {v(CV)}')
    e(f'v_mov_b32 {v(T+5)}, 0xe2')
    e(f'v_lshl_or_b32 {v(T+6)}, {v(T+6)}, 8, {v(CV)}')
    e(f'v_cndmask_b32 {v(T+7)}, {v(T+7)}, {v(T+5)}, vcc')
    e(f'v_and_b32 {v(CV)}, 0x3f, {v(CV)}')
    e(f'v_lshl_or_b32 {v(T+7)}, {v(T+7)}, 8, {v(CV)}')
    e(f'v_lshlrev_b32 {v(T+4)}, 1, {v(T+4)}')
    e(f'ds_write_b64 {v(T+4)}, {v(T+6,2)} offset:{DESC - 4*NS}')
e('s_mov_b64 exec, -1')
if OPT['LP']: e('s_setprio 0')
lab('P_GO')
if OPT['P3']:
    q = LQ()
    wd_reads()
    for t in range(4):
        q.wait(('d', t))
        if t == 3:
            wr_reads()
            w2_reads()
        unpack(8*t, 8*t+8)
else:
    wr_reads()
    unpack(16, 32)
if not OPT['P2']: inits()
for i in range(2): e(f'v_mov_b64 {v(O+2*i,2)}, 0')
e(f's_sub_u32 {s(S_PC)}, {s(S_PC)}, 2')
e('s_cbranch_scc1 DRAW_P')
lab('DRET_P')
if PX:
    e(f'v_mov_b32 {v(TD)}, {v(ALI)}')
    e(f'v_mov_b32 {v(ALI)}, {FFB}')
    e(f's_lshl_b32 {s(S_MO)}, {s(S_PC)}, 1')
    e(f's_or_b32 {s(S_MO)}, {s(S_MO)}, {s(S_PS)}')
    e(f's_mov_b32 {s(S_P0)}, {s(S_RING)}')
    e(f's_mov_b32 {s(S_RING)}, {DUM - 3*2048}')
    e(f's_mov_b32 {s(S_PC)}, 1')
    e(f's_mov_b32 {s(S_PS)}, 2')
    assert OPT['TS_'] and LA == 3
pst(3, 6)
if not OPT['SK']:
    e(f's_waitcnt vmcnt({2*(LP_-1)})')
    for sx in range(2): e(f'ds_read_b128 {v(B+4*sx,4)}, {v(AB+sx)}')
e('s_branch BPF')
if OPT['STAMP']:
    lab('P_END')
    e(f's_mov_b32 {s(S_M)}, 0')
    pst(3, 7)
    stamp(5)

def chain():
    el = lambda k: v(D+2*k, 2); ww = lambda k: v(W2+2*k, 2)
    N = v(T, 2); Dn = v(T+2, 2)
    al()
    e(f'v_pk_fma_f32 {Dn}, {el(0)}, {s(S_DC,2)}, {s(S_DC,2)} op_sel_hi:[1,0,0]')
    e(f'v_pk_fma_f32 {N}, {ww(0)}, {el(1)}, {ww(0)}')
    e(f'v_pk_fma_f32 {N}, {ww(1)}, {Dn}, {N}')
    e(f'v_pk_fma_f32 {Dn}, {el(1)}, {Dn}, {Dn}')
    for k in range(2, 8):
        e(f'v_pk_fma_f32 {N}, {el(k)}, {N}, {N}')
        e(f'v_pk_fma_f32 {N}, {ww(k)}, {Dn}, {N}')
        e(f'v_pk_fma_f32 {Dn}, {el(k)}, {Dn}, {Dn}')
A3R = f'ds_read_b64 {v(A3,2)}, {v(ASR)}'
SCW = f'ds_write_b16 {v(ASW)}, {v(T)}'
def PM(par, qq): return f'v_mfma_f32_4x4x4_16b_bf16 {v(O,4)}, {v(A3,2)}, {v(B3+8*par+2*qq,2)}, {v(O,4)} cbsz:4 abid:{qq}'
TAIL = [[f'v_rcp_f32 {v(T+2)}, {v(T+2)}'], [f'v_rcp_f32 {v(T+3)}, {v(T+3)}'],
        [f'v_fma_f32 {v(T)}, {v(T)}, {v(T+2)}, {s(S_B2Q)}', f'v_fmac_f32 {v(T)}, {v(T+1)}, {v(T+3)}'],
        [f'v_cvt_pk_bf16_f32 {v(T)}, {v(T)}, {v(T)}']]
def draw():
    e('s_mov_b64 exec, 1')
    e(f'v_mov_b32 {v(TK)}, 4')
    e(f'ds_add_rtn_u32 {v(TK)}, {v(V16)}, {v(TK)} offset:{TKT}')
    e('s_mov_b64 exec, -1')
def dispatch(pre, add):
    for u in range(3):
        e(f's_cmp_eq_u32 {s(S_K)}, {u}')
        e(f's_cbranch_scc1 {pre}_{(u+add)%4}')
    e(f's_branch {pre}_{(3+add)%4}')

def unit(u):
    par = u & 1
    if OPT['SX']: sc = [M0S((u+LA)%4, 0), f's_mov_b32 {s(S_K)}, {u}', f's_sub_u32 {s(S_PC)}, {s(S_PC)}, 1', 's_cbranch_scc1 PEV', SCW, A3R, f's_sub_u32 {s(S_CC)}, {s(S_CC)}, 1', f's_waitcnt vmcnt({VW})']
    else: sc = [M0S((u+LA)%4, 0), f's_mov_b32 {s(S_K)}, {u}', f's_sub_u32 {s(S_PC)}, {s(S_PC)}, 1', 's_cbranch_scc1 PEV', None, None, f's_sub_u32 {s(S_CC)}, {s(S_CC)}, 1', f's_waitcnt vmcnt({VW})']
    va = TAIL + [[EX(i)] for i in range(4)]
    LW = OPT['LW']
    if LW == 1: sc[7] = None
    if OPT['SK']:
        assert LW != 1 and not OPT['SX'] and LA == 3 and not PX
        sc[5:8] = [sc[6], f's_cselect_b64 vcc, {s(S_CM,2)}, 0', f's_cbranch_vccnz NW_{u}']
    def brd():
        for sx in range(2): e(f'ds_read_b128 {v(B+4*sx,4)}, {v(AB+sx)} offset:{((u+1)%4)*2048}')
    for i in range(8):
        e(MM1(i >> 1, i & 1))
        if sc[i]: e(sc[i])
        if i == 7 and OPT['SK']:
            e(f's_waitcnt vmcnt({VW})')
            lab(f'NW_{u}')
        if i == 3:
            e(f'v_add_u32 {v(ALI)}, 16, {v(ALI)}')
            lab(f'RET_{u}')
        for x in va[i]: e(x)
    if not OPT['SX']: e(SCW); e(A3R)
    for qq in range(4): e(f'ds_read_b64_tr_b16 {v(B3+8*par+2*qq,2)}, {v(AT+(qq&1))} offset:{u*2048+512*qq}')
    e(IDXR(IDX, 0)); e(IDXR(IDX+2, 8))
    if not OPT['TS_']: e(f'ds_read_b32 {v(TD)}, {v(TK)}')
    if LW != 1: brd()
    n0 = 4 if OPT['SX'] else 8
    for i in range(4, n0): e(EX(i))
    e(f's_waitcnt lgkmcnt({(7 if LW == 1 else 9) - OPT["TS_"]})')
    for qq in range(4):
        e(PM(1-par, qq)); e(EX(n0+2*qq)); e(EX(n0+1+2*qq))
    for i in range(n0+8, 16): e(EX(i))
    if LW:
        e('s_waitcnt lgkmcnt(0)')
        e(DMA(IDX, 0))
        e(DMA(IDX+2, 1))
        if LW == 1:
            e(f's_waitcnt vmcnt({VW})')
            brd()
    if OPT['XM']: e(f's_cselect_b64 exec, {s(S_EX,2)}, -1')
    HI()
    chain()
    LO()
    if OPT['XM']: e('s_mov_b64 exec, -1')
    if LW != 2: e('s_waitcnt lgkmcnt(0)')
    if not LW:
        e(DMA(IDX, 0))
        e(DMA(IDX+2, 1))

INLOOP[0] = 1
for u in range(4):
    lab(f'U_{u}')
    if u & 1 == 0: bstamp()
    unit(u)
    e('s_cbranch_scc1 CEV' if u < 3 else 's_cbranch_scc0 U_0')
INLOOP[0] = 2
lab('CEV')
e(f's_cmp_eq_u32 {s(S_CS)}, 0')
e('s_cbranch_scc1 EPI')
e(f's_mov_b32 {s(S_PREV)}, {s(S_CUR)}')
e(f's_and_b32 {s(S_CUR)}, {s(S_Q)}, 0xffff')
e(f's_lshr_b64 {s(S_Q,2)}, {s(S_Q,2)}, 16')
e(f's_sub_u32 {s(S_QN)}, {s(S_QN)}, 16')
e(f's_bitcmp1_b32 {s(S_CUR)}, 6')
e('s_cbranch_scc1 DRAIN')
lab('BPF')
q = LQ()
e(f's_and_b32 {s(S_T1)}, {s(S_CUR)}, 63')
e(f's_mul_i32 {s(S_T1)}, {s(S_T1)}, {TS}')
e(f's_add_u32 {s(S_T1)}, {s(S_T1)}, {TAB}')
e(f'v_lshl_add_u32 {v(T+6)}, {v(G16)}, 1, {s(S_T1)}')
e(f'v_add_u32 {v(T+7)}, {s(S_T1)}, {v(G16)}')
for jh in range(2): q.op(f'ds_read_b128 {v(D+4*jh,4)}, {v(T+6)} offset:{jh*16}', 't0')
for jh in range(2): q.op(f'ds_read_b128 {v(CB+8+4*jh,4)}, {v(V16)} offset:{WAC+(12+jh)*1024}')
for jh in range(2): q.op(f'ds_read_b128 {v(D+8+4*jh,4)}, {v(T+6)} offset:{128+jh*16}')
e(f's_mov_b32 {s(S_CC)}, 0')
e(f's_mov_b32 {s(S_CS)}, 0')
if OPT['SK']:
    e(f's_mov_b64 {s(S_CM,2)}, 0')
    e(f's_add_u32 {s(S_T0)}, {s(S_K)}, 1')
    e(f's_and_b32 {s(S_T0)}, {s(S_T0)}, 3')
    e(f'v_lshl_add_u32 {v(T+4)}, {s(S_T0)}, 11, {v(AB)}')
    e(f'v_xor_b32 {v(T+6)}, 64, {v(T+4)}')
if OPT['XM']: e(f's_mov_b64 {s(S_EX,2)}, -1')
e(f's_cmp_lg_u32 {s(S_M)}, 0')
q.wait('t0')
for c in (0, 2, 4, 6, 1, 3, 5, 7):
    x = CB + 8 if c == 6 else D if c & 1 else CB
    if c == 6: e('s_waitcnt lgkmcnt(0)')
    if c in (0, 6): al()
    for p in range(4): e(f'v_pk_fma_f32 {v(x+2*p,2)}, {v(WD+c*8+2*p,2)}, {v(D+8*(c&1)+2*p,2)}, {v(WRF(c)+2*p,2)}')
    for p in range(4): e(f'v_cvt_pk_bf16_f32 {v(WE+c*4+p)}, {v(x+2*p)}, {v(x+2*p+1)}')
    if c == 6:
        for t in range(4): e(f'ds_read_b128 {v(CB+4*t,4)}, {v(T+7)} offset:{256+64*t}')
    if c == OPT['SKP'] and OPT['SK']:
        e('s_waitcnt vmcnt(4)')
        for sx in range(2): e(f'ds_read_b128 {v(B+4*sx,4)}, {v(T+4+2*sx)}')
        al()
e('s_waitcnt lgkmcnt(0)')
e('s_cbranch_scc1 BP_X')
lab('NEXT')
dispatch('U', 1)
lab('EPI')
e(f's_and_b32 {s(S_T0)}, {s(S_PREV)}, 0x7f')
if H:
    e(f's_cmpk_ge_u32 {s(S_PREV)}, 0x1000')
    e(f's_cselect_b32 {s(S_T1)}, {H}, 0')
    e(f's_add_u32 {s(S_T0)}, {s(S_T0)}, {s(S_T1)}')
e(f'v_pk_add_f32 {v(T+4,2)}, {v(O,2)}, {v(O+2,2)}')
e(f'v_add_f32 {v(T+4)}, {v(T+4)}, {v(T+5)}')
e(f'v_lshl_add_u32 {v(T+5)}, {s(S_T0)}, 8, {v(AO)}')
e(f'v_mul_f32 {v(T+4)}, {s(S_INV)}, {v(T+4)}')
e(f's_bitcmp1_b32 {s(S_PREV)}, 7')
e(f'v_cmp_class_f32_e64 vcc, {v(T+4)}, {s(S_CLS)}')
for i in range(2): e(f'v_mov_b64 {v(O+2*i,2)}, 0')
e(f'ds_write_b32 {v(T+5)}, {v(T+4)}')
if OPT['FSLOW']: e('s_branch SLOW')
e('s_cbranch_scc1 SLOW')
e('s_cbranch_vccnz SLOW')
lab('EPI_R')
e(f's_bitcmp1_b32 {s(S_CUR)}, 6')
e('s_cbranch_scc1 L_DONE')
lab('EPI_C')
e(f's_bfe_u32 {s(S_CC)}, {s(S_CUR)}, 0x40008')
e(f's_sub_u32 {s(S_CC)}, {s(S_CC)}, 2')
e(f's_mov_b32 {s(S_CS)}, 1')
if OPT['SK']: e(f's_mov_b64 {s(S_CM,2)}, -1')
if OPT['XM']:
    e(f's_lshr_b32 {s(S_T0)}, {s(S_CUR)}, 12')
    e(f's_lshl_b32 {s(S_EX)}, 0x20002, {s(S_T0)}')
    e(f's_sub_u32 {s(S_EX)}, {s(S_EX)}, 0x10001')
    e(f's_mov_b32 {s(S_EX+1)}, {s(S_EX)}')
dispatch('U', 1)
lab('PEV')
e(f's_cmp_eq_u32 {s(S_PS)}, 0')
e('s_cbranch_scc1 P_DR')
if PX:
    e(f's_cmp_eq_u32 {s(S_PS)}, 2')
    e('s_cbranch_scc1 P_FIX')
if OPT['TS_']:
    e(f'ds_read_b32 {v(TD)}, {v(TK)}')
    e('s_waitcnt lgkmcnt(0)')
lab('ADV')
e(f'v_readfirstlane_b32 {s(S_TP)}, {v(TD)}')
e(f's_mov_b32 {s(S_TP+1)}, 0')
e(f's_and_b32 {s(S_T0)}, {s(S_TP)}, 63')
e(f's_bfe_u32 {s(S_PC)}, {s(S_TP)}, 0x40008')
e('s_cbranch_scc0 AW')
if OPT['SMODE'] == 4:
    e(f's_cmp_lg_u32 {s(S_T0)}, {OPT["SEL"]}')
    e('s_cbranch_scc1 L_MS')
    e(f's_memrealtime {s(S_ST+2,2)}')
    e('s_waitcnt lgkmcnt(0)')
    lab('L_MS')
goff(S_PSOFF, S_T0, 3, 25600, S_T1)
if H:
    e(f's_lshr_b32 {s(S_T1)}, {s(S_TP)}, 12')
    e(f's_lshl4_add_u32 {s(S_T0)}, {s(S_T0)}, {s(S_T1)}')
    e(f'v_lshl_add_u32 {v(ALI)}, {s(S_T0)}, 4, {v(ALB)}')
else: e(f'v_lshl_add_u32 {v(ALI)}, {s(S_T0)}, 8, {v(ALB)}')
if OPT['NOMEM']: e(f's_mov_b32 {s(S_PSOFF)}, 0')
else: e(f's_add_u32 {s(S_PSOFF)}, {s(S_PSOFF)}, {s(S_WGH)}')
e(f's_add_u32 {s(S_PS1)}, {s(S_PSOFF)}, 1024')
e(f's_lshl_b64 {s(S_BAD,2)}, {s(S_TP,2)}, {s(S_QN)}')
e(f's_or_b64 {s(S_Q,2)}, {s(S_Q,2)}, {s(S_BAD,2)}')
e(f's_add_u32 {s(S_QN)}, {s(S_QN)}, 16')
e(f's_mov_b32 {s(S_PS)}, 0')
e(f's_sub_u32 {s(S_PC)}, {s(S_PC)}, 3')
e('s_cbranch_scc1 P_2')
lab('P_RET')
dispatch('RET', 0)
lab('P_DR')
e(f'v_add_u32 {v(ALI)}, 16, {v(ALI)}')
lab('P_D2')
draw()
e(f's_mov_b32 {s(S_PC)}, 1')
e(f's_mov_b32 {s(S_PS)}, 1')
dispatch('RET', 0)
lab('P_2')
e(f's_bitcmp1_b32 {s(S_TP)}, 6')
e('s_cbranch_scc0 P_D2')
e(f'v_mov_b32 {v(ALI)}, {FFB}')
e(f's_movk_i32 {s(S_PC)}, 0x100')
e('s_branch P_RET')
lab('DRAIN')
for x in sum(TAIL, []): e(x)
e(f's_bitcmp1_b32 {s(S_K)}, 0')
e(SCW); e(A3R)
e('s_waitcnt lgkmcnt(0)')
e('s_cbranch_scc1 DRAIN1')
for par in range(2):
    if par: lab('DRAIN1')
    for qq in range(4):
        e(PM(par, qq)); e('s_nop 1' if qq < 3 else 's_nop 2')
    e('s_branch EPI')

INLOOP[0] = False
lab('L_DONE')
stamp(6)
e(f's_lshl_b32 {s(S_T0)}, {s(S_WAVE)}, 11')
e(f's_add_u32 {s(S_T0)}, {s(S_T0)}, {OUT}')
e(f'v_lshl_add_u32 {v(T)}, {v(V16)}, 1, {s(S_T0)}')
e(f's_lshl_b32 {s(S_T0)}, {s(S_WAVE)}, {18 if MAP else 10}')
e('s_waitcnt lgkmcnt(0)')
e('s_barrier')
for i in range(2): e(f'ds_read_b128 {v(D+4*i,4)}, {v(T)} offset:{16*i}')
if H:
    e(f'v_cmp_le_u32 vcc, {OUT + NS*256}, {v(T)}')
    e('s_and_b64 exec, exec, vcc')
    e('s_cbranch_execz L_ST')
    for i in range(2): e(f'ds_read_b128 {v(D+8+4*i,4)}, {v(T)} offset:{H*256+16*i}')
    e('s_waitcnt lgkmcnt(0)')
    for i in range(4): e(f'v_pk_add_f32 {v(D+2*i,2)}, {v(D+2*i,2)}, {v(D+8+2*i,2)}')
    lab('L_ST')
    e('s_mov_b64 exec, -1')
e('s_waitcnt lgkmcnt(0)')
for p in range(4): e(f'v_cvt_pk_bf16_f32 {v(B+p)}, {v(D+2*p)}, {v(D+2*p+1)}')
e(f'buffer_store_dwordx4 {v(B,4)}, {v(V16)}, {s(SRD_O,4)}, {s(S_T0)} offen{POL[OPT["STP"]]}')
lab('L_FIN')
if OPT['STAMP']:
    e('s_waitcnt vmcnt(0)')
    stamp(7)
    if OPT['STAMP'] == 7:
        e(f's_sub_u32 {s(S_T0)}, {s(S_ST+2*(1 if OPT["SMODE"] == 4 else OPT["SEL"]))}, {s(S_ST)}')
        e(f's_lshl_b32 {s(S_T0)}, {s(S_T0)}, {1 if OPT["SMODE"] == 4 else 2}')
        if OPT['SMODE'] == 1:
            e(f's_sub_u32 {s(S_T0)}, {s(S_ST+8)}, {s(S_ST+6)}')
            e(f's_lshr_b32 {s(S_T0)}, {s(S_T0)}, 4')
        if OPT['SMODE'] == 2:
            e(f's_sub_u32 {s(S_T0)}, {s(S_ST+12)}, {s(S_ST+10)}')
        if OPT['SMODE'] == 3:
            e(f's_sub_u32 {s(S_T0)}, {s(S_ST+14)}, {s(S_ST)}')
            e(f's_lshl_b32 {s(S_T0)}, {s(S_T0)}, 1')
        if OPT['SELW'] >= 0:
            e(f's_cmp_eq_u32 {s(S_WAVE)}, {OPT["SELW"]}')
            e(f's_cselect_b32 {s(S_T0)}, {s(S_T0)}, 0')
        if OPT['SELG'] >= 0:
            e(f's_cmp_eq_u32 s2, {OPT["SELG"]}')
            e(f's_cselect_b32 {s(S_T0)}, {s(S_T0)}, 0')
        e(f's_add_u32 {s(S_T0)}, {s(S_T0)}, {OPT["SPIN"]}')
        lab('L_SPIN')
        e('s_sleep 1')
        e('s_memrealtime s[4:5]')
        e('s_waitcnt lgkmcnt(0)')
        e(f's_sub_u32 {s(S_T1)}, s4, {s(S_ST)}')
        e(f's_cmp_lt_u32 {s(S_T1)}, {s(S_T0)}')
        e('s_cbranch_scc1 L_SPIN')
    else:
        e('s_load_dwordx2 s[4:5], s[0:1], 72')
        e('s_waitcnt lgkmcnt(0)')
        e('s_mov_b32 s6, 0x1000000')
        e('s_mov_b32 s7, 0x20000')
        e(f's_mul_i32 {s(S_T0)}, s2, {NW}')
        e(f's_add_u32 {s(S_T0)}, {s(S_T0)}, {s(S_WAVE)}')
        if OPT['STAMP'] == 8:
            e(f's_lshl_b32 {s(S_T0)}, {s(S_T0)}, 8')
            e(f'v_lshrrev_b32 {v(T)}, 2, {v(V16)}')
            e(f'buffer_store_dword {v(TSV)}, {v(T)}, s[4:7], {s(S_T0)} offen')
        else:
            e(f's_lshl_b32 {s(S_T0)}, {s(S_T0)}, 5')
            e(f'v_mov_b32 {v(T+1)}, {s(S_T0)}')
            for i in range(8):
                e(f'v_mov_b32 {v(T)}, {s(S_ST+2*i)}')
                e(f'buffer_store_dword {v(T)}, {v(T+1)}, s[4:7], 0 offen offset:{4*i}')
e('s_endpgm')

lab('AW')
e('s_sleep 1')
e(f'ds_read_b32 {v(TD)}, {v(TK)}')
e('s_waitcnt lgkmcnt(0)')
e('s_branch ADV')
lab('DRAW_P')
draw()
e(f's_add_u32 {s(S_PC)}, {s(S_PC)}, 2')
e(f's_mov_b32 {s(S_PS)}, 1')
if not OPT['TS_']:
    e('s_waitcnt lgkmcnt(0)')
    e(f'ds_read_b32 {v(TD)}, {v(TK)}')
e('s_branch DRET_P')
if PX:
    lab('P_FIX')
    e(f's_mov_b32 {s(S_RING)}, {s(S_P0)}')
    e(f's_mov_b32 m0, {s(S_RING)}')
    e(f'v_mov_b32 {v(ALI)}, {v(TD)}')
    e(f's_and_b32 {s(S_PS)}, {s(S_MO)}, 1')
    e(f's_lshr_b32 {s(S_PC)}, {s(S_MO)}, 1')
    e(f's_sub_u32 {s(S_PC)}, {s(S_PC)}, 1')
    e('s_cbranch_scc1 PEV')
    e(f'v_add_u32 {v(ALI)}, 16, {v(ALI)}')
    e('s_branch RET_1')
lab('BP_X')
if OPT['STAMP']:
    e(f's_cmp_eq_u32 {s(S_M)}, 3')
    e('s_cbranch_scc1 P_END')
e(f's_cmp_eq_u32 {s(S_M)}, 1')
e(f's_mov_b32 {s(S_M)}, 0')
e('s_cbranch_scc1 SLOW_W')
e('s_branch EPI_C')

lab('SLOW')
ACC = WR; BS_ = WR + 16; Y = WR + 24; Z = WR + 28; WX = WR + 32
e(f's_bitcmp1_b32 {s(S_PREV)}, 6')
e('s_cbranch_scc1 EPI_R')
if OPT['STAMP'] == 9: e(f's_add_u32 {s(S_ST)}, {s(S_ST)}, 1')
e(f's_mov_b32 {s(S_SV)}, {s(S_CUR)}')
e(f's_mov_b32 {s(S_CUR)}, {s(S_PREV)}')
e(f's_mov_b32 {s(S_M)}, 1')
e(f'ds_write_b32 {v(T+5)}, {v(O)}')
e('s_branch BPF')
lab('SLOW_W')
e('s_load_dwordx2 s[4:5], s[0:1], 40')
e(f'v_lshrrev_b32 {v(Y)}, 1, {v(G16)}')
e('s_waitcnt lgkmcnt(0)')
for t in range(4): e(f'global_load_dwordx2 {v(BS_+2*t,2)}, {v(Y)}, s[4:5] offset:{32*t}')
e('s_waitcnt vmcnt(0)')
for i in range(8):
    e(f'v_lshlrev_b32 {v(WX+2*i)}, 16, {v(BS_+i)}')
    e(f'v_and_b32 {v(WX+2*i+1)}, 0xffff0000, {v(BS_+i)}')
e(f's_mov_b32 {s(S_CUR)}, {s(S_SV)}')
e(f's_and_b32 {s(S_T0)}, {s(S_PREV)}, 63')
e(f's_mov_b32 {s(S_T1)}, 0' if OPT['XM'] else f's_lshr_b32 {s(S_T1)}, {s(S_PREV)}, 12')
e(f's_bfe_u32 {s(S_T3)}, {s(S_PREV)}, 0x40008')
e(f's_lshl4_add_u32 {s(S_T1)}, {s(S_T0)}, {s(S_T1)}')
e(f's_lshl_b32 {s(S_T1)}, {s(S_T1)}, 4')
e(f's_add_u32 {s(S_SV)}, {s(S_T1)}, {LIST}')
e(f's_bitcmp1_b32 {s(S_PREV)}, 7')
e(f's_cselect_b64 {s(S_TP,2)}, -1, 0')
e(f's_cselect_b32 {s(S_T3)}, 13, {s(S_T3)}')
e(f'v_bfe_u32 {v(Y)}, {v(V16)}, 4, 4')
e(f'v_mov_b32 {v(Y+3)}, {v(G16)}')
for i in range(8): e(f'v_mov_b64 {v(ACC+2*i,2)}, 0')
goff(S_T1, S_T0, 3, 25600, S_T2)
e(f's_add_u32 {s(S_T1)}, {s(S_T1)}, {s(S_WGH)}')
goff(S_T2, S_T0, 3, 400, S_BAD)
lab('SLOW_L')
e(f'v_add_u32 {v(Y+1)}, {s(S_SV)}, {v(Y)}')
e(f'ds_read_u8 {v(Y+2)}, {v(Y+1)}')
e('s_waitcnt lgkmcnt(0)')
e(f'v_cndmask_b32_e64 {v(Y+2)}, {v(Y+2)}, {v(Y)}, {s(S_TP,2)}')
e(f'v_lshlrev_b32 {v(Y+1)}, 1, {v(Y+2)}')
for sx in range(2): e(f'buffer_load_dwordx4 {v(BS_+4*sx,4)}, {v(Y+2,2)}, {s(SRD_H,4)}, {s(S_T1)} idxen offen offset:{1024+64*sx}')
e(f'buffer_load_ushort {v(Y+1)}, {v(Y+1)}, {s(SRD_M,4)}, {s(S_T2)} offen')
e(f'v_cmp_gt_u32 vcc, 200, {v(Y+2)}')
e(f'v_add_u32 {v(Y)}, 16, {v(Y)}')
e('s_waitcnt vmcnt(0)')
for t in range(4):
    for sx in range(2): e(MM1(t, sx, BS_))
e(f'v_lshlrev_b32 {v(Y+1)}, 16, {v(Y+1)}')
e(f'v_cndmask_b32 {v(Y+1)}, 0, {v(Y+1)}, vcc')
e('s_nop 7')
for i in range(16): e(EX(i))
for i in range(16): e(f'v_add_f32 {v(D+i)}, 1.0, {v(D+i)}')
for i in range(16): e(f'v_rcp_f32 {v(D+i)}, {v(D+i)}')
e(f'v_mul_f32 {v(Z)}, {v(D)}, {v(WX)}')
for i in range(1, 16): e(f'v_fmac_f32 {v(Z)}, {v(D+i)}, {v(WX+i)}')
e(f'v_mov_b32 {v(Z+1)}, {v(Z)}')
e('s_nop 1')
e(f'v_permlane32_swap_b32 {v(Z)}, {v(Z+1)}')
e(f'v_add_f32 {v(Z)}, {v(Z)}, {v(Z+1)}')
e(f'v_mov_b32 {v(Z+1)}, {v(Z)}')
e('s_nop 1')
e(f'v_permlane16_swap_b32 {v(Z)}, {v(Z+1)}')
e(f'v_add_f32 {v(Z)}, {v(Z)}, {v(Z+1)}')
e(f'v_add_f32 {v(Z)}, {s(S_B2)}, {v(Z)}')
e(f'v_mul_f32 {v(Z)}, {v(Z)}, {v(Y+1)}')
for i in range(8):
    e(f'v_lshlrev_b32 {v(Z+1)}, 16, {v(BS_+i)}')
    e(f'v_and_b32 {v(Z+2)}, 0xffff0000, {v(BS_+i)}')
    e(f'v_fmac_f32 {v(ACC+2*i)}, {v(Z)}, {v(Z+1)}')
    e(f'v_fmac_f32 {v(ACC+2*i+1)}, {v(Z)}, {v(Z+2)}')
e(f's_sub_u32 {s(S_T3)}, {s(S_T3)}, 1')
e(f's_cmp_lg_u32 {s(S_T3)}, 0')
e('s_cbranch_scc1 SLOW_L')
e(f'v_readfirstlane_b32 {s(S_T0)}, {v(T+5)}')
e('s_nop 1')
e(f'v_lshl_add_u32 {v(Z)}, {v(G16)}, 1, {s(S_T0)}')
for i in range(16): e(f'ds_add_f32 {v(Z)}, {v(ACC+i)} offset:{128*(i>>3)+4*(i&7)}')
e('s_waitcnt lgkmcnt(0)')
e(f's_bitcmp1_b32 {s(S_CUR)}, 6')
e('s_cbranch_scc1 L_DONE')
wr_reads()
e(f's_mov_b32 {s(S_M)}, 2')
e('s_branch BPF')
lab('L_END')
e('s_endpgm')
L.append(f""".section .rodata,"a"
.p2align 6
.amdhsa_kernel {KN}
  .amdhsa_next_free_vgpr {NVGPR}
  .amdhsa_next_free_sgpr {NSGPR}
  .amdhsa_accum_offset {(NVGPR+3)//4*4}
  .amdhsa_group_segment_fixed_size 0
  .amdhsa_kernarg_size 80
  .amdhsa_user_sgpr_count 2
  .amdhsa_user_sgpr_kernarg_segment_ptr 1
  .amdhsa_system_sgpr_workgroup_id_x 1
.end_amdhsa_kernel""")

text = '\n'.join(L) + '\n'
outs = [a for a in sys.argv[1:] if '=' not in a]
if outs:
    open(outs[0], 'w').write(text)
    import hazard
    n = hazard.check(text, verbose=not OPT['KILL'])
    print(f'{outs[0]}: vgpr={NVGPR} lds={LDS_BYTES} hazards={n}', file=sys.stderr)
else:
    sys.stdout.write(text)
```

```python
import sys, os
sys.path.insert(0, os.path.join(os.path.dirname(os.path.abspath(__file__)), 'exp'))

OPT = dict(STAMP=0, NOMEM=0, KILL=0, HP=1, MP=1, TP=1, STP=1, CPF=1, YP=0, SPIN=0, SEL=0, SELW=-1, SELG=-1, SMODE=0, FSLOW=0, BOOST=40, SEC=0, PP=1, RAMP=0x65433210, SP=2, T1=1, AL=1, LP=0, SX=0, LA=3, VW=2, H=0, MM=2, EW=0, C2=1, P2=1, MAP=1, LW=2, XM=1, TS_=1, DS=60, PX=0, P3=0, SK=0, SKP=6, EG=0, EG0=0)
for a in sys.argv[1:]:
    if '=' in a:
        k, v_ = a.split('='); assert k in OPT, k; OPT[k] = int(v_, 0)
NW = 8; NBW = 64; NWG = 16384 // NBW
NPAIR = [(OPT['RAMP'] >> 4*w) & 15 for w in range(NW)]
assert sum(NPAIR) == 24 and max(NPAIR) <= 6
LA = OPT['LA']; VW = OPT['VW'] if OPT['VW'] >= 0 else 2*(LA-2)
H = OPT['H']; NS = NBW - H
assert H % 4 == 0 and H <= 2*NPAIR[7]
MAP = OPT['MAP']
WB = 8 if MAP else NBW
PX = OPT['PX']
LP_ = LA + PX
assert LP_ <= 4
POL = ['', ' nt', ' sc1', ' sc0 sc1', ' sc1 nt', ' sc0 nt', ' sc0 sc1 nt', ' sc0']
NL2E = 0xBFB8AA3B

WAC = 0
W2T = 16384; B1T = W2T + 256
FFB = W2T + 512
DESC = FFB + 256
TKT = DESC + 448; SCC_ = TKT + 4
RING = DESC + 512
TAB = RING + NW * 8192
TS = 528
LIST = TAB + NBW * TS
OUT = LIST + NBW * 256
SCR = OUT + (NBW + H + 1) * 256
STG = LIST + 16 * 256
if OPT['P3']: STG = SCR + NW * 128 - 24576
LDS_BYTES = max(SCR + NW * 128, STG + 32768)
DUM = LDS_BYTES
LDS_BYTES += 2048 * PX
assert LDS_BYTES <= 163840 and RING % 256 == 0 and STG % 128 == 0

L = []
INLOOP = [False]
def e(s):
    K = OPT['KILL'] if INLOOP[0] else 0
    if K & 256 and s.startswith(('v_exp', 'v_mfma')): s = 's_nop 0'
    if K & 256 and s.startswith(('v_pk', 'v_rcp', 'v_cvt')): return
    if K & 1024 and s.startswith('v_pk') and INLOOP[0] == 1: return
    if K & 1 and s.startswith('v_mfma') and '4x4x4' in s: s = 's_nop 0'
    if K & 2 and INLOOP[0] == 2 and s.startswith(('v_pk_fma', 'v_cvt')): return
    if K & 4 and INLOOP[0] == 2 and s.startswith('ds_read_b128') and f', {v(V16)} ' in s: return
    if K & 8 and s.startswith('v_mfma') and '4x4x4' not in s: s = 's_nop 0'
    if K & 8 and s.startswith('v_exp'): s = s.split(',')[0] + f', v{int(s.split("v")[-1]) - D + WE}'
    if K & 64 and s.startswith('buffer_load'): return
    if K & 128 and s.startswith('ds_read_u8'): return
    if K & 16 and INLOOP[0] == 1 and s.startswith('ds_read_b128'): return
    if K & 32 and INLOOP[0] == 1 and s.startswith('ds_read_b64_tr'): return
    if K & 2048 and s.startswith('v_exp'): s = 's_nop 0'
    if K and s.startswith('s_cbranch_vccnz SLOW'): return
    L.append('    ' + s)
def lab(s): L.append(s + ':')
def al():
    if OPT['AL']: L.append('    .p2align 3')

_v = [0]
def valloc(n, al=1):
    b = (_v[0] + al - 1) // al * al
    _v[0] = b + n
    return b
T = valloc(8, 2)
WD = valloc(64, 4); WE = valloc(32, 4); D = valloc(16, 4); W2 = valloc(16, 4); CB = valloc(16, 4)
B = valloc(8, 4); B3 = valloc(16, 4); O = valloc(4, 4); WR = valloc(56, 4)
A3 = valloc(2, 2); IDX = valloc(4, 2); AB = valloc(2); AT = valloc(2)
ALI = valloc(1); ALB = valloc(1); ASR = valloc(1); ASW = valloc(1); AO = valloc(1); V16 = valloc(1); G16 = valloc(1)
TK = valloc(1); TD = valloc(1)
X = WR; MC = WR + 24; RJ = WR + 28; CV = WR + 32; HB = WR + 33; FF = WR + 34; PA = WR + 36; AD = WR + 46
TSV = valloc(1) if OPT['STAMP'] == 8 else None
NVGPR = _v[0]
assert NVGPR <= 256, NVGPR

def v(n, c=1): return f'v{n}' if c == 1 else f'v[{n}:{n+c-1}]'
def s(n, c=1): return f's{n}' if c == 1 else f's[{n}:{n+c-1}]'

SRD_H, SRD_M, SRD_O, SRD_T, SRD_W1, SRD_C = 20, 24, 28, 32, 36, 40
S_RA = 32; S_RB = 34; S_RC = 36
S_B2Q = 44; S_INV = 46
(S_WAVE, S_WGH, S_PC, S_PSOFF, S_CUR, S_PREV, S_RING, S_PS, S_T0, S_T1, S_T2, S_T3, S_L2E, S_ONE, S_CC, S_B2) = range(48, 64)
S_BAL = 4
S_BAD = 64
S_TP = 66
S_Q = 68
S_CLS = 45; S_NP = 47; S_P0 = 70; S_MO = 71; S_PS1 = 72; S_K = 73; S_SV = 74; S_QN = 75; S_CS = 76; S_M = 77; S_EX = 78; S_DC = 42; S_CM = 40
L3 = OPT['LW'] == 3
S_PCU = None
if L3: S_PSOFF = 32; S_PS1 = 33; S_PCU = 34
NSGPR = 80
S_ST = 80
if OPT['STAMP']: NSGPR = 100
def bstamp():
    if OPT['STAMP'] == 8:
        e(f's_memrealtime {s(S_ST+2,2)}')
        e('s_waitcnt lgkmcnt(0)')
        e(f's_lshl_b64 exec, 1, {s(S_ST+4)}')
        e(f'v_mov_b32 {v(TSV)}, {s(S_ST+2)}')
        e('s_mov_b64 exec, -1')
        e(f's_add_u32 {s(S_ST+4)}, {s(S_ST+4)}, 1')
def tic(i, op='s_sub_u32'):
    if OPT['STAMP'] == 9 and OPT['SEC'] >> i & 1:
        e(f's_cselect_b32 {s(S_ST+1)}, 1, 0')
        e('s_memtime s[98:99]')
        e('s_waitcnt lgkmcnt(0)')
        e(f'{op} {s(S_ST+2*i)}, {s(S_ST+2*i)}, s98')
        e(f's_cmp_lg_u32 {s(S_ST+1)}, 0')
def toc(i): tic(i, 's_add_u32')
def pst(mode, i):
    if OPT['STAMP'] == mode: e(f's_memrealtime {s(S_ST+2*i,2)}')
def stamp(i):
    if OPT['STAMP'] in (3, 4):
        if i == 0: e(f's_memrealtime {s(S_ST,2)}')
        if i == 7: e('s_waitcnt lgkmcnt(0)')
        return
    if OPT['STAMP'] and i == 0: e(f's_mov_b32 {s(S_ST+17)}, 0')
    if OPT['STAMP'] == 9:
        if i == 0:
            for j in range(8): e(f's_mov_b32 {s(S_ST+2*j)}, 0')
        return
    if OPT['STAMP'] == 8:
        if i == 0:
            e(f's_mov_b32 {s(S_ST+4)}, 0')
            e(f'v_mov_b32 {v(TSV)}, 0')
            bstamp()
        if i in (5, 7): bstamp()
        return
    if OPT['STAMP']:
        if (OPT['STAMP'] == 2 or OPT['SMODE']) and i in (3, 4): return
        e(f's_memrealtime {s(S_ST+2*i,2)}')
        if (OPT['STAMP'] == 2 or OPT['SMODE']) and i in (5, 6): e(f's_memtime {s(S_ST+2*(i-2),2)}')
        e('s_waitcnt lgkmcnt(0)')

KN = 'standalone__sequential_behavior_din__recsys_kernel'

class LQ:
    def __init__(self): self.q = []
    def op(self, text, tag=None): e(text); self.q.append(tag)
    def wait(self, tag):
        i = max(j for j, t in enumerate(self.q) if t == tag)
        e(f's_waitcnt lgkmcnt({min(len(self.q) - 1 - i, 15)})')

def M16(d, a, b, c): return f'v_mfma_f32_16x16x32_bf16 {v(d,4)}, {v(a,4)}, {v(b,4)}, ' + (v(c,4) if c is not None else '0')
def MM1(t, sx, b=None): return M16(D+4*t, WE+4*(2*t+sx), (B if b is None else b)+4*sx, D+4*t if sx else CB+4*t)
def EX(i): return f'v_exp_f32 {v(D+i)}, {v(D+i)}'
def M0S(u, c): return f's_add_u32 m0, {s(S_RING)}, {u*2048 + c*1024}'
def DMA(r, c=0):
    so = (S_PSOFF if c else S_PS1) + (2 if L3 and INLOOP[0] else 0)
    return f'buffer_load_dwordx4 {v(r,2)}, {s(SRD_H,4)}, {s(so)} idxen offen{" offset:1024" if c else ""}{POL[OPT["HP"]]} lds'
def IDXR(r, off): return f'ds_read_u8 {v(r)}, {v(ALI)} offset:{off}'
def HI():
    if OPT['YP']: e('s_setprio 1')
def LO():
    if OPT['YP']: e('s_setprio 0')
VIRT = 0x240
def goff(dst, b, sh, row, tmp):
    if MAP: e(f's_lshr_b32 {s(tmp)}, {s(b)}, {sh}')
    e(f's_mul_i32 {s(dst)}, {s(b)}, {row}')
    if MAP:
        e(f's_mul_i32 {s(tmp)}, {s(tmp)}, {255*(row << sh)}')
        e(f's_add_u32 {s(dst)}, {s(dst)}, {s(tmp)}')
def WRF(c): return CB + 8 if c == 6 else WR + 8*(c if c < 6 else 6)

L.append(f'''; Kernarg layout for this problem (80 bytes, ptrs only, base s[0:1]):
; @launch grid=({NWG},1,1) block=({NW*64},1,1) lds={LDS_BYTES}
.amdgcn_target "amdgcn-amd-amdhsa--gfx950"
.text
.globl {KN}
.p2align 8
.type {KN},@function
{KN}:''')

LANE = O; VG = O + 1; VN = O + 2; LMX = O + 3
TB = B3
TR = CB; TRB = CB + 4; B1A = CB + 6; TW = CB + 7; TRW = CB + 8; PB = CB + 9; SM = CB + 10; JUNK = CB + 14; WW = CB + 15
IX2 = B; WA = W2; TT = W2 + 4; AC = WR + 38; TF = T + 3
def MLD(dst, off=0): return f'buffer_load_dwordx4 {v(dst,4)}, {v(LMX)}, {s(SRD_M,4)}, {s(S_MO)} offen offset:{off}{POL[OPT["MP"]]}'
def desc(dst, cw, add, umin):
    e(f's_and_b32 {s(S_T3)}, {s(cw)}, 0xff')
    e(f's_lshr_b32 {s(cw)}, {s(cw)}, 8')
    e(f's_add_u32 {s(S_T3)}, {s(S_T3)}, 15')
    if OPT['XM']:
        e(f's_and_b32 {s(dst)}, {s(S_T3)}, 15')
        e(f's_lshl_b32 {s(dst)}, {s(dst)}, 12')
        e(f's_or_b32 {s(cw)}, {s(cw)}, {s(dst)}')
    e(f's_lshr_b32 {s(S_T3)}, {s(S_T3)}, 4')
    e(f's_max_u32 {s(S_T3)}, {s(S_T3)}, {umin}')
    e(f's_lshl1_add_u32 {s(dst)}, {s(S_WAVE)}, {s(cw)}')
    e(f's_lshl_b32 {s(cw)}, {s(S_T3)}, 8')
    e(f's_or_b32 {s(dst)}, {s(dst)}, {s(cw)}')
    if add: e(f's_or_b32 {s(dst)}, {s(dst)}, 1')
def tile_fill(k, part=3):
    rr = (IDX, IDX+2, IX2, IX2+2)[:2*(LP_-2) if k else 4]
    if part & 1:
        for c, r in enumerate(rr): e(IDXR(r, 32*k+8*c))
        e(M0S(2*k, 0))
    if part & 2:
        for c, r in enumerate(rr):
            if part & 1: e(f's_waitcnt lgkmcnt({len(rr)-1-c})')
            e(DMA(r, c & 1))
            if c == 1 and len(rr) > 2:
                e(M0S(2*k+1, 0))
                if not part & 1: e('s_nop 0')
def more_masks():
    for i in range(max(NPAIR)):
        e(f's_cmp_le_u32 {s(S_NP)}, {i}')
        e('s_cbranch_scc1 P_MJ')
        if MAP:
            e(f's_lshr_b32 {s(S_T0)}, {s(S_P0)}, 1')
            if i: e(f's_add_u32 {s(S_T0)}, {s(S_T0)}, {i}')
            goff(S_MO, S_T0, 2, 800, S_T3)
        e(MLD(X+4*i, 0 if MAP else 800*i))
    lab('P_MJ')
def swz(dst, src):
    e(f'v_bfrev_b32 {v(dst)}, {v(src)}')
    e(f'v_lshrrev_b32 {v(dst)}, 28, {v(dst)}')
    e(f'v_and_b32 {v(dst)}, 6, {v(dst)}')
def wr_reads():
    for c in (0, 2, 4, 1, 3, 5, 7):
        for jh in range(2): e(f'ds_read_b128 {v(WRF(c)+4*jh,4)}, {v(V16)} offset:{WAC+(c*2+jh)*1024}')

e(f's_cmpk_ge_u32 s2, {NWG}')
e('s_cbranch_scc1 L_END')
stamp(0)
e('s_load_dwordx16 s[4:19], s[0:1], 0')
if OPT['EW']:
    e('s_waitcnt lgkmcnt(0)')
    stamp(3)
    _s3 = stamp
    def stamp(i):
        if i != 3: _s3(i)
if OPT['PP']: e('s_setprio 3')
e(f'v_lshrrev_b32 {v(T+1)}, 6, v0')
e(f'v_and_b32 {v(LANE)}, 63, v0')
e(f'v_readfirstlane_b32 {s(S_WAVE)}, {v(T+1)}')
if OPT['CPF']:
    e(f's_getpc_b64 {s(SRD_C,2)}')
    lab('L_PC')
    e(f's_cmp_lt_u32 {s(S_WAVE)}, 5')
    e('s_cbranch_scc1 P_NC')
    e(f's_mov_b32 {s(SRD_C+2)}, L_END-L_PC')
    e(f's_mov_b32 {s(SRD_C+3)}, 0x20000')
    e(f'v_subrev_u32 {v(JUNK)}, 320, v0')
    e(f'v_lshlrev_b32 {v(JUNK)}, 6, {v(JUNK)}')
    e(f'buffer_load_dword {v(JUNK)}, {v(JUNK)}, {s(SRD_C,4)}, 0 offen')
    lab('P_NC')
e(f'v_and_b32 {v(T+2)}, 31, v0')
e(f'v_bfe_u32 {v(T+3)}, v0, 5, 1')
e(f'v_cmp_gt_u32 vcc, 25, {v(T+2)}')
e(f'v_mul_u32_u24 {v(T+4)}, 400, {v(T+3)}')
e(f'v_lshl_add_u32 {v(LMX)}, {v(T+2)}, 4, {v(T+4)}')
e(f'v_bfrev_b32 {v(T+4)}, 8')
e(f'v_cndmask_b32 {v(LMX)}, {v(T+4)}, {v(LMX)}, vcc')
e(f's_mul_i32 {s(S_T1)}, s2, {WB*400}')
e(f's_sub_u32 {s(SRD_M+2)}, {16384*400}, {s(S_T1)}')
goff(S_MO, S_WAVE, 2, 800, S_T3)
e(f's_mov_b32 {s(SRD_M+3)}, 0x20000')
e(f's_lshl_b32 {s(S_SV)}, {s(S_WAVE)}, 12')
e(f's_lshl_b32 {s(S_PREV)}, s2, {10 if MAP else 13}')
e(f'v_lshlrev_b32 {v(V16)}, 4, {v(LANE)}')
e(f'v_lshlrev_b32 {v(WA)}, 1, {v(LANE)}')
e(f'v_and_b32 {v(WA)}, 32, {v(WA)}')
e(f'v_xor_b32 {v(WA)}, {v(WA)}, {v(V16)}')
e(f'v_xor_b32 {v(WA+1)}, 64, {v(WA)}')
e(f's_mov_b32 {s(SRD_W1+2)}, 32768')
e(f's_mov_b32 {s(SRD_W1+3)}, {s(SRD_M+3)}')
e(f's_lshl_b32 {s(S_T2)}, {s(S_WAVE)}, {18 if MAP else 10}')
e(f's_sub_u32 {s(SRD_T+2)}, {16384*128}, {s(S_PREV)}')
e(f's_mov_b32 {s(SRD_T+3)}, {s(SRD_M+3)}')
e(f's_add_u32 m0, {s(S_SV)}, {STG}')
e(f'v_and_b32 {v(VN)}, 15, {v(LANE)}')
e(f'v_lshrrev_b32 {v(VG)}, 4, {v(LANE)}')
e(f'v_lshlrev_b32 {v(G16)}, 4, {v(VG)}')
e(f'v_mul_u32_u24 {v(RJ)}, 0x80008, {v(T+2)}')
e(f'v_lshrrev_b32 {v(IDX)}, 3, {v(LANE)}')
e(f'v_add_u32 {v(RJ)}, 0x10000, {v(RJ)}')
e(f'v_cmp_gt_u32 vcc, 32, {v(LANE)}')
e('s_waitcnt lgkmcnt(0)')
stamp(1)
e(f's_add_u32 {s(SRD_M)}, s8, {s(S_T1)}')
e(f's_addc_u32 {s(SRD_M+1)}, s9, 0')
e(f's_mov_b64 {s(SRD_W1,2)}, s[10:11]')
e(MLD(MC))
pst(4, 1)
if OPT['PP']: e('s_setprio 0')
e(f's_add_u32 {s(SRD_T)}, s4, {s(S_PREV)}')
e(f's_addc_u32 {s(SRD_T+1)}, s5, 0')
e(f's_load_dword {s(S_B2)}, s[16:17], 0')
e(f's_cmp_lg_u32 {s(S_WAVE)}, 0')
e('s_cbranch_scc1 P_LJ')
e(f'v_mov_b32 {v(SM)}, s12')
e(f'v_mov_b32 {v(SM+1)}, s13')
e(f'v_mov_b32 {v(SM+2)}, s14')
e(f'v_mov_b32 {v(SM+3)}, s15')
e(f'v_lshlrev_b32 {v(T+4)}, 2, {v(T+2)}')
e(f'v_cndmask_b32 {v(SM)}, {v(SM)}, {v(SM+2)}, vcc')
e(f'v_cndmask_b32 {v(SM+1)}, {v(SM+1)}, {v(SM+3)}, vcc')
e(f'v_add_co_u32 {v(SM)}, vcc, {v(SM)}, {v(T+4)}')
e('s_nop 1')
e(f'v_addc_co_u32 {v(SM+1)}, vcc, 0, {v(SM+1)}, vcc')
e(f'global_load_dword {v(SM)}, {v(SM,2)}, off')
lab('P_LJ')
loads = [f'buffer_load_dwordx4 {v(TT,4)}, {v(V16)}, {s(SRD_T,4)}, {s(S_T2)} offen{POL[OPT["TP"]]}']
loads += [f'buffer_load_dwordx4 {v(WA+(c&1))}, {s(SRD_W1,4)}, {s(S_SV)} offen offset:{1024*c} lds' for c in range(4)]
n0 = len(L)
e(f's_lshl1_add_u32 {s(S_RING)}, {s(S_SV)}, {RING}')
e(f's_mul_i32 {s(S_WGH)}, s2, {WB*25600}')
e(f's_lshl_b32 {s(S_T1)}, {s(S_WAVE)}, 9')
e(f'v_add_u32 {v(ALB)}, {LIST}, {v(IDX)}')
e(f'v_add_u32 {v(ALI)}, {s(S_T1)}, {v(ALB)}')
e(f's_add_u32 {s(S_T0)}, {s(S_T1)}, {LIST}')
for i in range(1, 4): e(f'v_add_u32 {v(RJ+i)}, 0x{0x20002*i:x}, {v(RJ)}')
e(f's_sub_u32 {s(SRD_H)}, s6, 1024')
e(f's_subb_u32 {s(SRD_H+1)}, s7, 0')
e(f's_or_b32 {s(SRD_H+1)}, {s(SRD_H+1)}, 0x800000')
e(f's_movk_i32 {s(SRD_H+2)}, 200')
e(f's_mov_b32 {s(SRD_H+3)}, {s(SRD_M+3)}')
e(f's_movk_i32 {s(S_ONE)}, 0x3f80')
e(f'v_lshrrev_b32 {v(PA)}, 1, {v(V16)}')
e(f'v_and_b32 {v(HB)}, 0x100, {v(PA)}')
e(f'v_mov_b64 {v(FF,2)}, -1')
e(f'v_lshlrev_b32 {v(AO)}, 2, {v(LANE)}')
swz(T+2, IDX)
e(f'v_xor_b32 {v(T+2)}, {v(T+2)}, {v(LANE)}')
e(f'v_and_b32 {v(T+2)}, 7, {v(T+2)}')
e(f'v_mul_u32_u24 {v(TW)}, {TS}, {v(IDX)}')
for r in (IDX+1, IDX+3, IX2+1, IX2+3): e(f'v_lshlrev_b32 {v(r)}, 4, {v(T+2)}')
e(f's_add_u32 {s(SRD_O)}, s18, {s(S_PREV)}')
e(f's_addc_u32 {s(SRD_O+1)}, s19, 0')
e(f's_sub_u32 {s(SRD_O+2)}, {16384*128}, {s(S_PREV)}')
e(f's_mov_b32 {s(SRD_O+3)}, {s(SRD_M+3)}')
e(f's_mov_b32 {s(S_L2E)}, 0x{NL2E:08x}')
e(f's_mov_b32 {s(S_DC)}, 0x{(127-OPT["DS"]) << 23:08x}')
e(f's_mov_b32 {s(S_INV)}, 0x{(127-OPT["BOOST"]) << 23:08x}')
goff(S_PSOFF, S_WAVE, 2, 51200, S_T3)
if OPT['NOMEM']: e(f's_mov_b32 {s(S_PSOFF)}, 0')
else: e(f's_add_u32 {s(S_PSOFF)}, {s(S_PSOFF)}, {s(S_WGH)}')
e(f's_add_u32 {s(S_PS1)}, {s(S_PSOFF)}, 1024')
swz(T+2, VN)
e(f'v_xor_b32 {v(T+2)}, {v(T+2)}, {v(VG)}')
e(f'v_lshl_add_u32 {v(T+2)}, {v(T+2)}, 4, {s(S_RING)}')
e(f'v_lshl_add_u32 {v(AB)}, {v(VN)}, 7, {v(T+2)}')
e(f'v_xor_b32 {v(AB+1)}, 64, {v(AB)}')
e(f'v_and_b32 {v(T+3)}, 3, {v(LANE)}')
e(f'v_bfe_u32 {v(T+2)}, {v(LANE)}, 2, 2')
e(f'v_lshlrev_b32 {v(T+7)}, 3, {v(T+3)}')
e(f'v_lshl_add_u32 {v(T+7)}, {v(T+2)}, 7, {v(T+7)}')
e(f'v_and_b32 {v(T+6)}, 8, {v(LANE)}')
e(f'v_lshlrev_b32 {v(T+6)}, 3, {v(T+6)}')
e(f'v_lshl_add_u32 {v(AT)}, {v(VG)}, 5, {v(T+7)}')
e(f'v_xor_b32 {v(AT)}, {v(AT)}, {v(T+6)}')
e(f'v_add_u32 {v(AT)}, {s(S_RING)}, {v(AT)}')
e(f'v_xor_b32 {v(AT+1)}, 32, {v(AT)}')
e(f's_lshl_b32 {s(S_T1)}, {s(S_WAVE)}, 7')
e(f's_add_u32 {s(S_T1)}, {s(S_T1)}, {SCR}')
e(f'v_lshl_add_u32 {v(ASW)}, {v(T+2)}, 2, {v(VG)}')
e(f'v_lshl_add_u32 {v(ASW)}, {v(ASW)}, 2, {v(T+3)}')
e(f'v_lshl_add_u32 {v(ASW)}, {v(ASW)}, 1, {s(S_T1)}')
e(f'v_lshl_add_u32 {v(ASR)}, {v(VN)}, 3, {s(S_T1)}')
e(f'v_and_b32 {v(T+6)}, 0x60, {v(AO)}')
e(f'v_or_b32 {v(T+6)}, {v(T+6)}, {v(T+7)}')
e(f'v_lshl_add_u32 {v(TR)}, {v(VG)}, 10, {v(T+6)}')
e(f's_mul_i32 {s(S_T1)}, {s(S_WAVE)}, 0x1010')
e(f's_and_b32 {s(S_T1)}, {s(S_T1)}, 0x1060')
e(f'v_xor_b32 {v(TRW)}, {s(S_T1)}, {v(TR)}')
e(f'v_add_u32 {v(TR)}, {STG}, {v(TR)}')
e(f'v_add_u32 {v(TRW)}, {STG}, {v(TRW)}')
for t in range(1, 4): e(f'v_xor_b32 {v(TR+t)}, {32*t}, {v(TR)}')
e(f's_and_b32 {s(S_T3)}, {s(S_WAVE)}, 4')
e(f's_lshl_b32 {s(S_T3)}, {s(S_T3)}, 4')
e(f'v_xor_b32 {v(TRB)}, {s(S_T3)}, {v(TR)}')
e(f'v_xor_b32 {v(TRB+1)}, 32, {v(TRB)}')
e(f's_and_b32 {s(S_T1)}, {s(S_WAVE)}, 3')
e(f's_mul_i32 {s(S_T1)}, {s(S_T1)}, {16*TS}')
e(f's_lshl1_add_u32 {s(S_T1)}, {s(S_T3)}, {s(S_T1)}')
e(f's_add_u32 {s(S_T1)}, {s(S_T1)}, {TAB}')
e(f'v_mul_u32_u24 {v(PB)}, {TS}, {v(VN)}')
e(f'v_add3_u32 {v(PB)}, {v(PB)}, {v(G16)}, {s(S_T1)}')
e(f'v_lshl_add_u32 {v(B1A)}, {s(S_T3)}, 1, {v(G16)}')
e(f's_mul_i32 {s(S_T1)}, {s(S_WAVE)}, {8*TS}')
e(f's_add_u32 {s(S_T1)}, {s(S_T1)}, {TAB}')
e(f'v_and_b32 {v(TF)}, 0x70, {v(V16)}')
e(f'v_add3_u32 {v(TW)}, {v(TW)}, {v(TF)}, {s(S_T1)}')
e(f'v_add_u32 {v(TF)}, {v(TW)}, {v(TF)}')
e(f's_lshl_b32 {s(S_T1)}, {s(S_WAVE)}, 11')
e(f'v_add_u32 {v(WW)}, {s(S_T1)}, {v(V16)}')
tab = 0; st_ = 0
for w in range(NW): tab |= (st_ << 3 | NPAIR[w]) << 8*w; st_ += NPAIR[w]
e(f's_mov_b32 {s(S_TP)}, 0x{tab & 0xffffffff:x}')
e(f's_mov_b32 {s(S_TP+1)}, 0x{tab >> 32:x}')
e(f's_lshl_b32 {s(S_T1)}, {s(S_WAVE)}, 3')
e(f's_lshr_b64 {s(S_TP,2)}, {s(S_TP,2)}, {s(S_T1)}')
e(f's_and_b32 {s(S_NP)}, {s(S_TP)}, 7')
e(f's_bfe_u32 {s(S_P0)}, {s(S_TP)}, 0x50003')
e(f's_lshl1_add_u32 {s(S_P0)}, {s(S_P0)}, 16')
e(f's_mul_i32 {s(S_MO)}, {s(S_P0)}, 400')
fill = L[n0:]; del L[n0:]
pos = {0: [0]*5, 2: [0, 0, 0, len(fill), len(fill)], 3: [0, 0, 0, len(fill)//2, len(fill)//2]}[OPT['SP']]
for i in range(len(fill) + 1):
    for j, ld in enumerate(loads):
        if pos[j] == i: e(ld)
    if i < len(fill): L.append(fill[i])
pst(4, 3)
e(f's_cmp_eq_u32 {s(S_WAVE)}, 0')
e('s_waitcnt vmcnt(6) lgkmcnt(0)')
e('s_cbranch_scc1 P_M0')
e('s_waitcnt vmcnt(5)')
lab('P_M0')
stamp(2)
pst(4, 4)
if OPT['MM'] == 0: more_masks()
e(f's_call_b64 {s(S_RC,2)}, CMP')
e('s_branch P_C')
al()
lab('CMP')
if OPT['C2']:
    def cq(j): return f'v_cmp_eq_u16_sdwa {s(S_BAL+2*j,2)}, {v(MC+j//2)}, {s(S_ONE)} src0_sel:WORD_1 src1_sel:WORD_0' if j & 1 else f'v_cmp_eq_u16_e64 {s(S_BAL+2*j,2)}, {s(S_ONE)}, {v(MC+j//2)}'
    for i in range(4): e(f'v_bcnt_u32_b32 {v(T+7)}, {v(MC+i)}, {v(T+7) if i else 0}')
    e(f'v_add_u32 {v(T+4)}, {s(S_T0)}, {v(PA)}')
    e(f'v_mov_b32 {v(T+6)}, {v(T+7)}')
    e(f'ds_write_b64 {v(T+4)}, {v(FF,2)}')
    for i, d in enumerate(('row_shr:1', 'row_shr:2', 'row_shr:4', 'row_shr:8')):
        e(cq(2*i)); e(cq(2*i+1))
        e(f'v_add_u32_dpp {v(T+6)}, {v(T+6)}, {v(T+6)} {d} row_mask:0xf bank_mask:0xf bound_ctrl:0')
    e('s_nop 1')
    e(f'v_add_u32_dpp {v(T+6)}, {v(T+6)}, {v(T+6)} row_bcast:15 row_mask:0xa bank_mask:0xf')
    e(f'v_sub_u32 {v(T+6)}, {v(T+6)}, {v(T+7)}')
    e(f'v_mul_u32_u24 {v(T+6)}, 9363, {v(T+6)}')
    e(f'v_lshrrev_b32 {v(T+6)}, 16, {v(T+6)}')
    e(f'v_min_u32 {v(T+6)}, 200, {v(T+6)}')
    e(f'v_add3_u32 {v(AD)}, {v(T+6)}, {v(HB)}, {s(S_T0)}')
    e(f'v_readlane_b32 {s(S_T3)}, {v(T+6)}, 31')
    e(f'v_readlane_b32 {s(S_T2)}, {v(T+6)}, 63')
    for j in range(8): e(f'v_addc_co_u32_e64 {v(AD+j+1)}, vcc, 0, {v(AD+j)}, {s(S_BAL+2*j,2)}')
    for j in range(8):
        e(f's_mov_b64 exec, {s(S_BAL+2*j,2)}')
        e(f'ds_write_b8{"_d16_hi" if j & 1 else ""} {v(AD+j)}, {v(RJ+j//2)}')
    e('s_mov_b64 exec, -1')
    e(f'v_sub_u32 {v(T+6)}, {v(AD+8)}, {v(AD)}')
    e(f'v_mul_u32_u24 {v(T+6)}, 7, {v(T+6)}')
    e(f'v_cmp_ne_u32 vcc, {v(T+6)}, {v(T+7)}')
else:
    for j in range(8):
        if j & 1: e(f'v_cmp_eq_u16_sdwa {s(S_BAL+2*j,2)}, {v(MC+j//2)}, {s(S_ONE)} src0_sel:WORD_1 src1_sel:WORD_0')
        else: e(f'v_cmp_eq_u16_e64 {s(S_BAL+2*j,2)}, {s(S_ONE)}, {v(MC+j//2)}')
    e(f'v_lshrrev_b32 {v(T+7)}, 1, {v(V16)}')
    e(f'v_add_u32 {v(T+7)}, {s(S_T0)}, {v(T+7)}')
    e(f'v_mov_b64 {v(T+4,2)}, -1')
    e(f'ds_write_b64 {v(T+7)}, {v(T+4,2)}')
    al()
    for j in range(8):
        e(f'v_mbcnt_lo_u32_b32 {v(T+6)}, {s(S_BAL+2*j)}, {v(T+6) if j else 0}')
        e(f'v_mbcnt_hi_u32_b32 {v(T+6)}, {s(S_BAL+2*j+1)}, {v(T+6)}')
    e(f'v_bcnt_u32_b32 {v(T+7)}, {v(MC)}, 0')
    e(f'v_readlane_b32 {s(S_T3)}, {v(T+6)}, 31')
    e(f'v_readlane_b32 {s(S_T2)}, {v(T+6)}, 63')
    e(f'v_add_u32 {v(T+6)}, {s(S_T0)}, {v(T+6)}')
    e('s_mov_b32 exec_lo, 0')
    e(f's_sub_u32 {s(S_T1)}, 256, {s(S_T3)}')
    e(f'v_add_u32 {v(T+6)}, {s(S_T1)}, {v(T+6)}')
    e('s_mov_b32 exec_lo, -1')
    e(f'v_mad_u32_u24 {v(T+7)}, {v(T+6)}, 7, {v(T+7)}')
    e(f's_sub_u32 {s(S_T2)}, {s(S_T2)}, {s(S_T3)}')
    for j in range(8):
        e(f's_mov_b64 exec, {s(S_BAL+2*j,2)}')
        e(f'ds_write_b8{"_d16_hi" if j & 1 else ""} {v(T+6)}, {v(RJ+j//2)}')
        e(f'v_add_u32 {v(T+6)}, 1, {v(T+6)}')
    e('s_mov_b64 exec, -1')
    for i in range(1, 4): e(f'v_bcnt_u32_b32 {v(T+7)}, {v(MC+i)}, {v(T+7)}')
    e(f'v_mul_u32_u24 {v(T+6)}, 7, {v(T+6)}')
    e(f'v_cmp_ne_u32 vcc, {v(T+6)}, {v(T+7)}')
e(f's_min_u32 {s(S_BAD)}, vcc_lo, 1')
e(f's_min_u32 {s(S_BAD+1)}, vcc_hi, 1')
e(f's_lshl_b64 {s(S_BAD,2)}, {s(S_BAD,2)}, 15')
e(f's_or_b32 {s(S_T1)}, {s(S_T3)}, {s(S_BAD)}')
e(f's_or_b32 {s(S_T2)}, {s(S_T2)}, {s(S_BAD+1)}')
e(f's_setpc_b64 {s(S_RC,2)}')

lab('P_C')
pst(4, 5)
tile_fill(0)
pst(4, 6)
e(f's_lshl_b32 {s(S_B2)}, {s(S_B2)}, 16')
e(f's_cmp_lg_u32 {s(S_WAVE)}, 0')
e('s_waitcnt vmcnt(8)')
e('s_cbranch_scc1 P_SW_J')
e(f'v_lshlrev_b32 {v(SM+2)}, 16, {v(SM)}')
e(f'v_and_b32 {v(SM+3)}, 0xffff0000, {v(SM)}')
e(f'v_mov_b32 {v(T+4)}, -1')
e(f'v_mov_b32 {v(T+5)}, 0')
e(f'v_mov_b32 {v(T+6)}, 0x{VIRT:x}')
e(f'v_lshrrev_b32 {v(T)}, 1, {v(V16)}')
e(f'ds_write2st64_b32 {v(AO)}, {v(T+4)}, {v(T+5)} offset0:{FFB//256} offset1:{DESC//256}')
e('s_mov_b32 exec_hi, 0')
e(f'v_max3_f32 {v(T+2)}, abs({v(SM+2)}), abs({v(SM+3)}), abs({s(S_B2)})')
e(f'v_ldexp_f32 {v(SM+2)}, {v(SM+2)}, {OPT["BOOST"]}')
e(f'v_ldexp_f32 {v(SM+3)}, {v(SM+3)}, {OPT["BOOST"]}')
e(f'v_cmp_le_f32 vcc, 0x{(127+16-OPT["BOOST"]) << 23:08x}, {v(T+2)}')
e('s_mov_b32 exec_lo, 0x55')
e(f'v_mul_f32 {v(SM+2)}, {s(S_DC)}, {v(SM+2)}')
e(f'v_mul_f32 {v(SM+3)}, {s(S_DC)}, {v(SM+3)}')
e('s_mov_b32 exec_lo, -1')
if H: e(f'ds_write_b32 {v(AO)}, {v(T+5)} offset:{DESC + 4*NBW}')
e(f'ds_write_b32 {v(AO)}, {v(T+6)} offset:{DESC + 4*(NBW+H)}')
e('s_mov_b32 exec_hi, -1')
e(f's_movk_i32 {s(S_T0)}, 0x3ff')
e('s_cmp_lg_u64 vcc, 0')
e(f's_cmovk_i32 {s(S_T0)}, 0x207')
e(f'v_mov_b32 {v(T+6)}, {DESC + 4*NW}')
e(f'v_mov_b32 {v(T+7)}, {s(S_T0)}')
e(f'ds_write_b64 {v(T)}, {v(SM+2,2)} offset:{W2T}')
e(f'ds_write_b64 {v(T+5)}, {v(T+6,2)} offset:{TKT}')
lab('P_SW_J')
for i in range(2): e(f'ds_write_b128 {v(TW)}, {v(TT,4)} offset:{256+128*i}')
def ttab(r):
    for i in range(4):
        e(f'v_lshlrev_b32 {v(r+2*i)}, 16, {v(TT+i)}')
        e(f'v_and_b32 {v(r+2*i+1)}, 0xffff0000, {v(TT+i)}')
    for i in range(8): e(f'v_mul_f32 {v(r+i)}, {s(S_L2E)}, {v(r+i)}')
if not OPT['P2']:
    ttab(D)
    for i in range(2): e(f'ds_write_b128 {v(TF)}, {v(D+4*i,4)} offset:{16*i}')
pst(4, 2)
e(f's_waitcnt vmcnt(4) lgkmcnt({0 if OPT["P2"] else 2})')
stamp(3)
e('s_barrier')
stamp(4)
pst(3, 1); pst(4, 7)
q = LQ()
def trw(dst, a, ch, jh, tag=None): q.op(f'ds_read_b64_tr_b16 {v(dst,2)}, {v(a)} offset:{ch*4096 + 512*jh}', tag)
for m in range(2):
    for jh in range(2): trw(AC + 4*m + 2*jh, TRW, 4*m, jh)
for sx in range(2): q.op(f'ds_read_b128 {v(TB+4*sx,4)}, {v(PB)} offset:{256+64*sx}', 'ac')
for tl in range(2): q.op(f'ds_read_b128 {v(D+4*tl,4)}, {v(B1A)} offset:{B1T+64*tl}')
for grp in range(4):
    for tl in range(2):
        for jh in range(2): trw(WD + 32 + (grp*2+tl)*4 + 2*jh, TRB+tl, 2+grp, jh, ('b', grp))
pst(3, 2)
if OPT['MM'] == 1: more_masks()
desc(S_CUR, S_T1, 0, LP_ + L3)
e(f's_sub_u32 {s(S_PC)}, {s(S_T3)}, {LP_ + L3}')
desc(S_SV, S_T2, 1, 2)
if OPT['P2']: ttab(WD+16)
q.wait('ac')
for i in range(4):
    e(f'v_lshlrev_b32 {v(WD+2*i)}, 16, {v(AC+i)}')
    e(f'v_and_b32 {v(WD+2*i+1)}, 0xffff0000, {v(AC+i)}')
    e(f'v_lshlrev_b32 {v(WD+8+2*i)}, 16, {v(AC+4+i)}')
    e(f'v_and_b32 {v(WD+8+2*i+1)}, 0xffff0000, {v(AC+4+i)}')
for i in range(8): e(f'v_xor_b32 {v(TB+8+i)}, 0x80008000, {v(TB+i)}')
for grp in range(4):
    q.wait(('b', grp))
    for tl in range(2): e(M16(D+4*tl, WD+32+(grp*2+tl)*4, TB+4*grp, D+4*tl))
    for i in range(2): e(f'v_add_f32 {v(D+8+2*grp+i)}, {v(WD+2*grp+i)}, {v(WD+8+2*grp+i)}')
def wd_reads():
    for t in range(4):
        for sx in range(2):
            for jh in range(2): trw(WE + (t*2+sx)*4 + 2*jh, TR+t, 6+sx, jh, ('d', t))
def w2_reads():
    for t in range(4): q.op(f'ds_read_b128 {v(W2+4*t,4)}, {v(G16)} offset:{W2T+64*t}')
def unpack(a, b):
    for i in range(a, b):
        e(f'v_lshlrev_b32 {v(WD+2*i)}, 16, {v(WE+i)}')
        e(f'v_and_b32 {v(WD+2*i+1)}, 0xffff0000, {v(WE+i)}')
if not OPT['P3']: wd_reads()
if OPT['MM'] == 2: more_masks()
for i in range(8): e(f'v_mul_f32 {v(D+8+i)}, {s(S_L2E)}, {v(D+8+i)}')
for i in range(2): q.op(f'ds_write_b128 {v(WW)}, {v(D+8+4*i,4)} offset:{WAC+1024*i}')
for i in range(8): e(f'v_mul_f32 {v(D+i)}, {s(S_L2E)}, {v(D+i)}')
for tl in range(2): q.op(f'ds_write_b128 {v(PB)}, {v(D+4*tl,4)} offset:{256+64*tl}')
if OPT['P2']:
    for i in range(2): q.op(f'ds_write_b128 {v(TF)}, {v(WD+16+4*i,4)} offset:{16*i}')
pst(3, 3)
if not OPT['P3']: w2_reads()
q.op(f'ds_read_b32 {v(JUNK)}, {v(G16)} offset:{SCC_}')
e(f's_lshl2_add_u32 {s(S_T0)}, {s(S_WAVE)}, {DESC + 4*NW}')
e(f'v_mov_b32 {v(TK)}, {s(S_T0)}')
e(f'v_mov_b32 {v(TD)}, {s(S_SV)}')
q.op(f'ds_write_b32 {v(TK)}, {v(TD)}')
if OPT['MM'] == 3: more_masks()
pst(3, 4)
e(f'v_ldexp_f32 {v(T+2)}, {s(S_B2)}, {OPT["BOOST"]-2}')
e(f'v_add_u32 {v(AO)}, {OUT}, {v(AO)}')
for i in range(4): e(f'v_mov_b64 {v(B3+8+2*i,2)}, 0')
e(f'v_readfirstlane_b32 {s(S_B2Q)}, {v(T+2)}')
if not OPT['P3']:
    q.wait(('d', 1))
    unpack(0, 16)
if OPT['T1'] == 0: tile_fill(1)
def inits():
    e(f'v_add_u32 {v(ALI)}, {16*(LP_+L3-1)}, {v(ALI)}')
    e(f's_mov_b64 {s(S_Q,2)}, 0')
    e(f's_mov_b32 {s(S_QN)}, 0')
    e(f's_movk_i32 {s(S_PREV)}, 0x1040')
    e(f's_mov_b32 {s(S_K)}, 3')
    e(f's_mov_b32 {s(S_M)}, {3 if OPT["STAMP"] else 0}')
    e(f's_mov_b32 {s(S_PS)}, 0')
    e(f'v_mov_b64 {v(T,2)}, 0')
    e(f'v_mov_b32 {v(T+2)}, 1.0')
    e(f'v_mov_b32 {v(T+3)}, 1.0')
if OPT['P2']:
    tile_fill(1, 1)
    inits()
e('s_waitcnt lgkmcnt(0)')
e('s_barrier')
pst(3, 5)
e(f'v_readfirstlane_b32 {s(S_CLS)}, {v(JUNK)}')
if OPT['T1'] == 1: tile_fill(1, 2 if OPT['P2'] else 3)
e(f's_cmp_eq_u32 {s(S_NP)}, 0')
e('s_cbranch_scc1 P_GO')
if OPT['LP']: e(f's_setprio {OPT["LP"]}')
e(f's_lshl_b32 {s(S_T0)}, {s(S_P0)}, 8')
e(f's_add_u32 {s(S_T0)}, {s(S_T0)}, {LIST}')
e(f's_waitcnt vmcnt({2*(LP_-2)})')
for i in range(max(NPAIR)):
    if i:
        e(f's_cmp_le_u32 {s(S_NP)}, {i}')
        e('s_cbranch_scc1 LATE_D')
        e(f's_add_u32 {s(S_T0)}, {s(S_T0)}, 512')
    for j in range(2): e(f'v_mov_b64 {v(MC+2*j,2)}, {v(X+4*i+2*j,2)}')
    e(f's_call_b64 {s(S_RC,2)}, CMP')
    e(f'v_writelane_b32 {v(CV)}, {s(S_T1)}, {2*i}')
    e(f'v_writelane_b32 {v(CV)}, {s(S_T2)}, {2*i+1}')
lab('LATE_D')
e(f'v_add_u32 {v(T+4)}, {s(S_P0)}, {v(LANE)}')
e(f's_lshl_b32 {s(S_T0)}, {s(S_NP)}, 1')
e(f'v_and_b32 {v(T+5)}, 0xff, {v(CV)}')
e(f'v_add_u32 {v(T+5)}, 15, {v(T+5)}')
e(f'v_lshrrev_b32 {v(CV)}, 8, {v(CV)}')
if OPT['XM']:
    assert H == 0
    e(f'v_and_b32 {v(T+6)}, 15, {v(T+5)}')
    e(f'v_lshl_or_b32 {v(CV)}, {v(T+6)}, 12, {v(CV)}')
e(f'v_lshrrev_b32 {v(T+5)}, 4, {v(T+5)}')
e(f'v_max_u32 {v(T+5)}, 2, {v(T+5)}')
e(f'v_or_b32 {v(CV)}, {v(CV)}, {v(T+4)}')
e(f'v_cmp_gt_u32 vcc, {NS}, {v(T+4)}')
e(f'v_lshl_or_b32 {v(T+6)}, {v(T+5)}, 8, {v(CV)}')
e(f'v_lshlrev_b32 {v(T+4)}, 2, {v(T+4)}')
e(f's_bfm_b64 {s(S_TP,2)}, {s(S_T0)}, 0')
e(f's_and_b64 exec, {s(S_TP,2)}, vcc')
e(f'ds_write_b32 {v(T+4)}, {v(T+6)} offset:{DESC}')
if H:
    e(f's_andn2_b64 exec, {s(S_TP,2)}, vcc')
    e(f'v_max_u32 {v(T+5)}, 4, {v(T+5)}')
    e(f'v_add_u32 {v(T+6)}, 1, {v(T+5)}')
    e(f'v_lshrrev_b32 {v(T+6)}, 1, {v(T+6)}')
    e(f'v_sub_u32 {v(T+5)}, {v(T+5)}, {v(T+6)}')
    e(f'v_lshl_or_b32 {v(T+7)}, {v(T+6)}, 4, {v(T+5)}')
    e(f'v_cmp_lt_u32 vcc, 0x7f, {v(CV)}')
    e(f'v_mov_b32 {v(T+5)}, 0xe2')
    e(f'v_lshl_or_b32 {v(T+6)}, {v(T+6)}, 8, {v(CV)}')
    e(f'v_cndmask_b32 {v(T+7)}, {v(T+7)}, {v(T+5)}, vcc')
    e(f'v_and_b32 {v(CV)}, 0x3f, {v(CV)}')
    e(f'v_lshl_or_b32 {v(T+7)}, {v(T+7)}, 8, {v(CV)}')
    e(f'v_lshlrev_b32 {v(T+4)}, 1, {v(T+4)}')
    e(f'ds_write_b64 {v(T+4)}, {v(T+6,2)} offset:{DESC - 4*NS}')
e('s_mov_b64 exec, -1')
if OPT['LP']: e('s_setprio 0')
lab('P_GO')
if OPT['P3']:
    q = LQ()
    wd_reads()
    for t in range(4):
        q.wait(('d', t))
        if t == 3:
            wr_reads()
            w2_reads()
        unpack(8*t, 8*t+8)
else:
    wr_reads()
    unpack(16, 32)
if not OPT['P2']: inits()
for i in range(2): e(f'v_mov_b64 {v(O+2*i,2)}, 0')
e(f's_sub_u32 {s(S_PC)}, {s(S_PC)}, 2')
e('s_cbranch_scc1 DRAW_P')
lab('DRET_P')
if L3: e(IDXR(IDX, 0)); e(IDXR(IDX+2, 8))
if OPT['EG']:
    e(f's_cmp_lt_u32 {s(S_WAVE)}, {OPT["EG0"]}')
    e('s_cselect_b64 vcc, -1, 0')
if PX:
    e(f'v_mov_b32 {v(TD)}, {v(ALI)}')
    e(f'v_mov_b32 {v(ALI)}, {FFB}')
    e(f's_lshl_b32 {s(S_MO)}, {s(S_PC)}, 1')
    e(f's_or_b32 {s(S_MO)}, {s(S_MO)}, {s(S_PS)}')
    e(f's_mov_b32 {s(S_P0)}, {s(S_RING)}')
    e(f's_mov_b32 {s(S_RING)}, {DUM - 3*2048}')
    e(f's_mov_b32 {s(S_PC)}, 1')
    e(f's_mov_b32 {s(S_PS)}, 2')
    assert OPT['TS_'] and LA == 3
pst(3, 6)
if not OPT['SK']:
    e(f's_waitcnt vmcnt({2*(LP_-1)})')
    for sx in range(2): e(f'ds_read_b128 {v(B+4*sx,4)}, {v(AB+sx)}')
e('s_branch BPF')
if OPT['STAMP']:
    lab('P_END')
    e(f's_mov_b32 {s(S_M)}, 0')
    pst(3, 7)
    stamp(5)

def chain():
    el = lambda k: v(D+2*k, 2); ww = lambda k: v(W2+2*k, 2)
    N = v(T, 2); Dn = v(T+2, 2)
    al()
    e(f'v_pk_fma_f32 {Dn}, {el(0)}, {s(S_DC,2)}, {s(S_DC,2)} op_sel_hi:[1,0,0]')
    e(f'v_pk_fma_f32 {N}, {ww(0)}, {el(1)}, {ww(0)}')
    e(f'v_pk_fma_f32 {N}, {ww(1)}, {Dn}, {N}')
    e(f'v_pk_fma_f32 {Dn}, {el(1)}, {Dn}, {Dn}')
    for k in range(2, 8):
        e(f'v_pk_fma_f32 {N}, {el(k)}, {N}, {N}')
        e(f'v_pk_fma_f32 {N}, {ww(k)}, {Dn}, {N}')
        e(f'v_pk_fma_f32 {Dn}, {el(k)}, {Dn}, {Dn}')
A3R = f'ds_read_b64 {v(A3,2)}, {v(ASR)}'
SCW = f'ds_write_b16 {v(ASW)}, {v(T)}'
def PM(par, qq): return f'v_mfma_f32_4x4x4_16b_bf16 {v(O,4)}, {v(A3,2)}, {v(B3+8*par+2*qq,2)}, {v(O,4)} cbsz:4 abid:{qq}'
TAIL = [[f'v_rcp_f32 {v(T+2)}, {v(T+2)}'], [f'v_rcp_f32 {v(T+3)}, {v(T+3)}'],
        [f'v_fma_f32 {v(T)}, {v(T)}, {v(T+2)}, {s(S_B2Q)}', f'v_fmac_f32 {v(T)}, {v(T+1)}, {v(T+3)}'],
        [f'v_cvt_pk_bf16_f32 {v(T)}, {v(T)}, {v(T)}']]
def draw():
    e('s_mov_b64 exec, 1')
    e(f'v_mov_b32 {v(TK)}, 4')
    e(f'ds_add_rtn_u32 {v(TK)}, {v(V16)}, {v(TK)} offset:{TKT}')
    e('s_mov_b64 exec, -1')
def dispatch(pre, add):
    for u in range(3):
        e(f's_cmp_eq_u32 {s(S_K)}, {u}')
        e(f's_cbranch_scc1 {pre}_{(u+add)%4}')
    e(f's_branch {pre}_{(3+add)%4}')

def unit(u):
    par = u & 1
    if OPT['SX']: sc = [M0S((u+LA)%4, 0), f's_mov_b32 {s(S_K)}, {u}', f's_sub_u32 {s(S_PC)}, {s(S_PC)}, 1', 's_cbranch_scc1 PEV', SCW, A3R, f's_sub_u32 {s(S_CC)}, {s(S_CC)}, 1', f's_waitcnt vmcnt({VW})']
    else: sc = [M0S((u+LA)%4, 0), f's_mov_b32 {s(S_K)}, {u}', f's_sub_u32 {s(S_PC)}, {s(S_PC)}, 1', 's_cbranch_scc1 PEV', None, None, f's_sub_u32 {s(S_CC)}, {s(S_CC)}, 1', f's_waitcnt vmcnt({VW})']
    va = TAIL + [[EX(i)] for i in range(4)]
    LW = OPT['LW']
    LT = LW in (1, 4, 5)
    if LT: sc[7] = None
    if L3:
        assert LA == 3 and not OPT['SX'] and not PX
        sc = [sc[0], sc[1], f's_mov_b64 {s(S_PCU,2)}, {s(S_PSOFF,2)}', sc[2], sc[3], None, sc[6], sc[7]]
    if OPT['EG']:
        assert LW == 2 and LA == 3 and not OPT['SK']
        sc[7] = f's_cbranch_vccnz NW_{u}'
    if OPT['SK']:
        assert LW != 1 and not OPT['SX'] and LA == 3 and not PX
        sc[5:8] = [sc[6], f's_cselect_b64 vcc, {s(S_CM,2)}, 0', f's_cbranch_vccnz NW_{u}']
    def brd():
        for sx in range(2): e(f'ds_read_b128 {v(B+4*sx,4)}, {v(AB+sx)} offset:{((u+1)%4)*2048}')
    for i in range(8):
        e(MM1(i >> 1, i & 1))
        if sc[i]: e(sc[i])
        if i == 7 and (OPT['SK'] or OPT['EG']):
            e(f's_waitcnt vmcnt({VW})')
            lab(f'NW_{u}')
        if i == 3: e(f'v_add_u32 {v(ALI)}, 16, {v(ALI)}')
        if i == 3 + L3: lab(f'RET_{u}')
        if i == 7 and L3:
            e(DMA(IDX, 0))
            e(DMA(IDX+2, 1))
        for x in va[i]: e(x)
    if not OPT['SX']: e(SCW); e(A3R)
    for qq in range(4): e(f'ds_read_b64_tr_b16 {v(B3+8*par+2*qq,2)}, {v(AT+(qq&1))} offset:{u*2048+512*qq}')
    e(IDXR(IDX, 0)); e(IDXR(IDX+2, 8))
    if not OPT['TS_']: e(f'ds_read_b32 {v(TD)}, {v(TK)}')
    if not LT: brd()
    n0 = 4 if OPT['SX'] else 8
    for i in range(4, n0): e(EX(i))
    e(f's_waitcnt lgkmcnt({(7 if LT else 9) - OPT["TS_"]})')
    for qq in range(4):
        e(PM(1-par, qq)); e(EX(n0+2*qq)); e(EX(n0+1+2*qq))
    for i in range(n0+8, 16): e(EX(i))
    if LW in (1, 2):
        e('s_waitcnt lgkmcnt(0)')
        e(DMA(IDX, 0))
        e(DMA(IDX+2, 1))
        if LW == 1:
            e(f's_waitcnt vmcnt({VW})')
            brd()
        if OPT['EG']:
            e(f's_cbranch_vccnz LB_{u}')
            lab(f'LR_{u}')
    if LW in (4, 5):
        e(f's_waitcnt vmcnt({VW})' + (' lgkmcnt(0)' if LW == 4 else ''))
        brd()
        if LW == 4:
            e(DMA(IDX, 0))
            e(DMA(IDX+2, 1))
    if OPT['XM']: e(f's_cselect_b64 exec, {s(S_EX,2)}, -1')
    HI()
    chain()
    LO()
    if OPT['XM']: e('s_mov_b64 exec, -1')
    if LW != 2 or OPT['EG']: e('s_waitcnt lgkmcnt(0)')
    if LW in (0, 5):
        e(DMA(IDX, 0))
        e(DMA(IDX+2, 1))

INLOOP[0] = 1
for u in range(4):
    lab(f'U_{u}')
    if u & 1 == 0: bstamp()
    unit(u)
    e('s_cbranch_scc1 CEV' if u < 3 else 's_cbranch_scc0 U_0')
INLOOP[0] = 2
lab('CEV')
e(f's_cmp_eq_u32 {s(S_CS)}, 0')
e('s_cbranch_scc1 EPI')
e(f's_mov_b32 {s(S_PREV)}, {s(S_CUR)}')
e(f's_and_b32 {s(S_CUR)}, {s(S_Q)}, 0xffff')
e(f's_lshr_b64 {s(S_Q,2)}, {s(S_Q,2)}, 16')
e(f's_sub_u32 {s(S_QN)}, {s(S_QN)}, 16')
e(f's_bitcmp1_b32 {s(S_CUR)}, 6')
e('s_cbranch_scc1 DRAIN')
lab('BPF')
q = LQ()
e(f's_and_b32 {s(S_T1)}, {s(S_CUR)}, 63')
e(f's_mul_i32 {s(S_T1)}, {s(S_T1)}, {TS}')
e(f's_add_u32 {s(S_T1)}, {s(S_T1)}, {TAB}')
e(f'v_lshl_add_u32 {v(T+6)}, {v(G16)}, 1, {s(S_T1)}')
e(f'v_add_u32 {v(T+7)}, {s(S_T1)}, {v(G16)}')
for jh in range(2): q.op(f'ds_read_b128 {v(D+4*jh,4)}, {v(T+6)} offset:{jh*16}', 't0')
for jh in range(2): q.op(f'ds_read_b128 {v(CB+8+4*jh,4)}, {v(V16)} offset:{WAC+(12+jh)*1024}')
for jh in range(2): q.op(f'ds_read_b128 {v(D+8+4*jh,4)}, {v(T+6)} offset:{128+jh*16}')
e(f's_mov_b32 {s(S_CC)}, 0')
e(f's_mov_b32 {s(S_CS)}, 0')
if OPT['SK']:
    e(f's_mov_b64 {s(S_CM,2)}, 0')
    e(f's_add_u32 {s(S_T0)}, {s(S_K)}, 1')
    e(f's_and_b32 {s(S_T0)}, {s(S_T0)}, 3')
    e(f'v_lshl_add_u32 {v(T+4)}, {s(S_T0)}, 11, {v(AB)}')
    e(f'v_xor_b32 {v(T+6)}, 64, {v(T+4)}')
if OPT['XM']: e(f's_mov_b64 {s(S_EX,2)}, -1')
e(f's_cmp_lg_u32 {s(S_M)}, 0')
q.wait('t0')
for c in (0, 2, 4, 6, 1, 3, 5, 7):
    x = CB + 8 if c == 6 else D if c & 1 else CB
    if c == 6: e('s_waitcnt lgkmcnt(0)')
    if c in (0, 6): al()
    for p in range(4): e(f'v_pk_fma_f32 {v(x+2*p,2)}, {v(WD+c*8+2*p,2)}, {v(D+8*(c&1)+2*p,2)}, {v(WRF(c)+2*p,2)}')
    for p in range(4): e(f'v_cvt_pk_bf16_f32 {v(WE+c*4+p)}, {v(x+2*p)}, {v(x+2*p+1)}')
    if c == 6:
        for t in range(4): e(f'ds_read_b128 {v(CB+4*t,4)}, {v(T+7)} offset:{256+64*t}')
    if c == OPT['SKP'] and OPT['SK']:
        e('s_waitcnt vmcnt(4)')
        for sx in range(2): e(f'ds_read_b128 {v(B+4*sx,4)}, {v(T+4+2*sx)}')
        al()
e('s_waitcnt lgkmcnt(0)')
e('s_cbranch_scc1 BP_X')
lab('NEXT')
dispatch('U', 1)
lab('EPI')
e(f's_and_b32 {s(S_T0)}, {s(S_PREV)}, 0x7f')
if H:
    e(f's_cmpk_ge_u32 {s(S_PREV)}, 0x1000')
    e(f's_cselect_b32 {s(S_T1)}, {H}, 0')
    e(f's_add_u32 {s(S_T0)}, {s(S_T0)}, {s(S_T1)}')
e(f'v_pk_add_f32 {v(T+4,2)}, {v(O,2)}, {v(O+2,2)}')
e(f'v_add_f32 {v(T+4)}, {v(T+4)}, {v(T+5)}')
e(f'v_lshl_add_u32 {v(T+5)}, {s(S_T0)}, 8, {v(AO)}')
e(f'v_mul_f32 {v(T+4)}, {s(S_INV)}, {v(T+4)}')
e(f's_and_b32 {s(S_T0)}, {s(S_PREV)}, 0x80')
e(f'v_cmp_class_f32_e64 {s(S_BAD,2)}, {v(T+4)}, {s(S_CLS)}')
for i in range(2): e(f'v_mov_b64 {v(O+2*i,2)}, 0')
e(f'ds_write_b32 {v(T+5)}, {v(T+4)}')
if OPT['FSLOW']: e('s_branch SLOW')
if not OPT['KILL']:
    e(f's_or_b32 {s(S_BAD)}, {s(S_BAD)}, {s(S_T0)}')
    e(f's_cmp_lg_u64 {s(S_BAD,2)}, 0')
    e('s_cbranch_scc1 SLOW')
lab('EPI_R')
e(f's_bitcmp1_b32 {s(S_CUR)}, 6')
e('s_cbranch_scc1 L_DONE')
lab('EPI_C')
e(f's_bfe_u32 {s(S_CC)}, {s(S_CUR)}, 0x40008')
e(f's_sub_u32 {s(S_CC)}, {s(S_CC)}, 2')
e(f's_mov_b32 {s(S_CS)}, 1')
if OPT['SK']: e(f's_mov_b64 {s(S_CM,2)}, -1')
if OPT['XM']:
    e(f's_lshr_b32 {s(S_T0)}, {s(S_CUR)}, 12')
    e(f's_lshl_b32 {s(S_EX)}, 0x20002, {s(S_T0)}')
    e(f's_sub_u32 {s(S_EX)}, {s(S_EX)}, 0x10001')
    e(f's_mov_b32 {s(S_EX+1)}, {s(S_EX)}')
dispatch('U', 1)
lab('PEV')
e(f's_cmp_eq_u32 {s(S_PS)}, 0')
e('s_cbranch_scc1 P_DR')
if PX:
    e(f's_cmp_eq_u32 {s(S_PS)}, 2')
    e('s_cbranch_scc1 P_FIX')
if OPT['TS_']:
    e(f'ds_read_b32 {v(TD)}, {v(TK)}')
    e('s_waitcnt lgkmcnt(0)')
lab('ADV')
e(f'v_readfirstlane_b32 {s(S_TP)}, {v(TD)}')
e(f's_mov_b32 {s(S_TP+1)}, 0')
e(f's_and_b32 {s(S_T0)}, {s(S_TP)}, 63')
e(f's_bfe_u32 {s(S_PC)}, {s(S_TP)}, 0x40008')
e('s_cbranch_scc0 AW')
if OPT['SMODE'] == 4:
    e(f's_cmp_lg_u32 {s(S_T0)}, {OPT["SEL"]}')
    e('s_cbranch_scc1 L_MS')
    e(f's_memrealtime {s(S_ST+2,2)}')
    e('s_waitcnt lgkmcnt(0)')
    lab('L_MS')
goff(S_PSOFF, S_T0, 3, 25600, S_T1)
if H:
    e(f's_lshr_b32 {s(S_T1)}, {s(S_TP)}, 12')
    e(f's_lshl4_add_u32 {s(S_T0)}, {s(S_T0)}, {s(S_T1)}')
    e(f'v_lshl_add_u32 {v(ALI)}, {s(S_T0)}, 4, {v(ALB)}')
else: e(f'v_lshl_add_u32 {v(ALI)}, {s(S_T0)}, 8, {v(ALB)}')
if OPT['NOMEM']: e(f's_mov_b32 {s(S_PSOFF)}, 0')
else: e(f's_add_u32 {s(S_PSOFF)}, {s(S_PSOFF)}, {s(S_WGH)}')
e(f's_add_u32 {s(S_PS1)}, {s(S_PSOFF)}, 1024')
if OPT['EG']:
    e(f's_and_b32 {s(S_T1)}, {s(S_TP)}, 0x7f')
    e(f's_cmp_ge_u32 {s(S_T1)}, {OPT["EG"]}')
    e('s_cselect_b64 vcc, -1, 0')
e(f's_lshl_b64 {s(S_BAD,2)}, {s(S_TP,2)}, {s(S_QN)}')
e(f's_or_b64 {s(S_Q,2)}, {s(S_Q,2)}, {s(S_BAD,2)}')
e(f's_add_u32 {s(S_QN)}, {s(S_QN)}, 16')
e(f's_mov_b32 {s(S_PS)}, 0')
e(f's_sub_u32 {s(S_PC)}, {s(S_PC)}, 3')
e('s_cbranch_scc1 P_2')
lab('P_RET')
dispatch('RET', 0)
lab('P_DR')
if not L3: e(f'v_add_u32 {v(ALI)}, 16, {v(ALI)}')
lab('P_D2')
draw()
e(f's_mov_b32 {s(S_PC)}, 1')
e(f's_mov_b32 {s(S_PS)}, 1')
dispatch('RET', 0)
lab('P_2')
e(f's_bitcmp1_b32 {s(S_TP)}, 6')
e('s_cbranch_scc0 P_D2')
e(f'v_mov_b32 {v(ALI)}, {FFB}')
e(f's_movk_i32 {s(S_PC)}, 0x100')
e('s_branch P_RET')
if OPT['EG']:
    for u in range(4):
        lab(f'LB_{u}')
        e('s_waitcnt vmcnt(4)')
        for sx in range(2): e(f'ds_read_b128 {v(B+4*sx,4)}, {v(AB+sx)} offset:{((u+1)%4)*2048}')
        e(f's_branch LR_{u}')
lab('DRAIN')
for x in sum(TAIL, []): e(x)
e(f's_bitcmp1_b32 {s(S_K)}, 0')
e(SCW); e(A3R)
e('s_waitcnt lgkmcnt(0)')
e('s_cbranch_scc1 DRAIN1')
for par in range(2):
    if par: lab('DRAIN1')
    for qq in range(4):
        e(PM(par, qq)); e('s_nop 1' if qq < 3 else 's_nop 2')
    e('s_branch EPI')

INLOOP[0] = False
lab('L_DONE')
stamp(6)
e(f's_lshl_b32 {s(S_T0)}, {s(S_WAVE)}, 11')
e(f's_add_u32 {s(S_T0)}, {s(S_T0)}, {OUT}')
e(f'v_lshl_add_u32 {v(T)}, {v(V16)}, 1, {s(S_T0)}')
e(f's_lshl_b32 {s(S_T0)}, {s(S_WAVE)}, {18 if MAP else 10}')
e('s_waitcnt lgkmcnt(0)')
e('s_barrier')
for i in range(2): e(f'ds_read_b128 {v(D+4*i,4)}, {v(T)} offset:{16*i}')
if H:
    e(f'v_cmp_le_u32 vcc, {OUT + NS*256}, {v(T)}')
    e('s_and_b64 exec, exec, vcc')
    e('s_cbranch_execz L_ST')
    for i in range(2): e(f'ds_read_b128 {v(D+8+4*i,4)}, {v(T)} offset:{H*256+16*i}')
    e('s_waitcnt lgkmcnt(0)')
    for i in range(4): e(f'v_pk_add_f32 {v(D+2*i,2)}, {v(D+2*i,2)}, {v(D+8+2*i,2)}')
    lab('L_ST')
    e('s_mov_b64 exec, -1')
e('s_waitcnt lgkmcnt(0)')
for p in range(4): e(f'v_cvt_pk_bf16_f32 {v(B+p)}, {v(D+2*p)}, {v(D+2*p+1)}')
e(f'buffer_store_dwordx4 {v(B,4)}, {v(V16)}, {s(SRD_O,4)}, {s(S_T0)} offen{POL[OPT["STP"]]}')
lab('L_FIN')
if OPT['STAMP']:
    e('s_waitcnt vmcnt(0)')
    stamp(7)
    if OPT['STAMP'] == 7:
        e(f's_sub_u32 {s(S_T0)}, {s(S_ST+2*(1 if OPT["SMODE"] == 4 else OPT["SEL"]))}, {s(S_ST)}')
        e(f's_lshl_b32 {s(S_T0)}, {s(S_T0)}, {1 if OPT["SMODE"] == 4 else 2}')
        if OPT['SMODE'] == 1:
            e(f's_sub_u32 {s(S_T0)}, {s(S_ST+8)}, {s(S_ST+6)}')
            e(f's_lshr_b32 {s(S_T0)}, {s(S_T0)}, 4')
        if OPT['SMODE'] == 2:
            e(f's_sub_u32 {s(S_T0)}, {s(S_ST+12)}, {s(S_ST+10)}')
        if OPT['SMODE'] == 3:
            e(f's_sub_u32 {s(S_T0)}, {s(S_ST+14)}, {s(S_ST)}')
            e(f's_lshl_b32 {s(S_T0)}, {s(S_T0)}, 1')
        if OPT['SELW'] >= 0:
            e(f's_cmp_eq_u32 {s(S_WAVE)}, {OPT["SELW"]}')
            e(f's_cselect_b32 {s(S_T0)}, {s(S_T0)}, 0')
        if OPT['SELG'] >= 0:
            e(f's_cmp_eq_u32 s2, {OPT["SELG"]}')
            e(f's_cselect_b32 {s(S_T0)}, {s(S_T0)}, 0')
        e(f's_add_u32 {s(S_T0)}, {s(S_T0)}, {OPT["SPIN"]}')
        lab('L_SPIN')
        e('s_sleep 1')
        e('s_memrealtime s[4:5]')
        e('s_waitcnt lgkmcnt(0)')
        e(f's_sub_u32 {s(S_T1)}, s4, {s(S_ST)}')
        e(f's_cmp_lt_u32 {s(S_T1)}, {s(S_T0)}')
        e('s_cbranch_scc1 L_SPIN')
    else:
        e('s_load_dwordx2 s[4:5], s[0:1], 72')
        e('s_waitcnt lgkmcnt(0)')
        e('s_mov_b32 s6, 0x1000000')
        e('s_mov_b32 s7, 0x20000')
        e(f's_mul_i32 {s(S_T0)}, s2, {NW}')
        e(f's_add_u32 {s(S_T0)}, {s(S_T0)}, {s(S_WAVE)}')
        if OPT['STAMP'] == 8:
            e(f's_lshl_b32 {s(S_T0)}, {s(S_T0)}, 8')
            e(f'v_lshrrev_b32 {v(T)}, 2, {v(V16)}')
            e(f'buffer_store_dword {v(TSV)}, {v(T)}, s[4:7], {s(S_T0)} offen')
        else:
            e(f's_lshl_b32 {s(S_T0)}, {s(S_T0)}, 5')
            e(f'v_mov_b32 {v(T+1)}, {s(S_T0)}')
            for i in range(8):
                e(f'v_mov_b32 {v(T)}, {s(S_ST+2*i)}')
                e(f'buffer_store_dword {v(T)}, {v(T+1)}, s[4:7], 0 offen offset:{4*i}')
e('s_endpgm')

lab('AW')
e('s_sleep 1')
e(f'ds_read_b32 {v(TD)}, {v(TK)}')
e('s_waitcnt lgkmcnt(0)')
e('s_branch ADV')
lab('DRAW_P')
draw()
e(f's_add_u32 {s(S_PC)}, {s(S_PC)}, 2')
e(f's_mov_b32 {s(S_PS)}, 1')
if not OPT['TS_']:
    e('s_waitcnt lgkmcnt(0)')
    e(f'ds_read_b32 {v(TD)}, {v(TK)}')
e('s_branch DRET_P')
if PX:
    lab('P_FIX')
    e(f's_mov_b32 {s(S_RING)}, {s(S_P0)}')
    e(f's_mov_b32 m0, {s(S_RING)}')
    e(f'v_mov_b32 {v(ALI)}, {v(TD)}')
    e(f's_and_b32 {s(S_PS)}, {s(S_MO)}, 1')
    e(f's_lshr_b32 {s(S_PC)}, {s(S_MO)}, 1')
    e(f's_sub_u32 {s(S_PC)}, {s(S_PC)}, 1')
    e('s_cbranch_scc1 PEV')
    e(f'v_add_u32 {v(ALI)}, 16, {v(ALI)}')
    e('s_branch RET_1')
lab('BP_X')
if OPT['STAMP']:
    e(f's_cmp_eq_u32 {s(S_M)}, 3')
    e('s_cbranch_scc1 P_END')
e(f's_cmp_eq_u32 {s(S_M)}, 1')
e(f's_mov_b32 {s(S_M)}, 0')
e('s_cbranch_scc1 SLOW_W')
e('s_branch EPI_C')

lab('SLOW')
ACC = WR; BS_ = WR + 16; Y = WR + 24; Z = WR + 28; WX = WR + 32
e(f's_bitcmp1_b32 {s(S_PREV)}, 6')
e('s_cbranch_scc1 EPI_R')
if OPT['STAMP'] == 9: e(f's_add_u32 {s(S_ST)}, {s(S_ST)}, 1')
e(f's_mov_b32 {s(S_SV)}, {s(S_CUR)}')
e(f's_mov_b32 {s(S_CUR)}, {s(S_PREV)}')
e(f's_mov_b32 {s(S_M)}, 1')
e(f'ds_write_b32 {v(T+5)}, {v(O)}')
e('s_branch BPF')
lab('SLOW_W')
e('s_load_dwordx2 s[4:5], s[0:1], 40')
e(f'v_lshrrev_b32 {v(Y)}, 1, {v(G16)}')
e('s_waitcnt lgkmcnt(0)')
for t in range(4): e(f'global_load_dwordx2 {v(BS_+2*t,2)}, {v(Y)}, s[4:5] offset:{32*t}')
e('s_waitcnt vmcnt(0)')
for i in range(8):
    e(f'v_lshlrev_b32 {v(WX+2*i)}, 16, {v(BS_+i)}')
    e(f'v_and_b32 {v(WX+2*i+1)}, 0xffff0000, {v(BS_+i)}')
e(f's_mov_b32 {s(S_CUR)}, {s(S_SV)}')
e(f's_and_b32 {s(S_T0)}, {s(S_PREV)}, 63')
e(f's_mov_b32 {s(S_T1)}, 0' if OPT['XM'] else f's_lshr_b32 {s(S_T1)}, {s(S_PREV)}, 12')
e(f's_bfe_u32 {s(S_T3)}, {s(S_PREV)}, 0x40008')
e(f's_lshl4_add_u32 {s(S_T1)}, {s(S_T0)}, {s(S_T1)}')
e(f's_lshl_b32 {s(S_T1)}, {s(S_T1)}, 4')
e(f's_add_u32 {s(S_SV)}, {s(S_T1)}, {LIST}')
e(f's_bitcmp1_b32 {s(S_PREV)}, 7')
e(f's_cselect_b64 {s(S_TP,2)}, -1, 0')
e(f's_cselect_b32 {s(S_T3)}, 13, {s(S_T3)}')
e(f'v_bfe_u32 {v(Y)}, {v(V16)}, 4, 4')
e(f'v_mov_b32 {v(Y+3)}, {v(G16)}')
for i in range(8): e(f'v_mov_b64 {v(ACC+2*i,2)}, 0')
goff(S_T1, S_T0, 3, 25600, S_T2)
e(f's_add_u32 {s(S_T1)}, {s(S_T1)}, {s(S_WGH)}')
goff(S_T2, S_T0, 3, 400, S_BAD)
lab('SLOW_L')
e(f'v_add_u32 {v(Y+1)}, {s(S_SV)}, {v(Y)}')
e(f'ds_read_u8 {v(Y+2)}, {v(Y+1)}')
e('s_waitcnt lgkmcnt(0)')
e(f'v_cndmask_b32_e64 {v(Y+2)}, {v(Y+2)}, {v(Y)}, {s(S_TP,2)}')
e(f'v_lshlrev_b32 {v(Y+1)}, 1, {v(Y+2)}')
for sx in range(2): e(f'buffer_load_dwordx4 {v(BS_+4*sx,4)}, {v(Y+2,2)}, {s(SRD_H,4)}, {s(S_T1)} idxen offen offset:{1024+64*sx}')
e(f'buffer_load_ushort {v(Y+1)}, {v(Y+1)}, {s(SRD_M,4)}, {s(S_T2)} offen')
e(f'v_cmp_gt_u32 vcc, 200, {v(Y+2)}')
e(f'v_add_u32 {v(Y)}, 16, {v(Y)}')
e('s_waitcnt vmcnt(0)')
for t in range(4):
    for sx in range(2): e(MM1(t, sx, BS_))
e(f'v_lshlrev_b32 {v(Y+1)}, 16, {v(Y+1)}')
e(f'v_cndmask_b32 {v(Y+1)}, 0, {v(Y+1)}, vcc')
e('s_nop 7')
for i in range(16): e(EX(i))
for i in range(16): e(f'v_add_f32 {v(D+i)}, 1.0, {v(D+i)}')
for i in range(16): e(f'v_rcp_f32 {v(D+i)}, {v(D+i)}')
e(f'v_mul_f32 {v(Z)}, {v(D)}, {v(WX)}')
for i in range(1, 16): e(f'v_fmac_f32 {v(Z)}, {v(D+i)}, {v(WX+i)}')
e(f'v_mov_b32 {v(Z+1)}, {v(Z)}')
e('s_nop 1')
e(f'v_permlane32_swap_b32 {v(Z)}, {v(Z+1)}')
e(f'v_add_f32 {v(Z)}, {v(Z)}, {v(Z+1)}')
e(f'v_mov_b32 {v(Z+1)}, {v(Z)}')
e('s_nop 1')
e(f'v_permlane16_swap_b32 {v(Z)}, {v(Z+1)}')
e(f'v_add_f32 {v(Z)}, {v(Z)}, {v(Z+1)}')
e(f'v_add_f32 {v(Z)}, {s(S_B2)}, {v(Z)}')
e(f'v_mul_f32 {v(Z)}, {v(Z)}, {v(Y+1)}')
for i in range(8):
    e(f'v_lshlrev_b32 {v(Z+1)}, 16, {v(BS_+i)}')
    e(f'v_and_b32 {v(Z+2)}, 0xffff0000, {v(BS_+i)}')
    e(f'v_fmac_f32 {v(ACC+2*i)}, {v(Z)}, {v(Z+1)}')
    e(f'v_fmac_f32 {v(ACC+2*i+1)}, {v(Z)}, {v(Z+2)}')
e(f's_sub_u32 {s(S_T3)}, {s(S_T3)}, 1')
e(f's_cmp_lg_u32 {s(S_T3)}, 0')
e('s_cbranch_scc1 SLOW_L')
e(f'v_readfirstlane_b32 {s(S_T0)}, {v(T+5)}')
e('s_nop 1')
e(f'v_lshl_add_u32 {v(Z)}, {v(G16)}, 1, {s(S_T0)}')
for i in range(16): e(f'ds_add_f32 {v(Z)}, {v(ACC+i)} offset:{128*(i>>3)+4*(i&7)}')
e('s_waitcnt lgkmcnt(0)')
e(f's_bitcmp1_b32 {s(S_CUR)}, 6')
e('s_cbranch_scc1 L_DONE')
wr_reads()
e(f's_mov_b32 {s(S_M)}, 2')
e('s_branch BPF')
lab('L_END')
e('s_endpgm')
L.append(f""".section .rodata,"a"
.p2align 6
.amdhsa_kernel {KN}
  .amdhsa_next_free_vgpr {NVGPR}
  .amdhsa_next_free_sgpr {NSGPR}
  .amdhsa_accum_offset {(NVGPR+3)//4*4}
  .amdhsa_group_segment_fixed_size 0
  .amdhsa_kernarg_size 80
  .amdhsa_user_sgpr_count 2
  .amdhsa_user_sgpr_kernarg_segment_ptr 1
  .amdhsa_system_sgpr_workgroup_id_x 1
.end_amdhsa_kernel""")

text = '\n'.join(L) + '\n'
outs = [a for a in sys.argv[1:] if '=' not in a]
if outs:
    open(outs[0], 'w').write(text)
    import hazard
    n = hazard.check(text, verbose=not OPT['KILL'])
    print(f'{outs[0]}: vgpr={NVGPR} lds={LDS_BYTES} hazards={n}', file=sys.stderr)
else:
    sys.stdout.write(text)
```

```python
import sys, os
sys.path.insert(0, os.path.join(os.path.dirname(os.path.abspath(__file__)), 'exp'))

OPT = dict(STAMP=0, NOMEM=0, KILL=0, HP=1, MP=1, TP=1, STP=1, CPF=1, YP=0, SPIN=0, SEL=0, SELW=-1, SELG=-1, SMODE=0, FSLOW=0, BOOST=40, SEC=0, PP=1, RAMP=0xc000c000, SP=2, T1=1, AL=1, LP=0, SX=0, LA=3, VW=2, H=0, MM=2, EW=0, C2=1, P2=1, MAP=1, LW=2, XM=1, TS_=1, DS=60, PX=0, P3=0, SK=0, SKP=6, EG=0, EG0=0, CW=5, CN=3, CS=6)
for a in sys.argv[1:]:
    if '=' in a:
        k, v_ = a.split('='); assert k in OPT, k; OPT[k] = int(v_, 0)
NW = 8; NBW = 64; NWG = 16384 // NBW
NPAIR = [(OPT['RAMP'] >> 4*w) & 15 for w in range(NW)]
assert sum(NPAIR) == 24 and max(NPAIR) <= 14
LA = OPT['LA']; VW = OPT['VW'] if OPT['VW'] >= 0 else 2*(LA-2)
H = OPT['H']; NS = NBW - H
assert H % 4 == 0 and H <= 2*NPAIR[7]
MAP = OPT['MAP']
WB = 8 if MAP else NBW
PX = OPT['PX']
LP_ = LA + PX
assert LP_ <= 4
POL = ['', ' nt', ' sc1', ' sc0 sc1', ' sc1 nt', ' sc0 nt', ' sc0 sc1 nt', ' sc0']
NL2E = 0xBFB8AA3B

WAC = 0
W2T = 16384; B1T = W2T + 256
FFB = W2T + 512
DESC = FFB + 256
TKT = DESC + 448; SCC_ = TKT + 4
RING = DESC + 512
TAB = RING + NW * 8192
TS = 528
LIST = TAB + NBW * TS
OUT = LIST + NBW * 256
SCR = OUT + (NBW + H + 1) * 256
STG = LIST + 16 * 256
if OPT['P3']: STG = SCR + NW * 128 - 24576
LDS_BYTES = max(SCR + NW * 128, STG + 32768)
DUM = LDS_BYTES
LDS_BYTES += 2048 * PX
assert LDS_BYTES <= 163840 and RING % 256 == 0 and STG % 128 == 0

L = []
INLOOP = [False]
def e(s):
    K = OPT['KILL'] if INLOOP[0] else 0
    if K & 256 and s.startswith(('v_exp', 'v_mfma')): s = 's_nop 0'
    if K & 256 and s.startswith(('v_pk', 'v_rcp', 'v_cvt')): return
    if K & 1024 and s.startswith('v_pk') and INLOOP[0] == 1: return
    if K & 1 and s.startswith('v_mfma') and '4x4x4' in s: s = 's_nop 0'
    if K & 2 and INLOOP[0] == 2 and s.startswith(('v_pk_fma', 'v_cvt')): return
    if K & 4 and INLOOP[0] == 2 and s.startswith('ds_read_b128') and f', {v(V16)} ' in s: return
    if K & 8 and s.startswith('v_mfma') and '4x4x4' not in s: s = 's_nop 0'
    if K & 8 and s.startswith('v_exp'): s = s.split(',')[0] + f', v{int(s.split("v")[-1]) - D + WE}'
    if K & 64 and s.startswith('buffer_load'): return
    if K & 128 and s.startswith('ds_read_u8'): return
    if K & 16 and INLOOP[0] == 1 and s.startswith('ds_read_b128'): return
    if K & 32 and INLOOP[0] == 1 and s.startswith('ds_read_b64_tr'): return
    if K & 2048 and s.startswith('v_exp'): s = 's_nop 0'
    if K and s.startswith('s_cbranch_vccnz SLOW'): return
    L.append('    ' + s)
def lab(s): L.append(s + ':')
def al():
    if OPT['AL']: L.append('    .p2align 3')

_v = [0]
def valloc(n, al=1):
    b = (_v[0] + al - 1) // al * al
    _v[0] = b + n
    return b
T = valloc(8, 2)
WD = valloc(64, 4); WE = valloc(32, 4); D = valloc(16, 4); W2 = valloc(16, 4); CB = valloc(16, 4)
B = valloc(8, 4); B3 = valloc(16, 4); O = valloc(4, 4); WR = valloc(56, 4)
A3 = valloc(2, 2); IDX = valloc(4, 2); AB = valloc(2); AT = valloc(2)
ALI = valloc(1); ALB = valloc(1); ASR = valloc(1); ASW = valloc(1); AO = valloc(1); V16 = valloc(1); G16 = valloc(1)
TK = valloc(1); TD = valloc(1)
X = WR; MC = WR + 24; RJ = WR + 28; CV = WR + 32; HB = WR + 33; FF = WR + 34; PA = WR + 36; AD = WR + 46
TSV = valloc(1) if OPT['STAMP'] == 8 else None
NVGPR = _v[0]
assert NVGPR <= 256, NVGPR

def v(n, c=1): return f'v{n}' if c == 1 else f'v[{n}:{n+c-1}]'
def s(n, c=1): return f's{n}' if c == 1 else f's[{n}:{n+c-1}]'

SRD_H, SRD_M, SRD_O, SRD_T, SRD_W1, SRD_C = 20, 24, 28, 32, 36, 40
S_RA = 32; S_RB = 34; S_RC = 36
S_B2Q = 44; S_INV = 46
(S_WAVE, S_WGH, S_PC, S_PSOFF, S_CUR, S_PREV, S_RING, S_PS, S_T0, S_T1, S_T2, S_T3, S_L2E, S_ONE, S_CC, S_B2) = range(48, 64)
S_BAL = 4
S_BAD = 64
S_TP = 66
S_Q = 68
S_CLS = 45; S_NP = 47; S_P0 = 70; S_MO = 71; S_PS1 = 72; S_K = 73; S_SV = 74; S_QN = 75; S_CS = 76; S_M = 77; S_EX = 78; S_DC = 42; S_CM = 40
L3 = OPT['LW'] == 3
S_PCU = None
if L3: S_PSOFF = 32; S_PS1 = 33; S_PCU = 34
NSGPR = 80
S_ST = 80
if OPT['STAMP']: NSGPR = 100
def bstamp():
    if OPT['STAMP'] == 8:
        e(f's_memrealtime {s(S_ST+2,2)}')
        e('s_waitcnt lgkmcnt(0)')
        e(f's_lshl_b64 exec, 1, {s(S_ST+4)}')
        e(f'v_mov_b32 {v(TSV)}, {s(S_ST+2)}')
        e('s_mov_b64 exec, -1')
        e(f's_add_u32 {s(S_ST+4)}, {s(S_ST+4)}, 1')
def tic(i, op='s_sub_u32'):
    if OPT['STAMP'] == 9 and OPT['SEC'] >> i & 1:
        e(f's_cselect_b32 {s(S_ST+1)}, 1, 0')
        e('s_memtime s[98:99]')
        e('s_waitcnt lgkmcnt(0)')
        e(f'{op} {s(S_ST+2*i)}, {s(S_ST+2*i)}, s98')
        e(f's_cmp_lg_u32 {s(S_ST+1)}, 0')
def toc(i): tic(i, 's_add_u32')
def pst(mode, i):
    if OPT['STAMP'] == mode: e(f's_memrealtime {s(S_ST+2*i,2)}')
def stamp(i):
    if OPT['STAMP'] in (3, 4):
        if i == 0: e(f's_memrealtime {s(S_ST,2)}')
        if i == 7: e('s_waitcnt lgkmcnt(0)')
        return
    if OPT['STAMP'] and i == 0: e(f's_mov_b32 {s(S_ST+17)}, 0')
    if OPT['STAMP'] == 9:
        if i == 0:
            for j in range(8): e(f's_mov_b32 {s(S_ST+2*j)}, 0')
        return
    if OPT['STAMP'] == 8:
        if i == 0:
            e(f's_mov_b32 {s(S_ST+4)}, 0')
            e(f'v_mov_b32 {v(TSV)}, 0')
            bstamp()
        if i in (5, 7): bstamp()
        return
    if OPT['STAMP']:
        if (OPT['STAMP'] == 2 or OPT['SMODE']) and i in (3, 4): return
        e(f's_memrealtime {s(S_ST+2*i,2)}')
        if (OPT['STAMP'] == 2 or OPT['SMODE']) and i in (5, 6): e(f's_memtime {s(S_ST+2*(i-2),2)}')
        e('s_waitcnt lgkmcnt(0)')

KN = 'standalone__sequential_behavior_din__recsys_kernel'

class LQ:
    def __init__(self): self.q = []
    def op(self, text, tag=None): e(text); self.q.append(tag)
    def wait(self, tag):
        i = max(j for j, t in enumerate(self.q) if t == tag)
        e(f's_waitcnt lgkmcnt({min(len(self.q) - 1 - i, 15)})')

def M16(d, a, b, c): return f'v_mfma_f32_16x16x32_bf16 {v(d,4)}, {v(a,4)}, {v(b,4)}, ' + (v(c,4) if c is not None else '0')
def MM1(t, sx, b=None): return M16(D+4*t, WE+4*(2*t+sx), (B if b is None else b)+4*sx, D+4*t if sx else CB+4*t)
def EX(i): return f'v_exp_f32 {v(D+i)}, {v(D+i)}'
def M0S(u, c): return f's_add_u32 m0, {s(S_RING)}, {u*2048 + c*1024}'
def DMA(r, c=0):
    so = (S_PSOFF if c else S_PS1) + (2 if L3 and INLOOP[0] else 0)
    return f'buffer_load_dwordx4 {v(r,2)}, {s(SRD_H,4)}, {s(so)} idxen offen{" offset:1024" if c else ""}{POL[OPT["HP"]]} lds'
def IDXR(r, off): return f'ds_read_u8 {v(r)}, {v(ALI)} offset:{off}'
def HI():
    if OPT['YP']: e('s_setprio 1')
def LO():
    if OPT['YP']: e('s_setprio 0')
VIRT = 0x240
def goff(dst, b, sh, row, tmp):
    if MAP: e(f's_lshr_b32 {s(tmp)}, {s(b)}, {sh}')
    e(f's_mul_i32 {s(dst)}, {s(b)}, {row}')
    if MAP:
        e(f's_mul_i32 {s(tmp)}, {s(tmp)}, {255*(row << sh)}')
        e(f's_add_u32 {s(dst)}, {s(dst)}, {s(tmp)}')
def WRF(c): return CB + 8 if c == 6 else WR + 8*(c if c < 6 else 6)

L.append(f'''; Kernarg layout for this problem (80 bytes, ptrs only, base s[0:1]):
; @launch grid=({NWG},1,1) block=({NW*64},1,1) lds={LDS_BYTES}
.amdgcn_target "amdgcn-amd-amdhsa--gfx950"
.text
.globl {KN}
.p2align 8
.type {KN},@function
{KN}:''')

LANE = O; VG = O + 1; VN = O + 2; LMX = O + 3
TB = B3
TR = CB; TRB = CB + 4; B1A = CB + 6; TW = CB + 7; TRW = CB + 8; PB = CB + 9; SM = CB + 10; JUNK = CB + 14; WW = CB + 15
IX2 = B; WA = W2; TT = W2 + 4; AC = WR + 38; TF = T + 3
def XR(i): return X + 4*i if i < 6 else WD + 32 + 4*(i-6)
def MLD(dst, off=0): return f'buffer_load_dwordx4 {v(dst,4)}, {v(LMX)}, {s(SRD_M,4)}, {s(S_MO)} offen offset:{off}{POL[OPT["MP"]]}'
def desc(dst, cw, add, umin):
    e(f's_and_b32 {s(S_T3)}, {s(cw)}, 0xff')
    e(f's_lshr_b32 {s(cw)}, {s(cw)}, 8')
    e(f's_add_u32 {s(S_T3)}, {s(S_T3)}, 15')
    if OPT['XM']:
        e(f's_and_b32 {s(dst)}, {s(S_T3)}, 15')
        e(f's_lshl_b32 {s(dst)}, {s(dst)}, 12')
        e(f's_or_b32 {s(cw)}, {s(cw)}, {s(dst)}')
    e(f's_lshr_b32 {s(S_T3)}, {s(S_T3)}, 4')
    e(f's_max_u32 {s(S_T3)}, {s(S_T3)}, {umin}')
    e(f's_lshl1_add_u32 {s(dst)}, {s(S_WAVE)}, {s(cw)}')
    e(f's_lshl_b32 {s(cw)}, {s(S_T3)}, 8')
    e(f's_or_b32 {s(dst)}, {s(dst)}, {s(cw)}')
    if add: e(f's_or_b32 {s(dst)}, {s(dst)}, 1')
def tile_fill(k, part=3):
    rr = (IDX, IDX+2, IX2, IX2+2)[:2*(LP_-2) if k else 4]
    if part & 1:
        for c, r in enumerate(rr): e(IDXR(r, 32*k+8*c))
        e(M0S(2*k, 0))
    if part & 2:
        for c, r in enumerate(rr):
            if part & 1: e(f's_waitcnt lgkmcnt({len(rr)-1-c})')
            e(DMA(r, c & 1))
            if c == 1 and len(rr) > 2:
                e(M0S(2*k+1, 0))
                if not part & 1: e('s_nop 0')
UNI = MAP and all(n in (0, max(NPAIR)) for n in NPAIR) and max(NPAIR) % 4 == 0
def more_masks():
    if UNI:
        e(f's_cmp_eq_u32 {s(S_NP)}, 0')
        e('s_cbranch_scc1 P_MJ')
        e(f's_mul_i32 {s(S_MO)}, {s(S_P0)}, {2048*400//8}')
        for i in range(max(NPAIR)):
            if i and i % 4 == 0: e(f's_add_u32 {s(S_MO)}, {s(S_MO)}, {2048*400}')
            e(MLD(XR(i), 800*(i % 4)))
        lab('P_MJ')
        return
    for i in range(max(NPAIR)):
        e(f's_cmp_le_u32 {s(S_NP)}, {i}')
        e('s_cbranch_scc1 P_MJ')
        if MAP:
            e(f's_lshr_b32 {s(S_T0)}, {s(S_P0)}, 1')
            if i: e(f's_add_u32 {s(S_T0)}, {s(S_T0)}, {i}')
            goff(S_MO, S_T0, 2, 800, S_T3)
        assert MAP or i < 6
        e(MLD(XR(i), 0 if MAP else 800*i))
    lab('P_MJ')
def swz(dst, src):
    e(f'v_bfrev_b32 {v(dst)}, {v(src)}')
    e(f'v_lshrrev_b32 {v(dst)}, 28, {v(dst)}')
    e(f'v_and_b32 {v(dst)}, 6, {v(dst)}')
def wr_reads():
    for c in (0, 2, 4, 1, 3, 5, 7):
        for jh in range(2): e(f'ds_read_b128 {v(WRF(c)+4*jh,4)}, {v(V16)} offset:{WAC+(c*2+jh)*1024}')

e(f's_cmpk_ge_u32 s2, {NWG}')
e('s_cbranch_scc1 L_END')
stamp(0)
e('s_load_dwordx16 s[4:19], s[0:1], 0')
if OPT['EW']:
    e('s_waitcnt lgkmcnt(0)')
    stamp(3)
    _s3 = stamp
    def stamp(i):
        if i != 3: _s3(i)
if OPT['PP']: e('s_setprio 3')
e(f'v_lshrrev_b32 {v(T+1)}, 6, v0')
e(f'v_and_b32 {v(LANE)}, 63, v0')
e(f'v_readfirstlane_b32 {s(S_WAVE)}, {v(T+1)}')
if OPT['CPF']:
    e(f's_getpc_b64 {s(SRD_C,2)}')
    lab('L_PC')
    e(f's_sub_u32 {s(S_T0)}, {s(S_WAVE)}, {OPT["CW"]}')
    e(f's_cmp_ge_u32 {s(S_T0)}, {OPT["CN"]}')
    e('s_cbranch_scc1 P_NC')
    e(f's_mov_b32 {s(SRD_C+2)}, L_END-L_PC')
    e(f's_mov_b32 {s(SRD_C+3)}, 0x20000')
    e(f'v_subrev_u32 {v(JUNK)}, {64*OPT["CW"]}, v0')
    e(f'v_lshlrev_b32 {v(JUNK)}, {OPT["CS"]}, {v(JUNK)}')
    e(f'buffer_load_dword {v(JUNK)}, {v(JUNK)}, {s(SRD_C,4)}, 0 offen')
    lab('P_NC')
e(f'v_and_b32 {v(T+2)}, 31, v0')
e(f'v_bfe_u32 {v(T+3)}, v0, 5, 1')
e(f'v_cmp_gt_u32 vcc, 25, {v(T+2)}')
e(f'v_mul_u32_u24 {v(T+4)}, 400, {v(T+3)}')
e(f'v_lshl_add_u32 {v(LMX)}, {v(T+2)}, 4, {v(T+4)}')
e(f'v_bfrev_b32 {v(T+4)}, 8')
e(f'v_cndmask_b32 {v(LMX)}, {v(T+4)}, {v(LMX)}, vcc')
e(f's_mul_i32 {s(S_T1)}, s2, {WB*400}')
e(f's_sub_u32 {s(SRD_M+2)}, {16384*400}, {s(S_T1)}')
goff(S_MO, S_WAVE, 2, 800, S_T3)
e(f's_mov_b32 {s(SRD_M+3)}, 0x20000')
e(f's_lshl_b32 {s(S_SV)}, {s(S_WAVE)}, 12')
e(f's_lshl_b32 {s(S_PREV)}, s2, {10 if MAP else 13}')
e(f'v_lshlrev_b32 {v(V16)}, 4, {v(LANE)}')
e(f'v_lshlrev_b32 {v(WA)}, 1, {v(LANE)}')
e(f'v_and_b32 {v(WA)}, 32, {v(WA)}')
e(f'v_xor_b32 {v(WA)}, {v(WA)}, {v(V16)}')
e(f'v_xor_b32 {v(WA+1)}, 64, {v(WA)}')
e(f's_mov_b32 {s(SRD_W1+2)}, 32768')
e(f's_mov_b32 {s(SRD_W1+3)}, {s(SRD_M+3)}')
e(f's_lshl_b32 {s(S_T2)}, {s(S_WAVE)}, {18 if MAP else 10}')
e(f's_sub_u32 {s(SRD_T+2)}, {16384*128}, {s(S_PREV)}')
e(f's_mov_b32 {s(SRD_T+3)}, {s(SRD_M+3)}')
e(f's_add_u32 m0, {s(S_SV)}, {STG}')
e(f'v_and_b32 {v(VN)}, 15, {v(LANE)}')
e(f'v_lshrrev_b32 {v(VG)}, 4, {v(LANE)}')
e(f'v_lshlrev_b32 {v(G16)}, 4, {v(VG)}')
e(f'v_mul_u32_u24 {v(RJ)}, 0x80008, {v(T+2)}')
e(f'v_lshrrev_b32 {v(IDX)}, 3, {v(LANE)}')
e(f'v_add_u32 {v(RJ)}, 0x10000, {v(RJ)}')
e(f'v_cmp_gt_u32 vcc, 32, {v(LANE)}')
e('s_waitcnt lgkmcnt(0)')
stamp(1)
e(f's_add_u32 {s(SRD_M)}, s8, {s(S_T1)}')
e(f's_addc_u32 {s(SRD_M+1)}, s9, 0')
e(f's_mov_b64 {s(SRD_W1,2)}, s[10:11]')
e(MLD(MC))
pst(4, 1)
if OPT['PP']: e('s_setprio 0')
e(f's_add_u32 {s(SRD_T)}, s4, {s(S_PREV)}')
e(f's_addc_u32 {s(SRD_T+1)}, s5, 0')
e(f's_load_dword {s(S_B2)}, s[16:17], 0')
e(f's_cmp_lg_u32 {s(S_WAVE)}, 0')
e('s_cbranch_scc1 P_LJ')
e(f'v_mov_b32 {v(SM)}, s12')
e(f'v_mov_b32 {v(SM+1)}, s13')
e(f'v_mov_b32 {v(SM+2)}, s14')
e(f'v_mov_b32 {v(SM+3)}, s15')
e(f'v_lshlrev_b32 {v(T+4)}, 2, {v(T+2)}')
e(f'v_cndmask_b32 {v(SM)}, {v(SM)}, {v(SM+2)}, vcc')
e(f'v_cndmask_b32 {v(SM+1)}, {v(SM+1)}, {v(SM+3)}, vcc')
e(f'v_add_co_u32 {v(SM)}, vcc, {v(SM)}, {v(T+4)}')
e('s_nop 1')
e(f'v_addc_co_u32 {v(SM+1)}, vcc, 0, {v(SM+1)}, vcc')
e(f'global_load_dword {v(SM)}, {v(SM,2)}, off')
lab('P_LJ')
loads = [f'buffer_load_dwordx4 {v(TT,4)}, {v(V16)}, {s(SRD_T,4)}, {s(S_T2)} offen{POL[OPT["TP"]]}']
loads += [f'buffer_load_dwordx4 {v(WA+(c&1))}, {s(SRD_W1,4)}, {s(S_SV)} offen offset:{1024*c} lds' for c in range(4)]
n0 = len(L)
e(f's_lshl1_add_u32 {s(S_RING)}, {s(S_SV)}, {RING}')
e(f's_mul_i32 {s(S_WGH)}, s2, {WB*25600}')
e(f's_lshl_b32 {s(S_T1)}, {s(S_WAVE)}, 9')
e(f'v_add_u32 {v(ALB)}, {LIST}, {v(IDX)}')
e(f'v_add_u32 {v(ALI)}, {s(S_T1)}, {v(ALB)}')
e(f's_add_u32 {s(S_T0)}, {s(S_T1)}, {LIST}')
for i in range(1, 4): e(f'v_add_u32 {v(RJ+i)}, 0x{0x20002*i:x}, {v(RJ)}')
e(f's_sub_u32 {s(SRD_H)}, s6, 1024')
e(f's_subb_u32 {s(SRD_H+1)}, s7, 0')
e(f's_or_b32 {s(SRD_H+1)}, {s(SRD_H+1)}, 0x800000')
e(f's_movk_i32 {s(SRD_H+2)}, 200')
e(f's_mov_b32 {s(SRD_H+3)}, {s(SRD_M+3)}')
e(f's_movk_i32 {s(S_ONE)}, 0x3f80')
e(f'v_lshrrev_b32 {v(PA)}, 1, {v(V16)}')
e(f'v_and_b32 {v(HB)}, 0x100, {v(PA)}')
e(f'v_mov_b64 {v(FF,2)}, -1')
e(f'v_lshlrev_b32 {v(AO)}, 2, {v(LANE)}')
swz(T+2, IDX)
e(f'v_xor_b32 {v(T+2)}, {v(T+2)}, {v(LANE)}')
e(f'v_and_b32 {v(T+2)}, 7, {v(T+2)}')
e(f'v_mul_u32_u24 {v(TW)}, {TS}, {v(IDX)}')
for r in (IDX+1, IDX+3, IX2+1, IX2+3): e(f'v_lshlrev_b32 {v(r)}, 4, {v(T+2)}')
e(f's_add_u32 {s(SRD_O)}, s18, {s(S_PREV)}')
e(f's_addc_u32 {s(SRD_O+1)}, s19, 0')
e(f's_sub_u32 {s(SRD_O+2)}, {16384*128}, {s(S_PREV)}')
e(f's_mov_b32 {s(SRD_O+3)}, {s(SRD_M+3)}')
e(f's_mov_b32 {s(S_L2E)}, 0x{NL2E:08x}')
e(f's_mov_b32 {s(S_DC)}, 0x{(127-OPT["DS"]) << 23:08x}')
e(f's_mov_b32 {s(S_INV)}, 0x{(127-OPT["BOOST"]) << 23:08x}')
goff(S_PSOFF, S_WAVE, 2, 51200, S_T3)
if OPT['NOMEM']: e(f's_mov_b32 {s(S_PSOFF)}, 0')
else: e(f's_add_u32 {s(S_PSOFF)}, {s(S_PSOFF)}, {s(S_WGH)}')
e(f's_add_u32 {s(S_PS1)}, {s(S_PSOFF)}, 1024')
swz(T+2, VN)
e(f'v_xor_b32 {v(T+2)}, {v(T+2)}, {v(VG)}')
e(f'v_lshl_add_u32 {v(T+2)}, {v(T+2)}, 4, {s(S_RING)}')
e(f'v_lshl_add_u32 {v(AB)}, {v(VN)}, 7, {v(T+2)}')
e(f'v_xor_b32 {v(AB+1)}, 64, {v(AB)}')
e(f'v_and_b32 {v(T+3)}, 3, {v(LANE)}')
e(f'v_bfe_u32 {v(T+2)}, {v(LANE)}, 2, 2')
e(f'v_lshlrev_b32 {v(T+7)}, 3, {v(T+3)}')
e(f'v_lshl_add_u32 {v(T+7)}, {v(T+2)}, 7, {v(T+7)}')
e(f'v_and_b32 {v(T+6)}, 8, {v(LANE)}')
e(f'v_lshlrev_b32 {v(T+6)}, 3, {v(T+6)}')
e(f'v_lshl_add_u32 {v(AT)}, {v(VG)}, 5, {v(T+7)}')
e(f'v_xor_b32 {v(AT)}, {v(AT)}, {v(T+6)}')
e(f'v_add_u32 {v(AT)}, {s(S_RING)}, {v(AT)}')
e(f'v_xor_b32 {v(AT+1)}, 32, {v(AT)}')
e(f's_lshl_b32 {s(S_T1)}, {s(S_WAVE)}, 7')
e(f's_add_u32 {s(S_T1)}, {s(S_T1)}, {SCR}')
e(f'v_lshl_add_u32 {v(ASW)}, {v(T+2)}, 2, {v(VG)}')
e(f'v_lshl_add_u32 {v(ASW)}, {v(ASW)}, 2, {v(T+3)}')
e(f'v_lshl_add_u32 {v(ASW)}, {v(ASW)}, 1, {s(S_T1)}')
e(f'v_lshl_add_u32 {v(ASR)}, {v(VN)}, 3, {s(S_T1)}')
e(f'v_and_b32 {v(T+6)}, 0x60, {v(AO)}')
e(f'v_or_b32 {v(T+6)}, {v(T+6)}, {v(T+7)}')
e(f'v_lshl_add_u32 {v(TR)}, {v(VG)}, 10, {v(T+6)}')
e(f's_mul_i32 {s(S_T1)}, {s(S_WAVE)}, 0x1010')
e(f's_and_b32 {s(S_T1)}, {s(S_T1)}, 0x1060')
e(f'v_xor_b32 {v(TRW)}, {s(S_T1)}, {v(TR)}')
e(f'v_add_u32 {v(TR)}, {STG}, {v(TR)}')
e(f'v_add_u32 {v(TRW)}, {STG}, {v(TRW)}')
for t in range(1, 4): e(f'v_xor_b32 {v(TR+t)}, {32*t}, {v(TR)}')
e(f's_and_b32 {s(S_T3)}, {s(S_WAVE)}, 4')
e(f's_lshl_b32 {s(S_T3)}, {s(S_T3)}, 4')
e(f'v_xor_b32 {v(TRB)}, {s(S_T3)}, {v(TR)}')
e(f'v_xor_b32 {v(TRB+1)}, 32, {v(TRB)}')
e(f's_and_b32 {s(S_T1)}, {s(S_WAVE)}, 3')
e(f's_mul_i32 {s(S_T1)}, {s(S_T1)}, {16*TS}')
e(f's_lshl1_add_u32 {s(S_T1)}, {s(S_T3)}, {s(S_T1)}')
e(f's_add_u32 {s(S_T1)}, {s(S_T1)}, {TAB}')
e(f'v_mul_u32_u24 {v(PB)}, {TS}, {v(VN)}')
e(f'v_add3_u32 {v(PB)}, {v(PB)}, {v(G16)}, {s(S_T1)}')
e(f'v_lshl_add_u32 {v(B1A)}, {s(S_T3)}, 1, {v(G16)}')
e(f's_mul_i32 {s(S_T1)}, {s(S_WAVE)}, {8*TS}')
e(f's_add_u32 {s(S_T1)}, {s(S_T1)}, {TAB}')
e(f'v_and_b32 {v(TF)}, 0x70, {v(V16)}')
e(f'v_add3_u32 {v(TW)}, {v(TW)}, {v(TF)}, {s(S_T1)}')
e(f'v_add_u32 {v(TF)}, {v(TW)}, {v(TF)}')
e(f's_lshl_b32 {s(S_T1)}, {s(S_WAVE)}, 11')
e(f'v_add_u32 {v(WW)}, {s(S_T1)}, {v(V16)}')
tab = 0; st_ = 0
for w in range(NW + 1):
    tab |= st_ << 5*w
    if w < NW: st_ += NPAIR[w]
e(f's_mov_b32 {s(S_TP)}, 0x{tab & 0xffffffff:x}')
e(f's_mov_b32 {s(S_TP+1)}, 0x{tab >> 32:x}')
e(f's_mul_i32 {s(S_T1)}, {s(S_WAVE)}, 5')
e(f's_lshr_b64 {s(S_TP,2)}, {s(S_TP,2)}, {s(S_T1)}')
e(f's_and_b32 {s(S_P0)}, {s(S_TP)}, 31')
e(f's_bfe_u32 {s(S_NP)}, {s(S_TP)}, 0x50005')
e(f's_sub_u32 {s(S_NP)}, {s(S_NP)}, {s(S_P0)}')
e(f's_lshl1_add_u32 {s(S_P0)}, {s(S_P0)}, 16')
e(f's_mul_i32 {s(S_MO)}, {s(S_P0)}, 400')
fill = L[n0:]; del L[n0:]
pos = {0: [0]*5, 2: [0, 0, 0, len(fill), len(fill)], 3: [0, 0, 0, len(fill)//2, len(fill)//2]}[OPT['SP']]
for i in range(len(fill) + 1):
    for j, ld in enumerate(loads):
        if pos[j] == i: e(ld)
    if i < len(fill): L.append(fill[i])
pst(4, 3)
e(f's_cmp_eq_u32 {s(S_WAVE)}, 0')
e('s_waitcnt vmcnt(6) lgkmcnt(0)')
e('s_cbranch_scc1 P_M0')
e('s_waitcnt vmcnt(5)')
lab('P_M0')
stamp(2)
pst(4, 4)
if OPT['MM'] == 0: more_masks()
e(f's_call_b64 {s(S_RC,2)}, CMP')
e('s_branch P_C')
al()
lab('CMP')
if OPT['C2']:
    def cq(j): return f'v_cmp_eq_u16_sdwa {s(S_BAL+2*j,2)}, {v(MC+j//2)}, {s(S_ONE)} src0_sel:WORD_1 src1_sel:WORD_0' if j & 1 else f'v_cmp_eq_u16_e64 {s(S_BAL+2*j,2)}, {s(S_ONE)}, {v(MC+j//2)}'
    for i in range(4): e(f'v_bcnt_u32_b32 {v(T+7)}, {v(MC+i)}, {v(T+7) if i else 0}')
    e(f'v_add_u32 {v(T+4)}, {s(S_T0)}, {v(PA)}')
    e(f'v_mov_b32 {v(T+6)}, {v(T+7)}')
    e(f'ds_write_b64 {v(T+4)}, {v(FF,2)}')
    for i, d in enumerate(('row_shr:1', 'row_shr:2', 'row_shr:4', 'row_shr:8')):
        e(cq(2*i)); e(cq(2*i+1))
        e(f'v_add_u32_dpp {v(T+6)}, {v(T+6)}, {v(T+6)} {d} row_mask:0xf bank_mask:0xf bound_ctrl:0')
    e('s_nop 1')
    e(f'v_add_u32_dpp {v(T+6)}, {v(T+6)}, {v(T+6)} row_bcast:15 row_mask:0xa bank_mask:0xf')
    e(f'v_sub_u32 {v(T+6)}, {v(T+6)}, {v(T+7)}')
    e(f'v_mul_u32_u24 {v(T+6)}, 9363, {v(T+6)}')
    e(f'v_lshrrev_b32 {v(T+6)}, 16, {v(T+6)}')
    e(f'v_min_u32 {v(T+6)}, 200, {v(T+6)}')
    e(f'v_add3_u32 {v(AD)}, {v(T+6)}, {v(HB)}, {s(S_T0)}')
    e(f'v_readlane_b32 {s(S_T3)}, {v(T+6)}, 31')
    e(f'v_readlane_b32 {s(S_T2)}, {v(T+6)}, 63')
    for j in range(8): e(f'v_addc_co_u32_e64 {v(AD+j+1)}, vcc, 0, {v(AD+j)}, {s(S_BAL+2*j,2)}')
    for j in range(8):
        e(f's_mov_b64 exec, {s(S_BAL+2*j,2)}')
        e(f'ds_write_b8{"_d16_hi" if j & 1 else ""} {v(AD+j)}, {v(RJ+j//2)}')
    e('s_mov_b64 exec, -1')
    e(f'v_sub_u32 {v(T+6)}, {v(AD+8)}, {v(AD)}')
    e(f'v_mul_u32_u24 {v(T+6)}, 7, {v(T+6)}')
    e(f'v_cmp_ne_u32 vcc, {v(T+6)}, {v(T+7)}')
else:
    for j in range(8):
        if j & 1: e(f'v_cmp_eq_u16_sdwa {s(S_BAL+2*j,2)}, {v(MC+j//2)}, {s(S_ONE)} src0_sel:WORD_1 src1_sel:WORD_0')
        else: e(f'v_cmp_eq_u16_e64 {s(S_BAL+2*j,2)}, {s(S_ONE)}, {v(MC+j//2)}')
    e(f'v_lshrrev_b32 {v(T+7)}, 1, {v(V16)}')
    e(f'v_add_u32 {v(T+7)}, {s(S_T0)}, {v(T+7)}')
    e(f'v_mov_b64 {v(T+4,2)}, -1')
    e(f'ds_write_b64 {v(T+7)}, {v(T+4,2)}')
    al()
    for j in range(8):
        e(f'v_mbcnt_lo_u32_b32 {v(T+6)}, {s(S_BAL+2*j)}, {v(T+6) if j else 0}')
        e(f'v_mbcnt_hi_u32_b32 {v(T+6)}, {s(S_BAL+2*j+1)}, {v(T+6)}')
    e(f'v_bcnt_u32_b32 {v(T+7)}, {v(MC)}, 0')
    e(f'v_readlane_b32 {s(S_T3)}, {v(T+6)}, 31')
    e(f'v_readlane_b32 {s(S_T2)}, {v(T+6)}, 63')
    e(f'v_add_u32 {v(T+6)}, {s(S_T0)}, {v(T+6)}')
    e('s_mov_b32 exec_lo, 0')
    e(f's_sub_u32 {s(S_T1)}, 256, {s(S_T3)}')
    e(f'v_add_u32 {v(T+6)}, {s(S_T1)}, {v(T+6)}')
    e('s_mov_b32 exec_lo, -1')
    e(f'v_mad_u32_u24 {v(T+7)}, {v(T+6)}, 7, {v(T+7)}')
    e(f's_sub_u32 {s(S_T2)}, {s(S_T2)}, {s(S_T3)}')
    for j in range(8):
        e(f's_mov_b64 exec, {s(S_BAL+2*j,2)}')
        e(f'ds_write_b8{"_d16_hi" if j & 1 else ""} {v(T+6)}, {v(RJ+j//2)}')
        e(f'v_add_u32 {v(T+6)}, 1, {v(T+6)}')
    e('s_mov_b64 exec, -1')
    for i in range(1, 4): e(f'v_bcnt_u32_b32 {v(T+7)}, {v(MC+i)}, {v(T+7)}')
    e(f'v_mul_u32_u24 {v(T+6)}, 7, {v(T+6)}')
    e(f'v_cmp_ne_u32 vcc, {v(T+6)}, {v(T+7)}')
e(f's_min_u32 {s(S_BAD)}, vcc_lo, 1')
e(f's_min_u32 {s(S_BAD+1)}, vcc_hi, 1')
e(f's_lshl_b64 {s(S_BAD,2)}, {s(S_BAD,2)}, 15')
e(f's_or_b32 {s(S_T1)}, {s(S_T3)}, {s(S_BAD)}')
e(f's_or_b32 {s(S_T2)}, {s(S_T2)}, {s(S_BAD+1)}')
e(f's_setpc_b64 {s(S_RC,2)}')

lab('P_C')
pst(4, 5)
tile_fill(0)
pst(4, 6)
e(f's_lshl_b32 {s(S_B2)}, {s(S_B2)}, 16')
e(f's_cmp_lg_u32 {s(S_WAVE)}, 0')
e('s_waitcnt vmcnt(8)')
e('s_cbranch_scc1 P_SW_J')
e(f'v_lshlrev_b32 {v(SM+2)}, 16, {v(SM)}')
e(f'v_and_b32 {v(SM+3)}, 0xffff0000, {v(SM)}')
e(f'v_mov_b32 {v(T+4)}, -1')
e(f'v_mov_b32 {v(T+5)}, 0')
e(f'v_mov_b32 {v(T+6)}, 0x{VIRT:x}')
e(f'v_lshrrev_b32 {v(T)}, 1, {v(V16)}')
e(f'ds_write2st64_b32 {v(AO)}, {v(T+4)}, {v(T+5)} offset0:{FFB//256} offset1:{DESC//256}')
e('s_mov_b32 exec_hi, 0')
e(f'v_max3_f32 {v(T+2)}, abs({v(SM+2)}), abs({v(SM+3)}), abs({s(S_B2)})')
e(f'v_ldexp_f32 {v(SM+2)}, {v(SM+2)}, {OPT["BOOST"]}')
e(f'v_ldexp_f32 {v(SM+3)}, {v(SM+3)}, {OPT["BOOST"]}')
e(f'v_cmp_le_f32 vcc, 0x{(127+16-OPT["BOOST"]) << 23:08x}, {v(T+2)}')
e('s_mov_b32 exec_lo, 0x55')
e(f'v_mul_f32 {v(SM+2)}, {s(S_DC)}, {v(SM+2)}')
e(f'v_mul_f32 {v(SM+3)}, {s(S_DC)}, {v(SM+3)}')
e('s_mov_b32 exec_lo, -1')
if H: e(f'ds_write_b32 {v(AO)}, {v(T+5)} offset:{DESC + 4*NBW}')
e(f'ds_write_b32 {v(AO)}, {v(T+6)} offset:{DESC + 4*(NBW+H)}')
e('s_mov_b32 exec_hi, -1')
e(f's_movk_i32 {s(S_T0)}, 0x3ff')
e('s_cmp_lg_u64 vcc, 0')
e(f's_cmovk_i32 {s(S_T0)}, 0x207')
e(f'v_mov_b32 {v(T+6)}, {DESC + 4*NW}')
e(f'v_mov_b32 {v(T+7)}, {s(S_T0)}')
e(f'ds_write_b64 {v(T)}, {v(SM+2,2)} offset:{W2T}')
e(f'ds_write_b64 {v(T+5)}, {v(T+6,2)} offset:{TKT}')
lab('P_SW_J')
for i in range(2): e(f'ds_write_b128 {v(TW)}, {v(TT,4)} offset:{256+128*i}')
def ttab(r):
    for i in range(4):
        e(f'v_lshlrev_b32 {v(r+2*i)}, 16, {v(TT+i)}')
        e(f'v_and_b32 {v(r+2*i+1)}, 0xffff0000, {v(TT+i)}')
    for i in range(8): e(f'v_mul_f32 {v(r+i)}, {s(S_L2E)}, {v(r+i)}')
if not OPT['P2']:
    ttab(D)
    for i in range(2): e(f'ds_write_b128 {v(TF)}, {v(D+4*i,4)} offset:{16*i}')
pst(4, 2)
e(f's_waitcnt vmcnt(4) lgkmcnt({0 if OPT["P2"] else 2})')
stamp(3)
e('s_barrier')
stamp(4)
pst(3, 1); pst(4, 7)
q = LQ()
def trw(dst, a, ch, jh, tag=None): q.op(f'ds_read_b64_tr_b16 {v(dst,2)}, {v(a)} offset:{ch*4096 + 512*jh}', tag)
for m in range(2):
    for jh in range(2): trw(AC + 4*m + 2*jh, TRW, 4*m, jh)
for sx in range(2): q.op(f'ds_read_b128 {v(TB+4*sx,4)}, {v(PB)} offset:{256+64*sx}', 'ac')
for tl in range(2): q.op(f'ds_read_b128 {v(D+4*tl,4)}, {v(B1A)} offset:{B1T+64*tl}')
for grp in range(4):
    for tl in range(2):
        for jh in range(2): trw(WD + 32 + (grp*2+tl)*4 + 2*jh, TRB+tl, 2+grp, jh, ('b', grp))
pst(3, 2)
if OPT['MM'] == 1: more_masks()
desc(S_CUR, S_T1, 0, LP_ + L3)
e(f's_sub_u32 {s(S_PC)}, {s(S_T3)}, {LP_ + L3}')
desc(S_SV, S_T2, 1, 2)
if OPT['P2']: ttab(WD+16)
q.wait('ac')
for i in range(4):
    e(f'v_lshlrev_b32 {v(WD+2*i)}, 16, {v(AC+i)}')
    e(f'v_and_b32 {v(WD+2*i+1)}, 0xffff0000, {v(AC+i)}')
    e(f'v_lshlrev_b32 {v(WD+8+2*i)}, 16, {v(AC+4+i)}')
    e(f'v_and_b32 {v(WD+8+2*i+1)}, 0xffff0000, {v(AC+4+i)}')
for i in range(8): e(f'v_xor_b32 {v(TB+8+i)}, 0x80008000, {v(TB+i)}')
for grp in range(4):
    q.wait(('b', grp))
    for tl in range(2): e(M16(D+4*tl, WD+32+(grp*2+tl)*4, TB+4*grp, D+4*tl))
    for i in range(2): e(f'v_add_f32 {v(D+8+2*grp+i)}, {v(WD+2*grp+i)}, {v(WD+8+2*grp+i)}')
def wd_reads():
    for t in range(4):
        for sx in range(2):
            for jh in range(2): trw(WE + (t*2+sx)*4 + 2*jh, TR+t, 6+sx, jh, ('d', t))
def w2_reads():
    for t in range(4): q.op(f'ds_read_b128 {v(W2+4*t,4)}, {v(G16)} offset:{W2T+64*t}')
def unpack(a, b):
    for i in range(a, b):
        e(f'v_lshlrev_b32 {v(WD+2*i)}, 16, {v(WE+i)}')
        e(f'v_and_b32 {v(WD+2*i+1)}, 0xffff0000, {v(WE+i)}')
if not OPT['P3']: wd_reads()
if OPT['MM'] == 2: more_masks()
for i in range(8): e(f'v_mul_f32 {v(D+8+i)}, {s(S_L2E)}, {v(D+8+i)}')
for i in range(2): q.op(f'ds_write_b128 {v(WW)}, {v(D+8+4*i,4)} offset:{WAC+1024*i}')
for i in range(8): e(f'v_mul_f32 {v(D+i)}, {s(S_L2E)}, {v(D+i)}')
for tl in range(2): q.op(f'ds_write_b128 {v(PB)}, {v(D+4*tl,4)} offset:{256+64*tl}')
if OPT['P2']:
    for i in range(2): q.op(f'ds_write_b128 {v(TF)}, {v(WD+16+4*i,4)} offset:{16*i}')
pst(3, 3)
if not OPT['P3']: w2_reads()
q.op(f'ds_read_b32 {v(JUNK)}, {v(G16)} offset:{SCC_}')
e(f's_lshl2_add_u32 {s(S_T0)}, {s(S_WAVE)}, {DESC + 4*NW}')
e(f'v_mov_b32 {v(TK)}, {s(S_T0)}')
e(f'v_mov_b32 {v(TD)}, {s(S_SV)}')
q.op(f'ds_write_b32 {v(TK)}, {v(TD)}')
if OPT['MM'] == 3: more_masks()
pst(3, 4)
e(f'v_ldexp_f32 {v(T+2)}, {s(S_B2)}, {OPT["BOOST"]-2}')
e(f'v_add_u32 {v(AO)}, {OUT}, {v(AO)}')
for i in range(4): e(f'v_mov_b64 {v(B3+8+2*i,2)}, 0')
e(f'v_readfirstlane_b32 {s(S_B2Q)}, {v(T+2)}')
if not OPT['P3']:
    q.wait(('d', 1))
    unpack(0, 16)
if OPT['T1'] == 0: tile_fill(1)
def inits():
    e(f'v_add_u32 {v(ALI)}, {16*(LP_+L3-1)}, {v(ALI)}')
    e(f's_mov_b64 {s(S_Q,2)}, 0')
    e(f's_mov_b32 {s(S_QN)}, 0')
    e(f's_movk_i32 {s(S_PREV)}, 0x1040')
    e(f's_mov_b32 {s(S_K)}, 3')
    e(f's_mov_b32 {s(S_M)}, {3 if OPT["STAMP"] else 0}')
    e(f's_mov_b32 {s(S_PS)}, 0')
    e(f'v_mov_b64 {v(T,2)}, 0')
    e(f'v_mov_b32 {v(T+2)}, 1.0')
    e(f'v_mov_b32 {v(T+3)}, 1.0')
if OPT['P2']:
    tile_fill(1, 1)
    inits()
e('s_waitcnt lgkmcnt(0)')
e('s_barrier')
pst(3, 5)
e(f'v_readfirstlane_b32 {s(S_CLS)}, {v(JUNK)}')
if OPT['T1'] == 1: tile_fill(1, 2 if OPT['P2'] else 3)
e(f's_cmp_eq_u32 {s(S_NP)}, 0')
e('s_cbranch_scc1 P_GO')
if OPT['LP']: e(f's_setprio {OPT["LP"]}')
e(f's_lshl_b32 {s(S_T0)}, {s(S_P0)}, 8')
e(f's_add_u32 {s(S_T0)}, {s(S_T0)}, {LIST}')
if OPT['MM'] == 4: more_masks()
else: e(f's_waitcnt vmcnt({2*(LP_-2)})')
for i in range(max(NPAIR)):
    if OPT['MM'] == 4:
        assert UNI
        e(f's_waitcnt vmcnt({max(NPAIR)-1-i})')
    if i:
        if not UNI:
            e(f's_cmp_le_u32 {s(S_NP)}, {i}')
            e('s_cbranch_scc1 LATE_D')
        e(f's_add_u32 {s(S_T0)}, {s(S_T0)}, 512')
    for j in range(2): e(f'v_mov_b64 {v(MC+2*j,2)}, {v(XR(i)+2*j,2)}')
    e(f's_call_b64 {s(S_RC,2)}, CMP')
    e(f'v_writelane_b32 {v(CV)}, {s(S_T1)}, {2*i}')
    e(f'v_writelane_b32 {v(CV)}, {s(S_T2)}, {2*i+1}')
lab('LATE_D')
e(f'v_add_u32 {v(T+4)}, {s(S_P0)}, {v(LANE)}')
e(f's_lshl_b32 {s(S_T0)}, {s(S_NP)}, 1')
e(f'v_and_b32 {v(T+5)}, 0xff, {v(CV)}')
e(f'v_add_u32 {v(T+5)}, 15, {v(T+5)}')
e(f'v_lshrrev_b32 {v(CV)}, 8, {v(CV)}')
if OPT['XM']:
    assert H == 0
    e(f'v_and_b32 {v(T+6)}, 15, {v(T+5)}')
    e(f'v_lshl_or_b32 {v(CV)}, {v(T+6)}, 12, {v(CV)}')
e(f'v_lshrrev_b32 {v(T+5)}, 4, {v(T+5)}')
e(f'v_max_u32 {v(T+5)}, 2, {v(T+5)}')
e(f'v_or_b32 {v(CV)}, {v(CV)}, {v(T+4)}')
e(f'v_cmp_gt_u32 vcc, {NS}, {v(T+4)}')
e(f'v_lshl_or_b32 {v(T+6)}, {v(T+5)}, 8, {v(CV)}')
e(f'v_lshlrev_b32 {v(T+4)}, 2, {v(T+4)}')
e(f's_bfm_b64 {s(S_TP,2)}, {s(S_T0)}, 0')
e(f's_and_b64 exec, {s(S_TP,2)}, vcc')
e(f'ds_write_b32 {v(T+4)}, {v(T+6)} offset:{DESC}')
if H:
    e(f's_andn2_b64 exec, {s(S_TP,2)}, vcc')
    e(f'v_max_u32 {v(T+5)}, 4, {v(T+5)}')
    e(f'v_add_u32 {v(T+6)}, 1, {v(T+5)}')
    e(f'v_lshrrev_b32 {v(T+6)}, 1, {v(T+6)}')
    e(f'v_sub_u32 {v(T+5)}, {v(T+5)}, {v(T+6)}')
    e(f'v_lshl_or_b32 {v(T+7)}, {v(T+6)}, 4, {v(T+5)}')
    e(f'v_cmp_lt_u32 vcc, 0x7f, {v(CV)}')
    e(f'v_mov_b32 {v(T+5)}, 0xe2')
    e(f'v_lshl_or_b32 {v(T+6)}, {v(T+6)}, 8, {v(CV)}')
    e(f'v_cndmask_b32 {v(T+7)}, {v(T+7)}, {v(T+5)}, vcc')
    e(f'v_and_b32 {v(CV)}, 0x3f, {v(CV)}')
    e(f'v_lshl_or_b32 {v(T+7)}, {v(T+7)}, 8, {v(CV)}')
    e(f'v_lshlrev_b32 {v(T+4)}, 1, {v(T+4)}')
    e(f'ds_write_b64 {v(T+4)}, {v(T+6,2)} offset:{DESC - 4*NS}')
e('s_mov_b64 exec, -1')
if OPT['LP']: e('s_setprio 0')
lab('P_GO')
if OPT['P3']:
    q = LQ()
    wd_reads()
    for t in range(4):
        q.wait(('d', t))
        if t == 3:
            wr_reads()
            w2_reads()
        unpack(8*t, 8*t+8)
else:
    wr_reads()
    unpack(16, 32)
if not OPT['P2']: inits()
for i in range(2): e(f'v_mov_b64 {v(O+2*i,2)}, 0')
e(f's_sub_u32 {s(S_PC)}, {s(S_PC)}, 2')
e('s_cbranch_scc1 DRAW_P')
lab('DRET_P')
if L3: e(IDXR(IDX, 0)); e(IDXR(IDX+2, 8))
if OPT['EG']:
    e(f's_cmp_lt_u32 {s(S_WAVE)}, {OPT["EG0"]}')
    e('s_cselect_b64 vcc, -1, 0')
if PX:
    e(f'v_mov_b32 {v(TD)}, {v(ALI)}')
    e(f'v_mov_b32 {v(ALI)}, {FFB}')
    e(f's_lshl_b32 {s(S_MO)}, {s(S_PC)}, 1')
    e(f's_or_b32 {s(S_MO)}, {s(S_MO)}, {s(S_PS)}')
    e(f's_mov_b32 {s(S_P0)}, {s(S_RING)}')
    e(f's_mov_b32 {s(S_RING)}, {DUM - 3*2048}')
    e(f's_mov_b32 {s(S_PC)}, 1')
    e(f's_mov_b32 {s(S_PS)}, 2')
    assert OPT['TS_'] and LA == 3
pst(3, 6)
if not OPT['SK']:
    e(f's_waitcnt vmcnt({2*(LP_-1)})')
    for sx in range(2): e(f'ds_read_b128 {v(B+4*sx,4)}, {v(AB+sx)}')
e('s_branch BPF')
if OPT['STAMP']:
    lab('P_END')
    e(f's_mov_b32 {s(S_M)}, 0')
    pst(3, 7)
    stamp(5)

def chain():
    el = lambda k: v(D+2*k, 2); ww = lambda k: v(W2+2*k, 2)
    N = v(T, 2); Dn = v(T+2, 2)
    al()
    e(f'v_pk_fma_f32 {Dn}, {el(0)}, {s(S_DC,2)}, {s(S_DC,2)} op_sel_hi:[1,0,0]')
    e(f'v_pk_fma_f32 {N}, {ww(0)}, {el(1)}, {ww(0)}')
    e(f'v_pk_fma_f32 {N}, {ww(1)}, {Dn}, {N}')
    e(f'v_pk_fma_f32 {Dn}, {el(1)}, {Dn}, {Dn}')
    for k in range(2, 8):
        e(f'v_pk_fma_f32 {N}, {el(k)}, {N}, {N}')
        e(f'v_pk_fma_f32 {N}, {ww(k)}, {Dn}, {N}')
        e(f'v_pk_fma_f32 {Dn}, {el(k)}, {Dn}, {Dn}')
A3R = f'ds_read_b64 {v(A3,2)}, {v(ASR)}'
SCW = f'ds_write_b16 {v(ASW)}, {v(T)}'
def PM(par, qq): return f'v_mfma_f32_4x4x4_16b_bf16 {v(O,4)}, {v(A3,2)}, {v(B3+8*par+2*qq,2)}, {v(O,4)} cbsz:4 abid:{qq}'
TAIL = [[f'v_rcp_f32 {v(T+2)}, {v(T+2)}'], [f'v_rcp_f32 {v(T+3)}, {v(T+3)}'],
        [f'v_fma_f32 {v(T)}, {v(T)}, {v(T+2)}, {s(S_B2Q)}', f'v_fmac_f32 {v(T)}, {v(T+1)}, {v(T+3)}'],
        [f'v_cvt_pk_bf16_f32 {v(T)}, {v(T)}, {v(T)}']]
def draw():
    e('s_mov_b64 exec, 1')
    e(f'v_mov_b32 {v(TK)}, 4')
    e(f'ds_add_rtn_u32 {v(TK)}, {v(V16)}, {v(TK)} offset:{TKT}')
    e('s_mov_b64 exec, -1')
def dispatch(pre, add):
    for u in range(3):
        e(f's_cmp_eq_u32 {s(S_K)}, {u}')
        e(f's_cbranch_scc1 {pre}_{(u+add)%4}')
    e(f's_branch {pre}_{(3+add)%4}')

def unit(u):
    par = u & 1
    if OPT['SX']: sc = [M0S((u+LA)%4, 0), f's_mov_b32 {s(S_K)}, {u}', f's_sub_u32 {s(S_PC)}, {s(S_PC)}, 1', 's_cbranch_scc1 PEV', SCW, A3R, f's_sub_u32 {s(S_CC)}, {s(S_CC)}, 1', f's_waitcnt vmcnt({VW})']
    else: sc = [M0S((u+LA)%4, 0), f's_mov_b32 {s(S_K)}, {u}', f's_sub_u32 {s(S_PC)}, {s(S_PC)}, 1', 's_cbranch_scc1 PEV', None, None, f's_sub_u32 {s(S_CC)}, {s(S_CC)}, 1', f's_waitcnt vmcnt({VW})']
    va = TAIL + [[EX(i)] for i in range(4)]
    LW = OPT['LW']
    LT = LW in (1, 4, 5)
    if LT: sc[7] = None
    if L3:
        assert LA == 3 and not OPT['SX'] and not PX
        sc = [sc[0], sc[1], f's_mov_b64 {s(S_PCU,2)}, {s(S_PSOFF,2)}', sc[2], sc[3], None, sc[6], sc[7]]
    if OPT['EG']:
        assert LW == 2 and LA == 3 and not OPT['SK']
        sc[7] = f's_cbranch_vccnz NW_{u}'
    if OPT['SK']:
        assert LW != 1 and not OPT['SX'] and LA == 3 and not PX
        sc[5:8] = [sc[6], f's_cselect_b64 vcc, {s(S_CM,2)}, 0', f's_cbranch_vccnz NW_{u}']
    def brd():
        for sx in range(2): e(f'ds_read_b128 {v(B+4*sx,4)}, {v(AB+sx)} offset:{((u+1)%4)*2048}')
    for i in range(8):
        e(MM1(i >> 1, i & 1))
        if sc[i]: e(sc[i])
        if i == 7 and (OPT['SK'] or OPT['EG']):
            e(f's_waitcnt vmcnt({VW})')
            lab(f'NW_{u}')
        if i == 3: e(f'v_add_u32 {v(ALI)}, 16, {v(ALI)}')
        if i == 3 + L3: lab(f'RET_{u}')
        if i == 7 and L3:
            e(DMA(IDX, 0))
            e(DMA(IDX+2, 1))
        for x in va[i]: e(x)
    if not OPT['SX']: e(SCW); e(A3R)
    for qq in range(4): e(f'ds_read_b64_tr_b16 {v(B3+8*par+2*qq,2)}, {v(AT+(qq&1))} offset:{u*2048+512*qq}')
    e(IDXR(IDX, 0)); e(IDXR(IDX+2, 8))
    if not OPT['TS_']: e(f'ds_read_b32 {v(TD)}, {v(TK)}')
    if not LT: brd()
    n0 = 4 if OPT['SX'] else 8
    for i in range(4, n0): e(EX(i))
    e(f's_waitcnt lgkmcnt({(7 if LT else 9) - OPT["TS_"]})')
    for qq in range(4):
        e(PM(1-par, qq)); e(EX(n0+2*qq)); e(EX(n0+1+2*qq))
    for i in range(n0+8, 16): e(EX(i))
    if LW in (1, 2):
        e('s_waitcnt lgkmcnt(0)')
        e(DMA(IDX, 0))
        e(DMA(IDX+2, 1))
        if LW == 1:
            e(f's_waitcnt vmcnt({VW})')
            brd()
        if OPT['EG']:
            e(f's_cbranch_vccnz LB_{u}')
            lab(f'LR_{u}')
    if LW in (4, 5):
        e(f's_waitcnt vmcnt({VW})' + (' lgkmcnt(0)' if LW == 4 else ''))
        brd()
        if LW == 4:
            e(DMA(IDX, 0))
            e(DMA(IDX+2, 1))
    if OPT['XM']: e(f's_cselect_b64 exec, {s(S_EX,2)}, -1')
    HI()
    chain()
    LO()
    if OPT['XM']: e('s_mov_b64 exec, -1')
    if LW != 2 or OPT['EG']: e('s_waitcnt lgkmcnt(0)')
    if LW in (0, 5):
        e(DMA(IDX, 0))
        e(DMA(IDX+2, 1))

INLOOP[0] = 1
for u in range(4):
    lab(f'U_{u}')
    if u & 1 == 0: bstamp()
    unit(u)
    e('s_cbranch_scc1 CEV' if u < 3 else 's_cbranch_scc0 U_0')
INLOOP[0] = 2
lab('CEV')
e(f's_cmp_eq_u32 {s(S_CS)}, 0')
e('s_cbranch_scc1 EPI')
e(f's_mov_b32 {s(S_PREV)}, {s(S_CUR)}')
e(f's_and_b32 {s(S_CUR)}, {s(S_Q)}, 0xffff')
e(f's_lshr_b64 {s(S_Q,2)}, {s(S_Q,2)}, 16')
e(f's_sub_u32 {s(S_QN)}, {s(S_QN)}, 16')
e(f's_bitcmp1_b32 {s(S_CUR)}, 6')
e('s_cbranch_scc1 DRAIN')
lab('BPF')
q = LQ()
e(f's_and_b32 {s(S_T1)}, {s(S_CUR)}, 63')
e(f's_mul_i32 {s(S_T1)}, {s(S_T1)}, {TS}')
e(f's_add_u32 {s(S_T1)}, {s(S_T1)}, {TAB}')
e(f'v_lshl_add_u32 {v(T+6)}, {v(G16)}, 1, {s(S_T1)}')
e(f'v_add_u32 {v(T+7)}, {s(S_T1)}, {v(G16)}')
for jh in range(2): q.op(f'ds_read_b128 {v(D+4*jh,4)}, {v(T+6)} offset:{jh*16}', 't0')
for jh in range(2): q.op(f'ds_read_b128 {v(CB+8+4*jh,4)}, {v(V16)} offset:{WAC+(12+jh)*1024}')
for jh in range(2): q.op(f'ds_read_b128 {v(D+8+4*jh,4)}, {v(T+6)} offset:{128+jh*16}')
e(f's_mov_b32 {s(S_CC)}, 0')
e(f's_mov_b32 {s(S_CS)}, 0')
if OPT['SK']:
    e(f's_mov_b64 {s(S_CM,2)}, 0')
    e(f's_add_u32 {s(S_T0)}, {s(S_K)}, 1')
    e(f's_and_b32 {s(S_T0)}, {s(S_T0)}, 3')
    e(f'v_lshl_add_u32 {v(T+4)}, {s(S_T0)}, 11, {v(AB)}')
    e(f'v_xor_b32 {v(T+6)}, 64, {v(T+4)}')
if OPT['XM']: e(f's_mov_b64 {s(S_EX,2)}, -1')
e(f's_cmp_lg_u32 {s(S_M)}, 0')
q.wait('t0')
for c in (0, 2, 4, 6, 1, 3, 5, 7):
    x = CB + 8 if c == 6 else D if c & 1 else CB
    if c == 6: e('s_waitcnt lgkmcnt(0)')
    if c in (0, 6): al()
    for p in range(4): e(f'v_pk_fma_f32 {v(x+2*p,2)}, {v(WD+c*8+2*p,2)}, {v(D+8*(c&1)+2*p,2)}, {v(WRF(c)+2*p,2)}')
    for p in range(4): e(f'v_cvt_pk_bf16_f32 {v(WE+c*4+p)}, {v(x+2*p)}, {v(x+2*p+1)}')
    if c == 6:
        for t in range(4): e(f'ds_read_b128 {v(CB+4*t,4)}, {v(T+7)} offset:{256+64*t}')
    if c == OPT['SKP'] and OPT['SK']:
        e('s_waitcnt vmcnt(4)')
        for sx in range(2): e(f'ds_read_b128 {v(B+4*sx,4)}, {v(T+4+2*sx)}')
        al()
e('s_waitcnt lgkmcnt(0)')
e('s_cbranch_scc1 BP_X')
lab('NEXT')
dispatch('U', 1)
lab('EPI')
e(f's_and_b32 {s(S_T0)}, {s(S_PREV)}, 0x7f')
if H:
    e(f's_cmpk_ge_u32 {s(S_PREV)}, 0x1000')
    e(f's_cselect_b32 {s(S_T1)}, {H}, 0')
    e(f's_add_u32 {s(S_T0)}, {s(S_T0)}, {s(S_T1)}')
e(f'v_pk_add_f32 {v(T+4,2)}, {v(O,2)}, {v(O+2,2)}')
e(f'v_add_f32 {v(T+4)}, {v(T+4)}, {v(T+5)}')
e(f'v_lshl_add_u32 {v(T+5)}, {s(S_T0)}, 8, {v(AO)}')
e(f'v_mul_f32 {v(T+4)}, {s(S_INV)}, {v(T+4)}')
e(f's_and_b32 {s(S_T0)}, {s(S_PREV)}, 0x80')
e(f'v_cmp_class_f32_e64 {s(S_BAD,2)}, {v(T+4)}, {s(S_CLS)}')
for i in range(2): e(f'v_mov_b64 {v(O+2*i,2)}, 0')
e(f'ds_write_b32 {v(T+5)}, {v(T+4)}')
if OPT['FSLOW']: e('s_branch SLOW')
if not OPT['KILL']:
    e(f's_or_b32 {s(S_BAD)}, {s(S_BAD)}, {s(S_T0)}')
    e(f's_cmp_lg_u64 {s(S_BAD,2)}, 0')
    e('s_cbranch_scc1 SLOW')
lab('EPI_R')
e(f's_bitcmp1_b32 {s(S_CUR)}, 6')
e('s_cbranch_scc1 L_DONE')
lab('EPI_C')
e(f's_bfe_u32 {s(S_CC)}, {s(S_CUR)}, 0x40008')
e(f's_sub_u32 {s(S_CC)}, {s(S_CC)}, 2')
e(f's_mov_b32 {s(S_CS)}, 1')
if OPT['SK']: e(f's_mov_b64 {s(S_CM,2)}, -1')
if OPT['XM']:
    e(f's_lshr_b32 {s(S_T0)}, {s(S_CUR)}, 12')
    e(f's_lshl_b32 {s(S_EX)}, 0x20002, {s(S_T0)}')
    e(f's_sub_u32 {s(S_EX)}, {s(S_EX)}, 0x10001')
    e(f's_mov_b32 {s(S_EX+1)}, {s(S_EX)}')
dispatch('U', 1)
lab('PEV')
e(f's_cmp_eq_u32 {s(S_PS)}, 0')
e('s_cbranch_scc1 P_DR')
if PX:
    e(f's_cmp_eq_u32 {s(S_PS)}, 2')
    e('s_cbranch_scc1 P_FIX')
if OPT['TS_']:
    e(f'ds_read_b32 {v(TD)}, {v(TK)}')
    e('s_waitcnt lgkmcnt(0)')
lab('ADV')
e(f'v_readfirstlane_b32 {s(S_TP)}, {v(TD)}')
e(f's_mov_b32 {s(S_TP+1)}, 0')
e(f's_and_b32 {s(S_T0)}, {s(S_TP)}, 63')
e(f's_bfe_u32 {s(S_PC)}, {s(S_TP)}, 0x40008')
e('s_cbranch_scc0 AW')
if OPT['SMODE'] == 4:
    e(f's_cmp_lg_u32 {s(S_T0)}, {OPT["SEL"]}')
    e('s_cbranch_scc1 L_MS')
    e(f's_memrealtime {s(S_ST+2,2)}')
    e('s_waitcnt lgkmcnt(0)')
    lab('L_MS')
goff(S_PSOFF, S_T0, 3, 25600, S_T1)
if H:
    e(f's_lshr_b32 {s(S_T1)}, {s(S_TP)}, 12')
    e(f's_lshl4_add_u32 {s(S_T0)}, {s(S_T0)}, {s(S_T1)}')
    e(f'v_lshl_add_u32 {v(ALI)}, {s(S_T0)}, 4, {v(ALB)}')
else: e(f'v_lshl_add_u32 {v(ALI)}, {s(S_T0)}, 8, {v(ALB)}')
if OPT['NOMEM']: e(f's_mov_b32 {s(S_PSOFF)}, 0')
else: e(f's_add_u32 {s(S_PSOFF)}, {s(S_PSOFF)}, {s(S_WGH)}')
e(f's_add_u32 {s(S_PS1)}, {s(S_PSOFF)}, 1024')
if OPT['EG']:
    e(f's_and_b32 {s(S_T1)}, {s(S_TP)}, 0x7f')
    e(f's_cmp_ge_u32 {s(S_T1)}, {OPT["EG"]}')
    e('s_cselect_b64 vcc, -1, 0')
e(f's_lshl_b64 {s(S_BAD,2)}, {s(S_TP,2)}, {s(S_QN)}')
e(f's_or_b64 {s(S_Q,2)}, {s(S_Q,2)}, {s(S_BAD,2)}')
e(f's_add_u32 {s(S_QN)}, {s(S_QN)}, 16')
e(f's_mov_b32 {s(S_PS)}, 0')
e(f's_sub_u32 {s(S_PC)}, {s(S_PC)}, 3')
e('s_cbranch_scc1 P_2')
lab('P_RET')
dispatch('RET', 0)
lab('P_DR')
if not L3: e(f'v_add_u32 {v(ALI)}, 16, {v(ALI)}')
lab('P_D2')
draw()
e(f's_mov_b32 {s(S_PC)}, 1')
e(f's_mov_b32 {s(S_PS)}, 1')
dispatch('RET', 0)
lab('P_2')
e(f's_bitcmp1_b32 {s(S_TP)}, 6')
e('s_cbranch_scc0 P_D2')
e(f'v_mov_b32 {v(ALI)}, {FFB}')
e(f's_movk_i32 {s(S_PC)}, 0x100')
e('s_branch P_RET')
if OPT['EG']:
    for u in range(4):
        lab(f'LB_{u}')
        e('s_waitcnt vmcnt(4)')
        for sx in range(2): e(f'ds_read_b128 {v(B+4*sx,4)}, {v(AB+sx)} offset:{((u+1)%4)*2048}')
        e(f's_branch LR_{u}')
lab('DRAIN')
for x in sum(TAIL, []): e(x)
e(f's_bitcmp1_b32 {s(S_K)}, 0')
e(SCW); e(A3R)
e('s_waitcnt lgkmcnt(0)')
e('s_cbranch_scc1 DRAIN1')
for par in range(2):
    if par: lab('DRAIN1')
    for qq in range(4):
        e(PM(par, qq)); e('s_nop 1' if qq < 3 else 's_nop 2')
    e('s_branch EPI')

INLOOP[0] = False
lab('L_DONE')
stamp(6)
e(f's_lshl_b32 {s(S_T0)}, {s(S_WAVE)}, 11')
e(f's_add_u32 {s(S_T0)}, {s(S_T0)}, {OUT}')
e(f'v_lshl_add_u32 {v(T)}, {v(V16)}, 1, {s(S_T0)}')
e(f's_lshl_b32 {s(S_T0)}, {s(S_WAVE)}, {18 if MAP else 10}')
e('s_waitcnt lgkmcnt(0)')
e('s_barrier')
for i in range(2): e(f'ds_read_b128 {v(D+4*i,4)}, {v(T)} offset:{16*i}')
if H:
    e(f'v_cmp_le_u32 vcc, {OUT + NS*256}, {v(T)}')
    e('s_and_b64 exec, exec, vcc')
    e('s_cbranch_execz L_ST')
    for i in range(2): e(f'ds_read_b128 {v(D+8+4*i,4)}, {v(T)} offset:{H*256+16*i}')
    e('s_waitcnt lgkmcnt(0)')
    for i in range(4): e(f'v_pk_add_f32 {v(D+2*i,2)}, {v(D+2*i,2)}, {v(D+8+2*i,2)}')
    lab('L_ST')
    e('s_mov_b64 exec, -1')
e('s_waitcnt lgkmcnt(0)')
for p in range(4): e(f'v_cvt_pk_bf16_f32 {v(B+p)}, {v(D+2*p)}, {v(D+2*p+1)}')
e(f'buffer_store_dwordx4 {v(B,4)}, {v(V16)}, {s(SRD_O,4)}, {s(S_T0)} offen{POL[OPT["STP"]]}')
lab('L_FIN')
if OPT['STAMP']:
    e('s_waitcnt vmcnt(0)')
    stamp(7)
    if OPT['STAMP'] == 7:
        e(f's_sub_u32 {s(S_T0)}, {s(S_ST+2*(1 if OPT["SMODE"] == 4 else OPT["SEL"]))}, {s(S_ST)}')
        e(f's_lshl_b32 {s(S_T0)}, {s(S_T0)}, {1 if OPT["SMODE"] == 4 else 2}')
        if OPT['SMODE'] == 1:
            e(f's_sub_u32 {s(S_T0)}, {s(S_ST+8)}, {s(S_ST+6)}')
            e(f's_lshr_b32 {s(S_T0)}, {s(S_T0)}, 4')
        if OPT['SMODE'] == 2:
            e(f's_sub_u32 {s(S_T0)}, {s(S_ST+12)}, {s(S_ST+10)}')
        if OPT['SMODE'] == 3:
            e(f's_sub_u32 {s(S_T0)}, {s(S_ST+14)}, {s(S_ST)}')
            e(f's_lshl_b32 {s(S_T0)}, {s(S_T0)}, 1')
        if OPT['SELW'] >= 0:
            e(f's_cmp_eq_u32 {s(S_WAVE)}, {OPT["SELW"]}')
            e(f's_cselect_b32 {s(S_T0)}, {s(S_T0)}, 0')
        if OPT['SELG'] >= 0:
            e(f's_cmp_eq_u32 s2, {OPT["SELG"]}')
            e(f's_cselect_b32 {s(S_T0)}, {s(S_T0)}, 0')
        e(f's_add_u32 {s(S_T0)}, {s(S_T0)}, {OPT["SPIN"]}')
        lab('L_SPIN')
        e('s_sleep 1')
        e('s_memrealtime s[4:5]')
        e('s_waitcnt lgkmcnt(0)')
        e(f's_sub_u32 {s(S_T1)}, s4, {s(S_ST)}')
        e(f's_cmp_lt_u32 {s(S_T1)}, {s(S_T0)}')
        e('s_cbranch_scc1 L_SPIN')
    else:
        e('s_load_dwordx2 s[4:5], s[0:1], 72')
        e('s_waitcnt lgkmcnt(0)')
        e('s_mov_b32 s6, 0x1000000')
        e('s_mov_b32 s7, 0x20000')
        e(f's_mul_i32 {s(S_T0)}, s2, {NW}')
        e(f's_add_u32 {s(S_T0)}, {s(S_T0)}, {s(S_WAVE)}')
        if OPT['STAMP'] == 8:
            e(f's_lshl_b32 {s(S_T0)}, {s(S_T0)}, 8')
            e(f'v_lshrrev_b32 {v(T)}, 2, {v(V16)}')
            e(f'buffer_store_dword {v(TSV)}, {v(T)}, s[4:7], {s(S_T0)} offen')
        else:
            e(f's_lshl_b32 {s(S_T0)}, {s(S_T0)}, 5')
            e(f'v_mov_b32 {v(T+1)}, {s(S_T0)}')
            for i in range(8):
                e(f'v_mov_b32 {v(T)}, {s(S_ST+2*i)}')
                e(f'buffer_store_dword {v(T)}, {v(T+1)}, s[4:7], 0 offen offset:{4*i}')
e('s_endpgm')

lab('AW')
e('s_sleep 1')
e(f'ds_read_b32 {v(TD)}, {v(TK)}')
e('s_waitcnt lgkmcnt(0)')
e('s_branch ADV')
lab('DRAW_P')
draw()
e(f's_add_u32 {s(S_PC)}, {s(S_PC)}, 2')
e(f's_mov_b32 {s(S_PS)}, 1')
if not OPT['TS_']:
    e('s_waitcnt lgkmcnt(0)')
    e(f'ds_read_b32 {v(TD)}, {v(TK)}')
e('s_branch DRET_P')
if PX:
    lab('P_FIX')
    e(f's_mov_b32 {s(S_RING)}, {s(S_P0)}')
    e(f's_mov_b32 m0, {s(S_RING)}')
    e(f'v_mov_b32 {v(ALI)}, {v(TD)}')
    e(f's_and_b32 {s(S_PS)}, {s(S_MO)}, 1')
    e(f's_lshr_b32 {s(S_PC)}, {s(S_MO)}, 1')
    e(f's_sub_u32 {s(S_PC)}, {s(S_PC)}, 1')
    e('s_cbranch_scc1 PEV')
    e(f'v_add_u32 {v(ALI)}, 16, {v(ALI)}')
    e('s_branch RET_1')
lab('BP_X')
if OPT['STAMP']:
    e(f's_cmp_eq_u32 {s(S_M)}, 3')
    e('s_cbranch_scc1 P_END')
e(f's_cmp_eq_u32 {s(S_M)}, 1')
e(f's_mov_b32 {s(S_M)}, 0')
e('s_cbranch_scc1 SLOW_W')
e('s_branch EPI_C')

lab('SLOW')
ACC = WR; BS_ = WR + 16; Y = WR + 24; Z = WR + 28; WX = WR + 32
e(f's_bitcmp1_b32 {s(S_PREV)}, 6')
e('s_cbranch_scc1 EPI_R')
if OPT['STAMP'] == 9: e(f's_add_u32 {s(S_ST)}, {s(S_ST)}, 1')
e(f's_mov_b32 {s(S_SV)}, {s(S_CUR)}')
e(f's_mov_b32 {s(S_CUR)}, {s(S_PREV)}')
e(f's_mov_b32 {s(S_M)}, 1')
e(f'ds_write_b32 {v(T+5)}, {v(O)}')
e('s_branch BPF')
lab('SLOW_W')
e('s_load_dwordx2 s[4:5], s[0:1], 40')
e(f'v_lshrrev_b32 {v(Y)}, 1, {v(G16)}')
e('s_waitcnt lgkmcnt(0)')
for t in range(4): e(f'global_load_dwordx2 {v(BS_+2*t,2)}, {v(Y)}, s[4:5] offset:{32*t}')
e('s_waitcnt vmcnt(0)')
for i in range(8):
    e(f'v_lshlrev_b32 {v(WX+2*i)}, 16, {v(BS_+i)}')
    e(f'v_and_b32 {v(WX+2*i+1)}, 0xffff0000, {v(BS_+i)}')
e(f's_mov_b32 {s(S_CUR)}, {s(S_SV)}')
e(f's_and_b32 {s(S_T0)}, {s(S_PREV)}, 63')
e(f's_mov_b32 {s(S_T1)}, 0' if OPT['XM'] else f's_lshr_b32 {s(S_T1)}, {s(S_PREV)}, 12')
e(f's_bfe_u32 {s(S_T3)}, {s(S_PREV)}, 0x40008')
e(f's_lshl4_add_u32 {s(S_T1)}, {s(S_T0)}, {s(S_T1)}')
e(f's_lshl_b32 {s(S_T1)}, {s(S_T1)}, 4')
e(f's_add_u32 {s(S_SV)}, {s(S_T1)}, {LIST}')
e(f's_bitcmp1_b32 {s(S_PREV)}, 7')
e(f's_cselect_b64 {s(S_TP,2)}, -1, 0')
e(f's_cselect_b32 {s(S_T3)}, 13, {s(S_T3)}')
e(f'v_bfe_u32 {v(Y)}, {v(V16)}, 4, 4')
e(f'v_mov_b32 {v(Y+3)}, {v(G16)}')
for i in range(8): e(f'v_mov_b64 {v(ACC+2*i,2)}, 0')
goff(S_T1, S_T0, 3, 25600, S_T2)
e(f's_add_u32 {s(S_T1)}, {s(S_T1)}, {s(S_WGH)}')
goff(S_T2, S_T0, 3, 400, S_BAD)
lab('SLOW_L')
e(f'v_add_u32 {v(Y+1)}, {s(S_SV)}, {v(Y)}')
e(f'ds_read_u8 {v(Y+2)}, {v(Y+1)}')
e('s_waitcnt lgkmcnt(0)')
e(f'v_cndmask_b32_e64 {v(Y+2)}, {v(Y+2)}, {v(Y)}, {s(S_TP,2)}')
e(f'v_lshlrev_b32 {v(Y+1)}, 1, {v(Y+2)}')
for sx in range(2): e(f'buffer_load_dwordx4 {v(BS_+4*sx,4)}, {v(Y+2,2)}, {s(SRD_H,4)}, {s(S_T1)} idxen offen offset:{1024+64*sx}')
e(f'buffer_load_ushort {v(Y+1)}, {v(Y+1)}, {s(SRD_M,4)}, {s(S_T2)} offen')
e(f'v_cmp_gt_u32 vcc, 200, {v(Y+2)}')
e(f'v_add_u32 {v(Y)}, 16, {v(Y)}')
e('s_waitcnt vmcnt(0)')
for t in range(4):
    for sx in range(2): e(MM1(t, sx, BS_))
e(f'v_lshlrev_b32 {v(Y+1)}, 16, {v(Y+1)}')
e(f'v_cndmask_b32 {v(Y+1)}, 0, {v(Y+1)}, vcc')
e('s_nop 7')
for i in range(16): e(EX(i))
for i in range(16): e(f'v_add_f32 {v(D+i)}, 1.0, {v(D+i)}')
for i in range(16): e(f'v_rcp_f32 {v(D+i)}, {v(D+i)}')
e(f'v_mul_f32 {v(Z)}, {v(D)}, {v(WX)}')
for i in range(1, 16): e(f'v_fmac_f32 {v(Z)}, {v(D+i)}, {v(WX+i)}')
e(f'v_mov_b32 {v(Z+1)}, {v(Z)}')
e('s_nop 1')
e(f'v_permlane32_swap_b32 {v(Z)}, {v(Z+1)}')
e(f'v_add_f32 {v(Z)}, {v(Z)}, {v(Z+1)}')
e(f'v_mov_b32 {v(Z+1)}, {v(Z)}')
e('s_nop 1')
e(f'v_permlane16_swap_b32 {v(Z)}, {v(Z+1)}')
e(f'v_add_f32 {v(Z)}, {v(Z)}, {v(Z+1)}')
e(f'v_add_f32 {v(Z)}, {s(S_B2)}, {v(Z)}')
e(f'v_mul_f32 {v(Z)}, {v(Z)}, {v(Y+1)}')
for i in range(8):
    e(f'v_lshlrev_b32 {v(Z+1)}, 16, {v(BS_+i)}')
    e(f'v_and_b32 {v(Z+2)}, 0xffff0000, {v(BS_+i)}')
    e(f'v_fmac_f32 {v(ACC+2*i)}, {v(Z)}, {v(Z+1)}')
    e(f'v_fmac_f32 {v(ACC+2*i+1)}, {v(Z)}, {v(Z+2)}')
e(f's_sub_u32 {s(S_T3)}, {s(S_T3)}, 1')
e(f's_cmp_lg_u32 {s(S_T3)}, 0')
e('s_cbranch_scc1 SLOW_L')
e(f'v_readfirstlane_b32 {s(S_T0)}, {v(T+5)}')
e('s_nop 1')
e(f'v_lshl_add_u32 {v(Z)}, {v(G16)}, 1, {s(S_T0)}')
for i in range(16): e(f'ds_add_f32 {v(Z)}, {v(ACC+i)} offset:{128*(i>>3)+4*(i&7)}')
e('s_waitcnt lgkmcnt(0)')
e(f's_bitcmp1_b32 {s(S_CUR)}, 6')
e('s_cbranch_scc1 L_DONE')
wr_reads()
e(f's_mov_b32 {s(S_M)}, 2')
e('s_branch BPF')
lab('L_END')
e('s_endpgm')
L.append(f""".section .rodata,"a"
.p2align 6
.amdhsa_kernel {KN}
  .amdhsa_next_free_vgpr {NVGPR}
  .amdhsa_next_free_sgpr {NSGPR}
  .amdhsa_accum_offset {(NVGPR+3)//4*4}
  .amdhsa_group_segment_fixed_size 0
  .amdhsa_kernarg_size 80
  .amdhsa_user_sgpr_count 2
  .amdhsa_user_sgpr_kernarg_segment_ptr 1
  .amdhsa_system_sgpr_workgroup_id_x 1
.end_amdhsa_kernel""")

text = '\n'.join(L) + '\n'
outs = [a for a in sys.argv[1:] if '=' not in a]
if outs:
    open(outs[0], 'w').write(text)
    import hazard
    n = hazard.check(text, verbose=not OPT['KILL'])
    print(f'{outs[0]}: vgpr={NVGPR} lds={LDS_BYTES} hazards={n}', file=sys.stderr)
else:
    sys.stdout.write(text)
```

```python
import sys, os
sys.path.insert(0, os.path.join(os.path.dirname(os.path.abspath(__file__)), 'exp'))

OPT = dict(STAMP=0, NOMEM=0, KILL=0, HP=1, MP=1, TP=1, STP=1, CPF=1, YP=0, SPIN=0, SEL=0, SELW=-1, SELG=-1, SMODE=0, FSLOW=0, BOOST=40, SEC=0, PP=1, RAMP=0xc000c000, SP=2, T1=1, AL=1, LP=0, SX=0, LA=3, VW=2, H=0, MM=2, EW=0, C2=1, P2=1, MAP=1, LW=2, XM=1, TS_=1, DS=60, PX=0, P3=0, SK=0, SKP=6, EG=0, EG0=0, CW=5, CN=3, CS=6, P4=0, P5=0)
for a in sys.argv[1:]:
    if '=' in a:
        k, v_ = a.split('='); assert k in OPT, k; OPT[k] = int(v_, 0)
NW = 8; NBW = 64; NWG = 16384 // NBW
NPAIR = [(OPT['RAMP'] >> 4*w) & 15 for w in range(NW)]
assert sum(NPAIR) == 24 and max(NPAIR) <= 14
LA = OPT['LA']; VW = OPT['VW'] if OPT['VW'] >= 0 else 2*(LA-2)
H = OPT['H']; NS = NBW - H
assert H % 4 == 0 and H <= 2*NPAIR[7]
MAP = OPT['MAP']
WB = 8 if MAP else NBW
PX = OPT['PX']
LP_ = LA + PX
assert LP_ <= 4
POL = ['', ' nt', ' sc1', ' sc0 sc1', ' sc1 nt', ' sc0 nt', ' sc0 sc1 nt', ' sc0']
NL2E = 0xBFB8AA3B

WAC = 0
W2T = 16384; B1T = W2T + 256
FFB = W2T + 512
DESC = FFB + 256
TKT = DESC + 448; SCC_ = TKT + 4
RING = DESC + 512
TAB = RING + NW * 8192
TS = 528
LIST = TAB + NBW * TS
OUT = LIST + NBW * 256
SCR = OUT + (NBW + H + 1) * 256
STG = LIST + 16 * 256
if OPT['P3']: STG = SCR + NW * 128 - 24576
LDS_BYTES = max(SCR + NW * 128, STG + 32768)
DUM = LDS_BYTES
LDS_BYTES += 2048 * PX
assert LDS_BYTES <= 163840 and RING % 256 == 0 and STG % 128 == 0

L = []
INLOOP = [False]
def e(s):
    K = OPT['KILL'] if INLOOP[0] else 0
    if K & 256 and s.startswith(('v_exp', 'v_mfma')): s = 's_nop 0'
    if K & 256 and s.startswith(('v_pk', 'v_rcp', 'v_cvt')): return
    if K & 1024 and s.startswith('v_pk') and INLOOP[0] == 1: return
    if K & 1 and s.startswith('v_mfma') and '4x4x4' in s: s = 's_nop 0'
    if K & 2 and INLOOP[0] == 2 and s.startswith(('v_pk_fma', 'v_cvt')): return
    if K & 4 and INLOOP[0] == 2 and s.startswith('ds_read_b128') and f', {v(V16)} ' in s: return
    if K & 8 and s.startswith('v_mfma') and '4x4x4' not in s: s = 's_nop 0'
    if K & 8 and s.startswith('v_exp'): s = s.split(',')[0] + f', v{int(s.split("v")[-1]) - D + WE}'
    if K & 64 and s.startswith('buffer_load'): return
    if K & 128 and s.startswith('ds_read_u8'): return
    if K & 16 and INLOOP[0] == 1 and s.startswith('ds_read_b128'): return
    if K & 32 and INLOOP[0] == 1 and s.startswith('ds_read_b64_tr'): return
    if K & 2048 and s.startswith('v_exp'): s = 's_nop 0'
    if K and s.startswith('s_cbranch_vccnz SLOW'): return
    L.append('    ' + s)
def lab(s): L.append(s + ':')
def al():
    if OPT['AL']: L.append('    .p2align 3')

_v = [0]
def valloc(n, al=1):
    b = (_v[0] + al - 1) // al * al
    _v[0] = b + n
    return b
T = valloc(8, 2)
WD = valloc(64, 4); WE = valloc(32, 4); D = valloc(16, 4); W2 = valloc(16, 4); CB = valloc(16, 4)
B = valloc(8, 4); B3 = valloc(16, 4); O = valloc(4, 4); WR = valloc(56, 4)
A3 = valloc(2, 2); IDX = valloc(4, 2); AB = valloc(2); AT = valloc(2)
ALI = valloc(1); ALB = valloc(1); ASR = valloc(1); ASW = valloc(1); AO = valloc(1); V16 = valloc(1); G16 = valloc(1)
TK = valloc(1); TD = valloc(1)
X = WR; MC = WR + 24; RJ = WR + 28; CV = WR + 32; HB = WR + 33; FF = WR + 34; PA = WR + 36; AD = WR + 46
TSV = valloc(1) if OPT['STAMP'] == 8 else None
NVGPR = _v[0]
assert NVGPR <= 256, NVGPR

def v(n, c=1): return f'v{n}' if c == 1 else f'v[{n}:{n+c-1}]'
def s(n, c=1): return f's{n}' if c == 1 else f's[{n}:{n+c-1}]'

SRD_H, SRD_M, SRD_O, SRD_T, SRD_W1, SRD_C = 20, 24, 28, 32, 36, 40
S_RA = 32; S_RB = 34; S_RC = 36
S_B2Q = 44; S_INV = 46
(S_WAVE, S_WGH, S_PC, S_PSOFF, S_CUR, S_PREV, S_RING, S_PS, S_T0, S_T1, S_T2, S_T3, S_L2E, S_ONE, S_CC, S_B2) = range(48, 64)
S_BAL = 4
S_BAD = 64
S_TP = 66
S_Q = 68
S_CLS = 45; S_NP = 47; S_P0 = 70; S_MO = 71; S_PS1 = 72; S_K = 73; S_SV = 74; S_QN = 75; S_CS = 76; S_M = 77; S_EX = 78; S_DC = 42; S_CM = 40
L3 = OPT['LW'] == 3
S_PCU = None
if L3: S_PSOFF = 32; S_PS1 = 33; S_PCU = 34
NSGPR = 80
S_ST = 80
if OPT['STAMP']: NSGPR = 100
def bstamp():
    if OPT['STAMP'] == 8:
        e(f's_memrealtime {s(S_ST+2,2)}')
        e('s_waitcnt lgkmcnt(0)')
        e(f's_lshl_b64 exec, 1, {s(S_ST+4)}')
        e(f'v_mov_b32 {v(TSV)}, {s(S_ST+2)}')
        e('s_mov_b64 exec, -1')
        e(f's_add_u32 {s(S_ST+4)}, {s(S_ST+4)}, 1')
def tic(i, op='s_sub_u32'):
    if OPT['STAMP'] == 9 and OPT['SEC'] >> i & 1:
        e(f's_cselect_b32 {s(S_ST+1)}, 1, 0')
        e('s_memtime s[98:99]')
        e('s_waitcnt lgkmcnt(0)')
        e(f'{op} {s(S_ST+2*i)}, {s(S_ST+2*i)}, s98')
        e(f's_cmp_lg_u32 {s(S_ST+1)}, 0')
def toc(i): tic(i, 's_add_u32')
def pst(mode, i):
    if OPT['STAMP'] == mode: e(f's_memrealtime {s(S_ST+2*i,2)}')
def stamp(i):
    if OPT['STAMP'] in (3, 4):
        if i == 0: e(f's_memrealtime {s(S_ST,2)}')
        if i == 7: e('s_waitcnt lgkmcnt(0)')
        return
    if OPT['STAMP'] and i == 0: e(f's_mov_b32 {s(S_ST+17)}, 0')
    if OPT['STAMP'] == 9:
        if i == 0:
            for j in range(8): e(f's_mov_b32 {s(S_ST+2*j)}, 0')
        return
    if OPT['STAMP'] == 8:
        if i == 0:
            e(f's_mov_b32 {s(S_ST+4)}, 0')
            e(f'v_mov_b32 {v(TSV)}, 0')
            bstamp()
        if i in (5, 7): bstamp()
        return
    if OPT['STAMP']:
        if (OPT['STAMP'] == 2 or OPT['SMODE']) and i in (3, 4): return
        e(f's_memrealtime {s(S_ST+2*i,2)}')
        if (OPT['STAMP'] == 2 or OPT['SMODE']) and i in (5, 6): e(f's_memtime {s(S_ST+2*(i-2),2)}')
        e('s_waitcnt lgkmcnt(0)')

KN = 'standalone__sequential_behavior_din__recsys_kernel'

class LQ:
    def __init__(self): self.q = []
    def op(self, text, tag=None): e(text); self.q.append(tag)
    def wait(self, tag):
        i = max(j for j, t in enumerate(self.q) if t == tag)
        e(f's_waitcnt lgkmcnt({min(len(self.q) - 1 - i, 15)})')

def M16(d, a, b, c): return f'v_mfma_f32_16x16x32_bf16 {v(d,4)}, {v(a,4)}, {v(b,4)}, ' + (v(c,4) if c is not None else '0')
def MM1(t, sx, b=None): return M16(D+4*t, WE+4*(2*t+sx), (B if b is None else b)+4*sx, D+4*t if sx else CB+4*t)
def EX(i): return f'v_exp_f32 {v(D+i)}, {v(D+i)}'
def M0S(u, c): return f's_add_u32 m0, {s(S_RING)}, {u*2048 + c*1024}'
def DMA(r, c=0):
    so = (S_PSOFF if c else S_PS1) + (2 if L3 and INLOOP[0] else 0)
    return f'buffer_load_dwordx4 {v(r,2)}, {s(SRD_H,4)}, {s(so)} idxen offen{" offset:1024" if c else ""}{POL[OPT["HP"]]} lds'
def IDXR(r, off): return f'ds_read_u8 {v(r)}, {v(ALI)} offset:{off}'
def HI():
    if OPT['YP']: e('s_setprio 1')
def LO():
    if OPT['YP']: e('s_setprio 0')
VIRT = 0x240
def goff(dst, b, sh, row, tmp):
    if MAP: e(f's_lshr_b32 {s(tmp)}, {s(b)}, {sh}')
    e(f's_mul_i32 {s(dst)}, {s(b)}, {row}')
    if MAP:
        e(f's_mul_i32 {s(tmp)}, {s(tmp)}, {255*(row << sh)}')
        e(f's_add_u32 {s(dst)}, {s(dst)}, {s(tmp)}')
def WRF(c): return CB + 8 if c == 6 else WR + 8*(c if c < 6 else 6)

L.append(f'''; Kernarg layout for this problem (80 bytes, ptrs only, base s[0:1]):
; @launch grid=({NWG},1,1) block=({NW*64},1,1) lds={LDS_BYTES}
.amdgcn_target "amdgcn-amd-amdhsa--gfx950"
.text
.globl {KN}
.p2align 8
.type {KN},@function
{KN}:''')

LANE = O; VG = O + 1; VN = O + 2; LMX = O + 3
TB = B3
TR = CB; TRB = CB + 4; B1A = CB + 6; TW = CB + 7; TRW = CB + 8; PB = CB + 9; SM = CB + 10; JUNK = CB + 14; WW = CB + 15
IX2 = B; WA = W2; TT = W2 + 4; AC = WR + 38; TF = T + 3
def XR(i): return X + 4*i if i < 6 else WD + 32 + 4*(i-6)
def MLD(dst, off=0): return f'buffer_load_dwordx4 {v(dst,4)}, {v(LMX)}, {s(SRD_M,4)}, {s(S_MO)} offen offset:{off}{POL[OPT["MP"]]}'
def desc(dst, cw, add, umin):
    e(f's_and_b32 {s(S_T3)}, {s(cw)}, 0xff')
    e(f's_lshr_b32 {s(cw)}, {s(cw)}, 8')
    e(f's_add_u32 {s(S_T3)}, {s(S_T3)}, 15')
    if OPT['XM']:
        e(f's_and_b32 {s(dst)}, {s(S_T3)}, 15')
        e(f's_lshl_b32 {s(dst)}, {s(dst)}, 12')
        e(f's_or_b32 {s(cw)}, {s(cw)}, {s(dst)}')
    e(f's_lshr_b32 {s(S_T3)}, {s(S_T3)}, 4')
    e(f's_max_u32 {s(S_T3)}, {s(S_T3)}, {umin}')
    e(f's_lshl1_add_u32 {s(dst)}, {s(S_WAVE)}, {s(cw)}')
    e(f's_lshl_b32 {s(cw)}, {s(S_T3)}, 8')
    e(f's_or_b32 {s(dst)}, {s(dst)}, {s(cw)}')
    if add: e(f's_or_b32 {s(dst)}, {s(dst)}, 1')
def tile_fill(k, part=3):
    rr = (IDX, IDX+2, IX2, IX2+2)[:2*(LP_-2) if k else 4]
    if part & 1:
        for c, r in enumerate(rr): e(IDXR(r, 32*k+8*c))
        e(M0S(2*k, 0))
    if part & 2:
        for c, r in enumerate(rr):
            if part & 1: e(f's_waitcnt lgkmcnt({len(rr)-1-c})')
            e(DMA(r, c & 1))
            if c == 1 and len(rr) > 2:
                e(M0S(2*k+1, 0))
                if not part & 1: e('s_nop 0')
UNI = MAP and all(n in (0, max(NPAIR)) for n in NPAIR) and max(NPAIR) % 4 == 0
def more_masks():
    if UNI:
        e(f's_cmp_eq_u32 {s(S_NP)}, 0')
        e('s_cbranch_scc1 P_MJ')
        e(f's_mul_i32 {s(S_MO)}, {s(S_P0)}, {2048*400//8}')
        for i in range(max(NPAIR)):
            if i and i % 4 == 0: e(f's_add_u32 {s(S_MO)}, {s(S_MO)}, {2048*400}')
            e(MLD(XR(i), 800*(i % 4)))
        lab('P_MJ')
        return
    for i in range(max(NPAIR)):
        e(f's_cmp_le_u32 {s(S_NP)}, {i}')
        e('s_cbranch_scc1 P_MJ')
        if MAP:
            e(f's_lshr_b32 {s(S_T0)}, {s(S_P0)}, 1')
            if i: e(f's_add_u32 {s(S_T0)}, {s(S_T0)}, {i}')
            goff(S_MO, S_T0, 2, 800, S_T3)
        assert MAP or i < 6
        e(MLD(XR(i), 0 if MAP else 800*i))
    lab('P_MJ')
def swz(dst, src):
    e(f'v_bfrev_b32 {v(dst)}, {v(src)}')
    e(f'v_lshrrev_b32 {v(dst)}, 28, {v(dst)}')
    e(f'v_and_b32 {v(dst)}, 6, {v(dst)}')
def wr_reads():
    for c in (0, 2, 4, 1, 3, 5, 7):
        for jh in range(2): e(f'ds_read_b128 {v(WRF(c)+4*jh,4)}, {v(V16)} offset:{WAC+(c*2+jh)*1024}')

e(f's_cmpk_ge_u32 s2, {NWG}')
e('s_cbranch_scc1 L_END')
stamp(0)
e('s_load_dwordx16 s[4:19], s[0:1], 0')
if OPT['EW']:
    e('s_waitcnt lgkmcnt(0)')
    stamp(3)
    _s3 = stamp
    def stamp(i):
        if i != 3: _s3(i)
if OPT['PP']: e('s_setprio 3')
e(f'v_lshrrev_b32 {v(T+1)}, 6, v0')
e(f'v_and_b32 {v(LANE)}, 63, v0')
e(f'v_readfirstlane_b32 {s(S_WAVE)}, {v(T+1)}')
if OPT['CPF']:
    e(f's_getpc_b64 {s(SRD_C,2)}')
    lab('L_PC')
    e(f's_sub_u32 {s(S_T0)}, {s(S_WAVE)}, {OPT["CW"]}')
    e(f's_cmp_ge_u32 {s(S_T0)}, {OPT["CN"]}')
    e('s_cbranch_scc1 P_NC')
    e(f's_mov_b32 {s(SRD_C+2)}, L_END-L_PC')
    e(f's_mov_b32 {s(SRD_C+3)}, 0x20000')
    e(f'v_subrev_u32 {v(JUNK)}, {64*OPT["CW"]}, v0')
    e(f'v_lshlrev_b32 {v(JUNK)}, {OPT["CS"]}, {v(JUNK)}')
    e(f'buffer_load_dword {v(JUNK)}, {v(JUNK)}, {s(SRD_C,4)}, 0 offen')
    lab('P_NC')
e(f'v_and_b32 {v(T+2)}, 31, v0')
e(f'v_bfe_u32 {v(T+3)}, v0, 5, 1')
e(f'v_cmp_gt_u32 vcc, 25, {v(T+2)}')
e(f'v_mul_u32_u24 {v(T+4)}, 400, {v(T+3)}')
e(f'v_lshl_add_u32 {v(LMX)}, {v(T+2)}, 4, {v(T+4)}')
e(f'v_bfrev_b32 {v(T+4)}, 8')
e(f'v_cndmask_b32 {v(LMX)}, {v(T+4)}, {v(LMX)}, vcc')
e(f's_mul_i32 {s(S_T1)}, s2, {WB*400}')
e(f's_sub_u32 {s(SRD_M+2)}, {16384*400}, {s(S_T1)}')
goff(S_MO, S_WAVE, 2, 800, S_T3)
e(f's_mov_b32 {s(SRD_M+3)}, 0x20000')
e(f's_lshl_b32 {s(S_SV)}, {s(S_WAVE)}, 12')
e(f's_lshl_b32 {s(S_PREV)}, s2, {10 if MAP else 13}')
e(f'v_lshlrev_b32 {v(V16)}, 4, {v(LANE)}')
e(f'v_lshlrev_b32 {v(WA)}, 1, {v(LANE)}')
e(f'v_and_b32 {v(WA)}, 32, {v(WA)}')
e(f'v_xor_b32 {v(WA)}, {v(WA)}, {v(V16)}')
e(f'v_xor_b32 {v(WA+1)}, 64, {v(WA)}')
e(f's_mov_b32 {s(SRD_W1+2)}, 32768')
e(f's_mov_b32 {s(SRD_W1+3)}, {s(SRD_M+3)}')
e(f's_lshl_b32 {s(S_T2)}, {s(S_WAVE)}, {18 if MAP else 10}')
e(f's_sub_u32 {s(SRD_T+2)}, {16384*128}, {s(S_PREV)}')
e(f's_mov_b32 {s(SRD_T+3)}, {s(SRD_M+3)}')
e(f's_add_u32 m0, {s(S_SV)}, {STG}')
e(f'v_and_b32 {v(VN)}, 15, {v(LANE)}')
e(f'v_lshrrev_b32 {v(VG)}, 4, {v(LANE)}')
e(f'v_lshlrev_b32 {v(G16)}, 4, {v(VG)}')
e(f'v_mul_u32_u24 {v(RJ)}, 0x80008, {v(T+2)}')
e(f'v_lshrrev_b32 {v(IDX)}, 3, {v(LANE)}')
e(f'v_add_u32 {v(RJ)}, 0x10000, {v(RJ)}')
e(f'v_cmp_gt_u32 vcc, 32, {v(LANE)}')
e('s_waitcnt lgkmcnt(0)')
stamp(1)
e(f's_add_u32 {s(SRD_M)}, s8, {s(S_T1)}')
e(f's_addc_u32 {s(SRD_M+1)}, s9, 0')
e(f's_mov_b64 {s(SRD_W1,2)}, s[10:11]')
e(MLD(MC))
pst(4, 1)
if OPT['PP']: e('s_setprio 0')
e(f's_add_u32 {s(SRD_T)}, s4, {s(S_PREV)}')
e(f's_addc_u32 {s(SRD_T+1)}, s5, 0')
e(f's_load_dword {s(S_B2)}, s[16:17], 0')
e(f's_cmp_lg_u32 {s(S_WAVE)}, 0')
e('s_cbranch_scc1 P_LJ')
e(f'v_mov_b32 {v(SM)}, s12')
e(f'v_mov_b32 {v(SM+1)}, s13')
e(f'v_mov_b32 {v(SM+2)}, s14')
e(f'v_mov_b32 {v(SM+3)}, s15')
e(f'v_lshlrev_b32 {v(T+4)}, 2, {v(T+2)}')
e(f'v_cndmask_b32 {v(SM)}, {v(SM)}, {v(SM+2)}, vcc')
e(f'v_cndmask_b32 {v(SM+1)}, {v(SM+1)}, {v(SM+3)}, vcc')
e(f'v_add_co_u32 {v(SM)}, vcc, {v(SM)}, {v(T+4)}')
e('s_nop 1')
e(f'v_addc_co_u32 {v(SM+1)}, vcc, 0, {v(SM+1)}, vcc')
e(f'global_load_dword {v(SM)}, {v(SM,2)}, off')
lab('P_LJ')
loads = [f'buffer_load_dwordx4 {v(TT,4)}, {v(V16)}, {s(SRD_T,4)}, {s(S_T2)} offen{POL[OPT["TP"]]}']
loads += [f'buffer_load_dwordx4 {v(WA+(c&1))}, {s(SRD_W1,4)}, {s(S_SV)} offen offset:{1024*c} lds' for c in range(4)]
n0 = len(L)
e(f's_lshl1_add_u32 {s(S_RING)}, {s(S_SV)}, {RING}')
e(f's_mul_i32 {s(S_WGH)}, s2, {WB*25600}')
e(f's_lshl_b32 {s(S_T1)}, {s(S_WAVE)}, 9')
e(f'v_add_u32 {v(ALB)}, {LIST}, {v(IDX)}')
e(f'v_add_u32 {v(ALI)}, {s(S_T1)}, {v(ALB)}')
e(f's_add_u32 {s(S_T0)}, {s(S_T1)}, {LIST}')
for i in range(1, 4): e(f'v_add_u32 {v(RJ+i)}, 0x{0x20002*i:x}, {v(RJ)}')
e(f's_sub_u32 {s(SRD_H)}, s6, 1024')
e(f's_subb_u32 {s(SRD_H+1)}, s7, 0')
e(f's_or_b32 {s(SRD_H+1)}, {s(SRD_H+1)}, 0x800000')
e(f's_movk_i32 {s(SRD_H+2)}, 200')
e(f's_mov_b32 {s(SRD_H+3)}, {s(SRD_M+3)}')
e(f's_movk_i32 {s(S_ONE)}, 0x3f80')
e(f'v_lshrrev_b32 {v(PA)}, 1, {v(V16)}')
e(f'v_and_b32 {v(HB)}, 0x100, {v(PA)}')
e(f'v_mov_b64 {v(FF,2)}, -1')
e(f'v_lshlrev_b32 {v(AO)}, 2, {v(LANE)}')
swz(T+2, IDX)
e(f'v_xor_b32 {v(T+2)}, {v(T+2)}, {v(LANE)}')
e(f'v_and_b32 {v(T+2)}, 7, {v(T+2)}')
e(f'v_mul_u32_u24 {v(TW)}, {TS}, {v(IDX)}')
for r in (IDX+1, IDX+3, IX2+1, IX2+3): e(f'v_lshlrev_b32 {v(r)}, 4, {v(T+2)}')
e(f's_add_u32 {s(SRD_O)}, s18, {s(S_PREV)}')
e(f's_addc_u32 {s(SRD_O+1)}, s19, 0')
e(f's_sub_u32 {s(SRD_O+2)}, {16384*128}, {s(S_PREV)}')
e(f's_mov_b32 {s(SRD_O+3)}, {s(SRD_M+3)}')
e(f's_mov_b32 {s(S_L2E)}, 0x{NL2E:08x}')
e(f's_mov_b32 {s(S_DC)}, 0x{(127-OPT["DS"]) << 23:08x}')
e(f's_mov_b32 {s(S_INV)}, 0x{(127-OPT["BOOST"]) << 23:08x}')
goff(S_PSOFF, S_WAVE, 2, 51200, S_T3)
if OPT['NOMEM']: e(f's_mov_b32 {s(S_PSOFF)}, 0')
else: e(f's_add_u32 {s(S_PSOFF)}, {s(S_PSOFF)}, {s(S_WGH)}')
e(f's_add_u32 {s(S_PS1)}, {s(S_PSOFF)}, 1024')
swz(T+2, VN)
e(f'v_xor_b32 {v(T+2)}, {v(T+2)}, {v(VG)}')
e(f'v_lshl_add_u32 {v(T+2)}, {v(T+2)}, 4, {s(S_RING)}')
e(f'v_lshl_add_u32 {v(AB)}, {v(VN)}, 7, {v(T+2)}')
e(f'v_xor_b32 {v(AB+1)}, 64, {v(AB)}')
e(f'v_and_b32 {v(T+3)}, 3, {v(LANE)}')
e(f'v_bfe_u32 {v(T+2)}, {v(LANE)}, 2, 2')
e(f'v_lshlrev_b32 {v(T+7)}, 3, {v(T+3)}')
e(f'v_lshl_add_u32 {v(T+7)}, {v(T+2)}, 7, {v(T+7)}')
e(f'v_and_b32 {v(T+6)}, 8, {v(LANE)}')
e(f'v_lshlrev_b32 {v(T+6)}, 3, {v(T+6)}')
e(f'v_lshl_add_u32 {v(AT)}, {v(VG)}, 5, {v(T+7)}')
e(f'v_xor_b32 {v(AT)}, {v(AT)}, {v(T+6)}')
e(f'v_add_u32 {v(AT)}, {s(S_RING)}, {v(AT)}')
e(f'v_xor_b32 {v(AT+1)}, 32, {v(AT)}')
e(f's_lshl_b32 {s(S_T1)}, {s(S_WAVE)}, 7')
e(f's_add_u32 {s(S_T1)}, {s(S_T1)}, {SCR}')
e(f'v_lshl_add_u32 {v(ASW)}, {v(T+2)}, 2, {v(VG)}')
e(f'v_lshl_add_u32 {v(ASW)}, {v(ASW)}, 2, {v(T+3)}')
e(f'v_lshl_add_u32 {v(ASW)}, {v(ASW)}, 1, {s(S_T1)}')
e(f'v_lshl_add_u32 {v(ASR)}, {v(VN)}, 3, {s(S_T1)}')
e(f'v_and_b32 {v(T+6)}, 0x60, {v(AO)}')
e(f'v_or_b32 {v(T+6)}, {v(T+6)}, {v(T+7)}')
e(f'v_lshl_add_u32 {v(TR)}, {v(VG)}, 10, {v(T+6)}')
e(f's_mul_i32 {s(S_T1)}, {s(S_WAVE)}, 0x1010')
e(f's_and_b32 {s(S_T1)}, {s(S_T1)}, 0x1060')
e(f'v_xor_b32 {v(TRW)}, {s(S_T1)}, {v(TR)}')
e(f'v_add_u32 {v(TR)}, {STG}, {v(TR)}')
e(f'v_add_u32 {v(TRW)}, {STG}, {v(TRW)}')
for t in range(1, 4): e(f'v_xor_b32 {v(TR+t)}, {32*t}, {v(TR)}')
e(f's_and_b32 {s(S_T3)}, {s(S_WAVE)}, 4')
e(f's_lshl_b32 {s(S_T3)}, {s(S_T3)}, 4')
e(f'v_xor_b32 {v(TRB)}, {s(S_T3)}, {v(TR)}')
e(f'v_xor_b32 {v(TRB+1)}, 32, {v(TRB)}')
e(f's_and_b32 {s(S_T1)}, {s(S_WAVE)}, 3')
e(f's_mul_i32 {s(S_T1)}, {s(S_T1)}, {16*TS}')
e(f's_lshl1_add_u32 {s(S_T1)}, {s(S_T3)}, {s(S_T1)}')
e(f's_add_u32 {s(S_T1)}, {s(S_T1)}, {TAB}')
e(f'v_mul_u32_u24 {v(PB)}, {TS}, {v(VN)}')
e(f'v_add3_u32 {v(PB)}, {v(PB)}, {v(G16)}, {s(S_T1)}')
e(f'v_lshl_add_u32 {v(B1A)}, {s(S_T3)}, 1, {v(G16)}')
e(f's_mul_i32 {s(S_T1)}, {s(S_WAVE)}, {8*TS}')
e(f's_add_u32 {s(S_T1)}, {s(S_T1)}, {TAB}')
e(f'v_and_b32 {v(TF)}, 0x70, {v(V16)}')
e(f'v_add3_u32 {v(TW)}, {v(TW)}, {v(TF)}, {s(S_T1)}')
e(f'v_add_u32 {v(TF)}, {v(TW)}, {v(TF)}')
e(f's_lshl_b32 {s(S_T1)}, {s(S_WAVE)}, 11')
e(f'v_add_u32 {v(WW)}, {s(S_T1)}, {v(V16)}')
tab = 0; st_ = 0
for w in range(NW + 1):
    tab |= st_ << 5*w
    if w < NW: st_ += NPAIR[w]
e(f's_mov_b32 {s(S_TP)}, 0x{tab & 0xffffffff:x}')
e(f's_mov_b32 {s(S_TP+1)}, 0x{tab >> 32:x}')
e(f's_mul_i32 {s(S_T1)}, {s(S_WAVE)}, 5')
e(f's_lshr_b64 {s(S_TP,2)}, {s(S_TP,2)}, {s(S_T1)}')
e(f's_and_b32 {s(S_P0)}, {s(S_TP)}, 31')
e(f's_bfe_u32 {s(S_NP)}, {s(S_TP)}, 0x50005')
e(f's_sub_u32 {s(S_NP)}, {s(S_NP)}, {s(S_P0)}')
e(f's_lshl1_add_u32 {s(S_P0)}, {s(S_P0)}, 16')
e(f's_mul_i32 {s(S_MO)}, {s(S_P0)}, 400')
fill = L[n0:]; del L[n0:]
pos = {0: [0]*5, 2: [0, 0, 0, len(fill), len(fill)], 3: [0, 0, 0, len(fill)//2, len(fill)//2]}[OPT['SP']]
for i in range(len(fill) + 1):
    for j, ld in enumerate(loads):
        if pos[j] == i: e(ld)
    if i < len(fill): L.append(fill[i])
pst(4, 3)
e(f's_cmp_eq_u32 {s(S_WAVE)}, 0')
e('s_waitcnt vmcnt(6) lgkmcnt(0)')
e('s_cbranch_scc1 P_M0')
e('s_waitcnt vmcnt(5)')
lab('P_M0')
stamp(2)
pst(4, 4)
if OPT['MM'] == 0: more_masks()
e(f's_call_b64 {s(S_RC,2)}, CMP')
e('s_branch P_C')
al()
lab('CMP')
if OPT['C2']:
    def cq(j): return f'v_cmp_eq_u16_sdwa {s(S_BAL+2*j,2)}, {v(MC+j//2)}, {s(S_ONE)} src0_sel:WORD_1 src1_sel:WORD_0' if j & 1 else f'v_cmp_eq_u16_e64 {s(S_BAL+2*j,2)}, {s(S_ONE)}, {v(MC+j//2)}'
    for i in range(4): e(f'v_bcnt_u32_b32 {v(T+7)}, {v(MC+i)}, {v(T+7) if i else 0}')
    e(f'v_add_u32 {v(T+4)}, {s(S_T0)}, {v(PA)}')
    e(f'v_mov_b32 {v(T+6)}, {v(T+7)}')
    e(f'ds_write_b64 {v(T+4)}, {v(FF,2)}')
    for i, d in enumerate(('row_shr:1', 'row_shr:2', 'row_shr:4', 'row_shr:8')):
        e(cq(2*i)); e(cq(2*i+1))
        e(f'v_add_u32_dpp {v(T+6)}, {v(T+6)}, {v(T+6)} {d} row_mask:0xf bank_mask:0xf bound_ctrl:0')
    e('s_nop 1')
    e(f'v_add_u32_dpp {v(T+6)}, {v(T+6)}, {v(T+6)} row_bcast:15 row_mask:0xa bank_mask:0xf')
    e(f'v_sub_u32 {v(T+6)}, {v(T+6)}, {v(T+7)}')
    e(f'v_mul_u32_u24 {v(T+6)}, 9363, {v(T+6)}')
    e(f'v_lshrrev_b32 {v(T+6)}, 16, {v(T+6)}')
    e(f'v_min_u32 {v(T+6)}, 200, {v(T+6)}')
    e(f'v_add3_u32 {v(AD)}, {v(T+6)}, {v(HB)}, {s(S_T0)}')
    e(f'v_readlane_b32 {s(S_T3)}, {v(T+6)}, 31')
    e(f'v_readlane_b32 {s(S_T2)}, {v(T+6)}, 63')
    for j in range(8): e(f'v_addc_co_u32_e64 {v(AD+j+1)}, vcc, 0, {v(AD+j)}, {s(S_BAL+2*j,2)}')
    for j in range(8):
        e(f's_mov_b64 exec, {s(S_BAL+2*j,2)}')
        e(f'ds_write_b8{"_d16_hi" if j & 1 else ""} {v(AD+j)}, {v(RJ+j//2)}')
    e('s_mov_b64 exec, -1')
    e(f'v_sub_u32 {v(T+6)}, {v(AD+8)}, {v(AD)}')
    e(f'v_mul_u32_u24 {v(T+6)}, 7, {v(T+6)}')
    e(f'v_cmp_ne_u32 vcc, {v(T+6)}, {v(T+7)}')
else:
    for j in range(8):
        if j & 1: e(f'v_cmp_eq_u16_sdwa {s(S_BAL+2*j,2)}, {v(MC+j//2)}, {s(S_ONE)} src0_sel:WORD_1 src1_sel:WORD_0')
        else: e(f'v_cmp_eq_u16_e64 {s(S_BAL+2*j,2)}, {s(S_ONE)}, {v(MC+j//2)}')
    e(f'v_lshrrev_b32 {v(T+7)}, 1, {v(V16)}')
    e(f'v_add_u32 {v(T+7)}, {s(S_T0)}, {v(T+7)}')
    e(f'v_mov_b64 {v(T+4,2)}, -1')
    e(f'ds_write_b64 {v(T+7)}, {v(T+4,2)}')
    al()
    for j in range(8):
        e(f'v_mbcnt_lo_u32_b32 {v(T+6)}, {s(S_BAL+2*j)}, {v(T+6) if j else 0}')
        e(f'v_mbcnt_hi_u32_b32 {v(T+6)}, {s(S_BAL+2*j+1)}, {v(T+6)}')
    e(f'v_bcnt_u32_b32 {v(T+7)}, {v(MC)}, 0')
    e(f'v_readlane_b32 {s(S_T3)}, {v(T+6)}, 31')
    e(f'v_readlane_b32 {s(S_T2)}, {v(T+6)}, 63')
    e(f'v_add_u32 {v(T+6)}, {s(S_T0)}, {v(T+6)}')
    e('s_mov_b32 exec_lo, 0')
    e(f's_sub_u32 {s(S_T1)}, 256, {s(S_T3)}')
    e(f'v_add_u32 {v(T+6)}, {s(S_T1)}, {v(T+6)}')
    e('s_mov_b32 exec_lo, -1')
    e(f'v_mad_u32_u24 {v(T+7)}, {v(T+6)}, 7, {v(T+7)}')
    e(f's_sub_u32 {s(S_T2)}, {s(S_T2)}, {s(S_T3)}')
    for j in range(8):
        e(f's_mov_b64 exec, {s(S_BAL+2*j,2)}')
        e(f'ds_write_b8{"_d16_hi" if j & 1 else ""} {v(T+6)}, {v(RJ+j//2)}')
        e(f'v_add_u32 {v(T+6)}, 1, {v(T+6)}')
    e('s_mov_b64 exec, -1')
    for i in range(1, 4): e(f'v_bcnt_u32_b32 {v(T+7)}, {v(MC+i)}, {v(T+7)}')
    e(f'v_mul_u32_u24 {v(T+6)}, 7, {v(T+6)}')
    e(f'v_cmp_ne_u32 vcc, {v(T+6)}, {v(T+7)}')
e(f's_min_u32 {s(S_BAD)}, vcc_lo, 1')
e(f's_min_u32 {s(S_BAD+1)}, vcc_hi, 1')
e(f's_lshl_b64 {s(S_BAD,2)}, {s(S_BAD,2)}, 15')
e(f's_or_b32 {s(S_T1)}, {s(S_T3)}, {s(S_BAD)}')
e(f's_or_b32 {s(S_T2)}, {s(S_T2)}, {s(S_BAD+1)}')
e(f's_setpc_b64 {s(S_RC,2)}')

lab('P_C')
pst(4, 5)
tile_fill(0)
pst(4, 6)
e(f's_lshl_b32 {s(S_B2)}, {s(S_B2)}, 16')
e(f's_cmp_lg_u32 {s(S_WAVE)}, 0')
e('s_waitcnt vmcnt(8)')
e('s_cbranch_scc1 P_SW_J')
e(f'v_lshlrev_b32 {v(SM+2)}, 16, {v(SM)}')
e(f'v_and_b32 {v(SM+3)}, 0xffff0000, {v(SM)}')
e(f'v_mov_b32 {v(T+4)}, -1')
e(f'v_mov_b32 {v(T+5)}, 0')
e(f'v_mov_b32 {v(T+6)}, 0x{VIRT:x}')
e(f'v_lshrrev_b32 {v(T)}, 1, {v(V16)}')
e(f'ds_write2st64_b32 {v(AO)}, {v(T+4)}, {v(T+5)} offset0:{FFB//256} offset1:{DESC//256}')
e('s_mov_b32 exec_hi, 0')
e(f'v_max3_f32 {v(T+2)}, abs({v(SM+2)}), abs({v(SM+3)}), abs({s(S_B2)})')
e(f'v_ldexp_f32 {v(SM+2)}, {v(SM+2)}, {OPT["BOOST"]}')
e(f'v_ldexp_f32 {v(SM+3)}, {v(SM+3)}, {OPT["BOOST"]}')
e(f'v_cmp_le_f32 vcc, 0x{(127+16-OPT["BOOST"]) << 23:08x}, {v(T+2)}')
e('s_mov_b32 exec_lo, 0x55')
e(f'v_mul_f32 {v(SM+2)}, {s(S_DC)}, {v(SM+2)}')
e(f'v_mul_f32 {v(SM+3)}, {s(S_DC)}, {v(SM+3)}')
e('s_mov_b32 exec_lo, -1')
if H: e(f'ds_write_b32 {v(AO)}, {v(T+5)} offset:{DESC + 4*NBW}')
e(f'ds_write_b32 {v(AO)}, {v(T+6)} offset:{DESC + 4*(NBW+H)}')
e('s_mov_b32 exec_hi, -1')
e(f's_movk_i32 {s(S_T0)}, 0x3ff')
e('s_cmp_lg_u64 vcc, 0')
e(f's_cmovk_i32 {s(S_T0)}, 0x207')
e(f'v_mov_b32 {v(T+6)}, {DESC + 4*NW}')
e(f'v_mov_b32 {v(T+7)}, {s(S_T0)}')
e(f'ds_write_b64 {v(T)}, {v(SM+2,2)} offset:{W2T}')
e(f'ds_write_b64 {v(T+5)}, {v(T+6,2)} offset:{TKT}')
lab('P_SW_J')
for i in range(2): e(f'ds_write_b128 {v(TW)}, {v(TT,4)} offset:{256+128*i}')
def ttab(r):
    for i in range(4):
        e(f'v_lshlrev_b32 {v(r+2*i)}, 16, {v(TT+i)}')
        e(f'v_and_b32 {v(r+2*i+1)}, 0xffff0000, {v(TT+i)}')
    for i in range(8): e(f'v_mul_f32 {v(r+i)}, {s(S_L2E)}, {v(r+i)}')
if not OPT['P2']:
    ttab(D)
    for i in range(2): e(f'ds_write_b128 {v(TF)}, {v(D+4*i,4)} offset:{16*i}')
if OPT['P5'] & 1: e('s_setprio 1')
pst(4, 2)
e(f's_waitcnt vmcnt(4) lgkmcnt({0 if OPT["P2"] else 2})')
stamp(3)
e('s_barrier')
stamp(4)
pst(3, 1); pst(4, 7)
q = LQ()
def trw(dst, a, ch, jh, tag=None): q.op(f'ds_read_b64_tr_b16 {v(dst,2)}, {v(a)} offset:{ch*4096 + 512*jh}', tag)
for m in range(2):
    for jh in range(2): trw(AC + 4*m + 2*jh, TRW, 4*m, jh)
for sx in range(2): q.op(f'ds_read_b128 {v(TB+4*sx,4)}, {v(PB)} offset:{256+64*sx}', 'ac')
for tl in range(2): q.op(f'ds_read_b128 {v(D+4*tl,4)}, {v(B1A)} offset:{B1T+64*tl}')
for grp in range(4):
    for tl in range(2):
        for jh in range(2): trw(WD + 32 + (grp*2+tl)*4 + 2*jh, TRB+tl, 2+grp, jh, ('b', grp))
pst(3, 2)
if OPT['MM'] == 1: more_masks()
P4 = OPT['P4']
def descs():
    desc(S_CUR, S_T1, 0, LP_ + L3)
    e(f's_sub_u32 {s(S_PC)}, {s(S_T3)}, {LP_ + L3}')
    desc(S_SV, S_T2, 1, 2)
if not P4: descs()
if OPT['P2']: ttab(WD+16)
q.wait('ac')
for i in range(4):
    e(f'v_lshlrev_b32 {v(WD+2*i)}, 16, {v(AC+i)}')
    e(f'v_and_b32 {v(WD+2*i+1)}, 0xffff0000, {v(AC+i)}')
    e(f'v_lshlrev_b32 {v(WD+8+2*i)}, 16, {v(AC+4+i)}')
    e(f'v_and_b32 {v(WD+8+2*i+1)}, 0xffff0000, {v(AC+4+i)}')
for i in range(8): e(f'v_xor_b32 {v(TB+8+i)}, 0x80008000, {v(TB+i)}')
for grp in range(4):
    q.wait(('b', grp))
    for tl in range(2): e(M16(D+4*tl, WD+32+(grp*2+tl)*4, TB+4*grp, D+4*tl))
    for i in range(2): e(f'v_add_f32 {v(D+8+2*grp+i)}, {v(WD+2*grp+i)}, {v(WD+8+2*grp+i)}')
def wd_reads():
    for t in range(4):
        for sx in range(2):
            for jh in range(2): trw(WE + (t*2+sx)*4 + 2*jh, TR+t, 6+sx, jh, ('d', t))
def w2_reads():
    for t in range(4): q.op(f'ds_read_b128 {v(W2+4*t,4)}, {v(G16)} offset:{W2T+64*t}')
def unpack(a, b):
    for i in range(a, b):
        e(f'v_lshlrev_b32 {v(WD+2*i)}, 16, {v(WE+i)}')
        e(f'v_and_b32 {v(WD+2*i+1)}, 0xffff0000, {v(WE+i)}')
if not OPT['P3'] and not OPT['P5'] & 2: wd_reads()
if OPT['MM'] == 2: more_masks()
for i in range(8): e(f'v_mul_f32 {v(D+8+i)}, {s(S_L2E)}, {v(D+8+i)}')
for i in range(2): q.op(f'ds_write_b128 {v(WW)}, {v(D+8+4*i,4)} offset:{WAC+1024*i}')
for i in range(8): e(f'v_mul_f32 {v(D+i)}, {s(S_L2E)}, {v(D+i)}')
for tl in range(2): q.op(f'ds_write_b128 {v(PB)}, {v(D+4*tl,4)} offset:{256+64*tl}')
if OPT['P2']:
    for i in range(2): q.op(f'ds_write_b128 {v(TF)}, {v(WD+16+4*i,4)} offset:{16*i}')
pst(3, 3)
if OPT['P5'] & 2: wd_reads()
if OPT['P5'] & 1: e('s_setprio 0')
if not OPT['P3']: w2_reads()
q.op(f'ds_read_b32 {v(JUNK)}, {v(G16)} offset:{SCC_}')
def second():
    e(f's_lshl2_add_u32 {s(S_T0)}, {s(S_WAVE)}, {DESC + 4*NW}')
    e(f'v_mov_b32 {v(TK)}, {s(S_T0)}')
    e(f'v_mov_b32 {v(TD)}, {s(S_SV)}')
    q.op(f'ds_write_b32 {v(TK)}, {v(TD)}')
def misc():
    e(f'v_ldexp_f32 {v(T+2)}, {s(S_B2)}, {OPT["BOOST"]-2}')
    e(f'v_add_u32 {v(AO)}, {OUT}, {v(AO)}')
    for i in range(4): e(f'v_mov_b64 {v(B3+8+2*i,2)}, 0')
    e(f'v_readfirstlane_b32 {s(S_B2Q)}, {v(T+2)}')
if not P4: second()
if OPT['MM'] == 3: more_masks()
pst(3, 4)
if not P4: misc()
if not OPT['P3'] and not P4:
    q.wait(('d', 1))
    unpack(0, 16)
if OPT['T1'] == 0: tile_fill(1)
def inits():
    e(f'v_add_u32 {v(ALI)}, {16*(LP_+L3-1)}, {v(ALI)}')
    e(f's_mov_b64 {s(S_Q,2)}, 0')
    e(f's_mov_b32 {s(S_QN)}, 0')
    e(f's_movk_i32 {s(S_PREV)}, 0x1040')
    e(f's_mov_b32 {s(S_K)}, 3')
    e(f's_mov_b32 {s(S_M)}, {3 if OPT["STAMP"] else 0}')
    e(f's_mov_b32 {s(S_PS)}, 0')
    e(f'v_mov_b64 {v(T,2)}, 0')
    e(f'v_mov_b32 {v(T+2)}, 1.0')
    e(f'v_mov_b32 {v(T+3)}, 1.0')
if OPT['P2']:
    tile_fill(1, 1)
    if not P4: inits()
if P4:
    assert UNI and not OPT['P3'] and OPT['P2']
    e(f's_cmp_ge_u32 {s(S_WAVE)}, {P4 if P4 > 1 else 4}')
    e('s_waitcnt lgkmcnt(0)')
    e('s_cbranch_scc1 P_Y')
    e(f's_call_b64 {s(S_RB,2)}, SETUP')
    lab('P_Y')
e('s_waitcnt lgkmcnt(0)')
e('s_barrier')
pst(3, 5)
e(f'v_readfirstlane_b32 {s(S_CLS)}, {v(JUNK)}')
if OPT['T1'] == 1: tile_fill(1, 2 if OPT['P2'] else 3)
if P4:
    e(f's_cmp_lt_u32 {s(S_WAVE)}, {P4 if P4 > 1 else 4}')
    e('s_cbranch_scc1 P_O')
    e(f's_call_b64 {s(S_RB,2)}, SETUP')
    e('s_branch P_O')
    lab('SETUP')
    descs(); second(); misc(); inits()
    unpack(0, 16)
    e(f's_setpc_b64 {s(S_RB,2)}')
    lab('P_O')
e(f's_cmp_eq_u32 {s(S_NP)}, 0')
e('s_cbranch_scc1 P_GO')
if OPT['LP']: e(f's_setprio {OPT["LP"]}')
e(f's_lshl_b32 {s(S_T0)}, {s(S_P0)}, 8')
e(f's_add_u32 {s(S_T0)}, {s(S_T0)}, {LIST}')
if OPT['MM'] == 4: more_masks()
else: e(f's_waitcnt vmcnt({2*(LP_-2)})')
for i in range(max(NPAIR)):
    if OPT['MM'] == 4:
        assert UNI
        e(f's_waitcnt vmcnt({max(NPAIR)-1-i})')
    if i:
        if not UNI:
            e(f's_cmp_le_u32 {s(S_NP)}, {i}')
            e('s_cbranch_scc1 LATE_D')
        e(f's_add_u32 {s(S_T0)}, {s(S_T0)}, 512')
    for j in range(2): e(f'v_mov_b64 {v(MC+2*j,2)}, {v(XR(i)+2*j,2)}')
    e(f's_call_b64 {s(S_RC,2)}, CMP')
    e(f'v_writelane_b32 {v(CV)}, {s(S_T1)}, {2*i}')
    e(f'v_writelane_b32 {v(CV)}, {s(S_T2)}, {2*i+1}')
lab('LATE_D')
e(f'v_add_u32 {v(T+4)}, {s(S_P0)}, {v(LANE)}')
e(f's_lshl_b32 {s(S_T0)}, {s(S_NP)}, 1')
e(f'v_and_b32 {v(T+5)}, 0xff, {v(CV)}')
e(f'v_add_u32 {v(T+5)}, 15, {v(T+5)}')
e(f'v_lshrrev_b32 {v(CV)}, 8, {v(CV)}')
if OPT['XM']:
    assert H == 0
    e(f'v_and_b32 {v(T+6)}, 15, {v(T+5)}')
    e(f'v_lshl_or_b32 {v(CV)}, {v(T+6)}, 12, {v(CV)}')
e(f'v_lshrrev_b32 {v(T+5)}, 4, {v(T+5)}')
e(f'v_max_u32 {v(T+5)}, 2, {v(T+5)}')
e(f'v_or_b32 {v(CV)}, {v(CV)}, {v(T+4)}')
e(f'v_cmp_gt_u32 vcc, {NS}, {v(T+4)}')
e(f'v_lshl_or_b32 {v(T+6)}, {v(T+5)}, 8, {v(CV)}')
e(f'v_lshlrev_b32 {v(T+4)}, 2, {v(T+4)}')
e(f's_bfm_b64 {s(S_TP,2)}, {s(S_T0)}, 0')
e(f's_and_b64 exec, {s(S_TP,2)}, vcc')
e(f'ds_write_b32 {v(T+4)}, {v(T+6)} offset:{DESC}')
if H:
    e(f's_andn2_b64 exec, {s(S_TP,2)}, vcc')
    e(f'v_max_u32 {v(T+5)}, 4, {v(T+5)}')
    e(f'v_add_u32 {v(T+6)}, 1, {v(T+5)}')
    e(f'v_lshrrev_b32 {v(T+6)}, 1, {v(T+6)}')
    e(f'v_sub_u32 {v(T+5)}, {v(T+5)}, {v(T+6)}')
    e(f'v_lshl_or_b32 {v(T+7)}, {v(T+6)}, 4, {v(T+5)}')
    e(f'v_cmp_lt_u32 vcc, 0x7f, {v(CV)}')
    e(f'v_mov_b32 {v(T+5)}, 0xe2')
    e(f'v_lshl_or_b32 {v(T+6)}, {v(T+6)}, 8, {v(CV)}')
    e(f'v_cndmask_b32 {v(T+7)}, {v(T+7)}, {v(T+5)}, vcc')
    e(f'v_and_b32 {v(CV)}, 0x3f, {v(CV)}')
    e(f'v_lshl_or_b32 {v(T+7)}, {v(T+7)}, 8, {v(CV)}')
    e(f'v_lshlrev_b32 {v(T+4)}, 1, {v(T+4)}')
    e(f'ds_write_b64 {v(T+4)}, {v(T+6,2)} offset:{DESC - 4*NS}')
e('s_mov_b64 exec, -1')
if OPT['LP']: e('s_setprio 0')
lab('P_GO')
if OPT['P3']:
    q = LQ()
    wd_reads()
    for t in range(4):
        q.wait(('d', t))
        if t == 3:
            wr_reads()
            w2_reads()
        unpack(8*t, 8*t+8)
else:
    wr_reads()
    unpack(16, 32)
if not OPT['P2']: inits()
for i in range(2): e(f'v_mov_b64 {v(O+2*i,2)}, 0')
e(f's_sub_u32 {s(S_PC)}, {s(S_PC)}, 2')
e('s_cbranch_scc1 DRAW_P')
lab('DRET_P')
if L3: e(IDXR(IDX, 0)); e(IDXR(IDX+2, 8))
if OPT['EG']:
    e(f's_cmp_lt_u32 {s(S_WAVE)}, {OPT["EG0"]}')
    e('s_cselect_b64 vcc, -1, 0')
if PX:
    e(f'v_mov_b32 {v(TD)}, {v(ALI)}')
    e(f'v_mov_b32 {v(ALI)}, {FFB}')
    e(f's_lshl_b32 {s(S_MO)}, {s(S_PC)}, 1')
    e(f's_or_b32 {s(S_MO)}, {s(S_MO)}, {s(S_PS)}')
    e(f's_mov_b32 {s(S_P0)}, {s(S_RING)}')
    e(f's_mov_b32 {s(S_RING)}, {DUM - 3*2048}')
    e(f's_mov_b32 {s(S_PC)}, 1')
    e(f's_mov_b32 {s(S_PS)}, 2')
    assert OPT['TS_'] and LA == 3
pst(3, 6)
if not OPT['SK']:
    e(f's_waitcnt vmcnt({2*(LP_-1)})')
    for sx in range(2): e(f'ds_read_b128 {v(B+4*sx,4)}, {v(AB+sx)}')
e('s_branch BPF')
if OPT['STAMP']:
    lab('P_END')
    e(f's_mov_b32 {s(S_M)}, 0')
    pst(3, 7)
    stamp(5)

def chain():
    el = lambda k: v(D+2*k, 2); ww = lambda k: v(W2+2*k, 2)
    N = v(T, 2); Dn = v(T+2, 2)
    al()
    e(f'v_pk_fma_f32 {Dn}, {el(0)}, {s(S_DC,2)}, {s(S_DC,2)} op_sel_hi:[1,0,0]')
    e(f'v_pk_fma_f32 {N}, {ww(0)}, {el(1)}, {ww(0)}')
    e(f'v_pk_fma_f32 {N}, {ww(1)}, {Dn}, {N}')
    e(f'v_pk_fma_f32 {Dn}, {el(1)}, {Dn}, {Dn}')
    for k in range(2, 8):
        e(f'v_pk_fma_f32 {N}, {el(k)}, {N}, {N}')
        e(f'v_pk_fma_f32 {N}, {ww(k)}, {Dn}, {N}')
        e(f'v_pk_fma_f32 {Dn}, {el(k)}, {Dn}, {Dn}')
A3R = f'ds_read_b64 {v(A3,2)}, {v(ASR)}'
SCW = f'ds_write_b16 {v(ASW)}, {v(T)}'
def PM(par, qq): return f'v_mfma_f32_4x4x4_16b_bf16 {v(O,4)}, {v(A3,2)}, {v(B3+8*par+2*qq,2)}, {v(O,4)} cbsz:4 abid:{qq}'
TAIL = [[f'v_rcp_f32 {v(T+2)}, {v(T+2)}'], [f'v_rcp_f32 {v(T+3)}, {v(T+3)}'],
        [f'v_fma_f32 {v(T)}, {v(T)}, {v(T+2)}, {s(S_B2Q)}', f'v_fmac_f32 {v(T)}, {v(T+1)}, {v(T+3)}'],
        [f'v_cvt_pk_bf16_f32 {v(T)}, {v(T)}, {v(T)}']]
def draw():
    e('s_mov_b64 exec, 1')
    e(f'v_mov_b32 {v(TK)}, 4')
    e(f'ds_add_rtn_u32 {v(TK)}, {v(V16)}, {v(TK)} offset:{TKT}')
    e('s_mov_b64 exec, -1')
def dispatch(pre, add):
    for u in range(3):
        e(f's_cmp_eq_u32 {s(S_K)}, {u}')
        e(f's_cbranch_scc1 {pre}_{(u+add)%4}')
    e(f's_branch {pre}_{(3+add)%4}')

def unit(u):
    par = u & 1
    if OPT['SX']: sc = [M0S((u+LA)%4, 0), f's_mov_b32 {s(S_K)}, {u}', f's_sub_u32 {s(S_PC)}, {s(S_PC)}, 1', 's_cbranch_scc1 PEV', SCW, A3R, f's_sub_u32 {s(S_CC)}, {s(S_CC)}, 1', f's_waitcnt vmcnt({VW})']
    else: sc = [M0S((u+LA)%4, 0), f's_mov_b32 {s(S_K)}, {u}', f's_sub_u32 {s(S_PC)}, {s(S_PC)}, 1', 's_cbranch_scc1 PEV', None, None, f's_sub_u32 {s(S_CC)}, {s(S_CC)}, 1', f's_waitcnt vmcnt({VW})']
    va = TAIL + [[EX(i)] for i in range(4)]
    LW = OPT['LW']
    LT = LW in (1, 4, 5)
    if LT: sc[7] = None
    if L3:
        assert LA == 3 and not OPT['SX'] and not PX
        sc = [sc[0], sc[1], f's_mov_b64 {s(S_PCU,2)}, {s(S_PSOFF,2)}', sc[2], sc[3], None, sc[6], sc[7]]
    if OPT['EG']:
        assert LW == 2 and LA == 3 and not OPT['SK']
        sc[7] = f's_cbranch_vccnz NW_{u}'
    if OPT['SK']:
        assert LW != 1 and not OPT['SX'] and LA == 3 and not PX
        sc[5:8] = [sc[6], f's_cselect_b64 vcc, {s(S_CM,2)}, 0', f's_cbranch_vccnz NW_{u}']
    def brd():
        for sx in range(2): e(f'ds_read_b128 {v(B+4*sx,4)}, {v(AB+sx)} offset:{((u+1)%4)*2048}')
    for i in range(8):
        e(MM1(i >> 1, i & 1))
        if sc[i]: e(sc[i])
        if i == 7 and (OPT['SK'] or OPT['EG']):
            e(f's_waitcnt vmcnt({VW})')
            lab(f'NW_{u}')
        if i == 3: e(f'v_add_u32 {v(ALI)}, 16, {v(ALI)}')
        if i == 3 + L3: lab(f'RET_{u}')
        if i == 7 and L3:
            e(DMA(IDX, 0))
            e(DMA(IDX+2, 1))
        for x in va[i]: e(x)
    if not OPT['SX']: e(SCW); e(A3R)
    for qq in range(4): e(f'ds_read_b64_tr_b16 {v(B3+8*par+2*qq,2)}, {v(AT+(qq&1))} offset:{u*2048+512*qq}')
    e(IDXR(IDX, 0)); e(IDXR(IDX+2, 8))
    if not OPT['TS_']: e(f'ds_read_b32 {v(TD)}, {v(TK)}')
    if not LT: brd()
    n0 = 4 if OPT['SX'] else 8
    for i in range(4, n0): e(EX(i))
    e(f's_waitcnt lgkmcnt({(7 if LT else 9) - OPT["TS_"]})')
    for qq in range(4):
        e(PM(1-par, qq)); e(EX(n0+2*qq)); e(EX(n0+1+2*qq))
    for i in range(n0+8, 16): e(EX(i))
    if LW in (1, 2):
        e('s_waitcnt lgkmcnt(0)')
        e(DMA(IDX, 0))
        e(DMA(IDX+2, 1))
        if LW == 1:
            e(f's_waitcnt vmcnt({VW})')
            brd()
        if OPT['EG']:
            e(f's_cbranch_vccnz LB_{u}')
            lab(f'LR_{u}')
    if LW in (4, 5):
        e(f's_waitcnt vmcnt({VW})' + (' lgkmcnt(0)' if LW == 4 else ''))
        brd()
        if LW == 4:
            e(DMA(IDX, 0))
            e(DMA(IDX+2, 1))
    if OPT['XM']: e(f's_cselect_b64 exec, {s(S_EX,2)}, -1')
    HI()
    chain()
    LO()
    if OPT['XM']: e('s_mov_b64 exec, -1')
    if LW != 2 or OPT['EG']: e('s_waitcnt lgkmcnt(0)')
    if LW in (0, 5):
        e(DMA(IDX, 0))
        e(DMA(IDX+2, 1))

INLOOP[0] = 1
for u in range(4):
    lab(f'U_{u}')
    if u & 1 == 0: bstamp()
    unit(u)
    e('s_cbranch_scc1 CEV' if u < 3 else 's_cbranch_scc0 U_0')
INLOOP[0] = 2
lab('CEV')
e(f's_cmp_eq_u32 {s(S_CS)}, 0')
e('s_cbranch_scc1 EPI')
e(f's_mov_b32 {s(S_PREV)}, {s(S_CUR)}')
e(f's_and_b32 {s(S_CUR)}, {s(S_Q)}, 0xffff')
e(f's_lshr_b64 {s(S_Q,2)}, {s(S_Q,2)}, 16')
e(f's_sub_u32 {s(S_QN)}, {s(S_QN)}, 16')
e(f's_bitcmp1_b32 {s(S_CUR)}, 6')
e('s_cbranch_scc1 DRAIN')
lab('BPF')
q = LQ()
e(f's_and_b32 {s(S_T1)}, {s(S_CUR)}, 63')
e(f's_mul_i32 {s(S_T1)}, {s(S_T1)}, {TS}')
e(f's_add_u32 {s(S_T1)}, {s(S_T1)}, {TAB}')
e(f'v_lshl_add_u32 {v(T+6)}, {v(G16)}, 1, {s(S_T1)}')
e(f'v_add_u32 {v(T+7)}, {s(S_T1)}, {v(G16)}')
for jh in range(2): q.op(f'ds_read_b128 {v(D+4*jh,4)}, {v(T+6)} offset:{jh*16}', 't0')
for jh in range(2): q.op(f'ds_read_b128 {v(CB+8+4*jh,4)}, {v(V16)} offset:{WAC+(12+jh)*1024}')
for jh in range(2): q.op(f'ds_read_b128 {v(D+8+4*jh,4)}, {v(T+6)} offset:{128+jh*16}')
e(f's_mov_b32 {s(S_CC)}, 0')
e(f's_mov_b32 {s(S_CS)}, 0')
if OPT['SK']:
    e(f's_mov_b64 {s(S_CM,2)}, 0')
    e(f's_add_u32 {s(S_T0)}, {s(S_K)}, 1')
    e(f's_and_b32 {s(S_T0)}, {s(S_T0)}, 3')
    e(f'v_lshl_add_u32 {v(T+4)}, {s(S_T0)}, 11, {v(AB)}')
    e(f'v_xor_b32 {v(T+6)}, 64, {v(T+4)}')
if OPT['XM']: e(f's_mov_b64 {s(S_EX,2)}, -1')
e(f's_cmp_lg_u32 {s(S_M)}, 0')
q.wait('t0')
for c in (0, 2, 4, 6, 1, 3, 5, 7):
    x = CB + 8 if c == 6 else D if c & 1 else CB
    if c == 6: e('s_waitcnt lgkmcnt(0)')
    if c in (0, 6): al()
    for p in range(4): e(f'v_pk_fma_f32 {v(x+2*p,2)}, {v(WD+c*8+2*p,2)}, {v(D+8*(c&1)+2*p,2)}, {v(WRF(c)+2*p,2)}')
    for p in range(4): e(f'v_cvt_pk_bf16_f32 {v(WE+c*4+p)}, {v(x+2*p)}, {v(x+2*p+1)}')
    if c == 6:
        for t in range(4): e(f'ds_read_b128 {v(CB+4*t,4)}, {v(T+7)} offset:{256+64*t}')
    if c == OPT['SKP'] and OPT['SK']:
        e('s_waitcnt vmcnt(4)')
        for sx in range(2): e(f'ds_read_b128 {v(B+4*sx,4)}, {v(T+4+2*sx)}')
        al()
e('s_waitcnt lgkmcnt(0)')
e('s_cbranch_scc1 BP_X')
lab('NEXT')
dispatch('U', 1)
lab('EPI')
e(f's_and_b32 {s(S_T0)}, {s(S_PREV)}, 0x7f')
if H:
    e(f's_cmpk_ge_u32 {s(S_PREV)}, 0x1000')
    e(f's_cselect_b32 {s(S_T1)}, {H}, 0')
    e(f's_add_u32 {s(S_T0)}, {s(S_T0)}, {s(S_T1)}')
e(f'v_pk_add_f32 {v(T+4,2)}, {v(O,2)}, {v(O+2,2)}')
e(f'v_add_f32 {v(T+4)}, {v(T+4)}, {v(T+5)}')
e(f'v_lshl_add_u32 {v(T+5)}, {s(S_T0)}, 8, {v(AO)}')
e(f'v_mul_f32 {v(T+4)}, {s(S_INV)}, {v(T+4)}')
e(f's_and_b32 {s(S_T0)}, {s(S_PREV)}, 0x80')
e(f'v_cmp_class_f32_e64 {s(S_BAD,2)}, {v(T+4)}, {s(S_CLS)}')
for i in range(2): e(f'v_mov_b64 {v(O+2*i,2)}, 0')
e(f'ds_write_b32 {v(T+5)}, {v(T+4)}')
if OPT['FSLOW']: e('s_branch SLOW')
if not OPT['KILL']:
    e(f's_or_b32 {s(S_BAD)}, {s(S_BAD)}, {s(S_T0)}')
    e(f's_cmp_lg_u64 {s(S_BAD,2)}, 0')
    e('s_cbranch_scc1 SLOW')
lab('EPI_R')
e(f's_bitcmp1_b32 {s(S_CUR)}, 6')
e('s_cbranch_scc1 L_DONE')
lab('EPI_C')
e(f's_bfe_u32 {s(S_CC)}, {s(S_CUR)}, 0x40008')
e(f's_sub_u32 {s(S_CC)}, {s(S_CC)}, 2')
e(f's_mov_b32 {s(S_CS)}, 1')
if OPT['SK']: e(f's_mov_b64 {s(S_CM,2)}, -1')
if OPT['XM']:
    e(f's_lshr_b32 {s(S_T0)}, {s(S_CUR)}, 12')
    e(f's_lshl_b32 {s(S_EX)}, 0x20002, {s(S_T0)}')
    e(f's_sub_u32 {s(S_EX)}, {s(S_EX)}, 0x10001')
    e(f's_mov_b32 {s(S_EX+1)}, {s(S_EX)}')
dispatch('U', 1)
lab('PEV')
e(f's_cmp_eq_u32 {s(S_PS)}, 0')
e('s_cbranch_scc1 P_DR')
if PX:
    e(f's_cmp_eq_u32 {s(S_PS)}, 2')
    e('s_cbranch_scc1 P_FIX')
if OPT['TS_']:
    e(f'ds_read_b32 {v(TD)}, {v(TK)}')
    e('s_waitcnt lgkmcnt(0)')
lab('ADV')
e(f'v_readfirstlane_b32 {s(S_TP)}, {v(TD)}')
e(f's_mov_b32 {s(S_TP+1)}, 0')
e(f's_and_b32 {s(S_T0)}, {s(S_TP)}, 63')
e(f's_bfe_u32 {s(S_PC)}, {s(S_TP)}, 0x40008')
e('s_cbranch_scc0 AW')
if OPT['SMODE'] == 4:
    e(f's_cmp_lg_u32 {s(S_T0)}, {OPT["SEL"]}')
    e('s_cbranch_scc1 L_MS')
    e(f's_memrealtime {s(S_ST+2,2)}')
    e('s_waitcnt lgkmcnt(0)')
    lab('L_MS')
goff(S_PSOFF, S_T0, 3, 25600, S_T1)
if H:
    e(f's_lshr_b32 {s(S_T1)}, {s(S_TP)}, 12')
    e(f's_lshl4_add_u32 {s(S_T0)}, {s(S_T0)}, {s(S_T1)}')
    e(f'v_lshl_add_u32 {v(ALI)}, {s(S_T0)}, 4, {v(ALB)}')
else: e(f'v_lshl_add_u32 {v(ALI)}, {s(S_T0)}, 8, {v(ALB)}')
if OPT['NOMEM']: e(f's_mov_b32 {s(S_PSOFF)}, 0')
else: e(f's_add_u32 {s(S_PSOFF)}, {s(S_PSOFF)}, {s(S_WGH)}')
e(f's_add_u32 {s(S_PS1)}, {s(S_PSOFF)}, 1024')
if OPT['EG']:
    e(f's_and_b32 {s(S_T1)}, {s(S_TP)}, 0x7f')
    e(f's_cmp_ge_u32 {s(S_T1)}, {OPT["EG"]}')
    e('s_cselect_b64 vcc, -1, 0')
e(f's_lshl_b64 {s(S_BAD,2)}, {s(S_TP,2)}, {s(S_QN)}')
e(f's_or_b64 {s(S_Q,2)}, {s(S_Q,2)}, {s(S_BAD,2)}')
e(f's_add_u32 {s(S_QN)}, {s(S_QN)}, 16')
e(f's_mov_b32 {s(S_PS)}, 0')
e(f's_sub_u32 {s(S_PC)}, {s(S_PC)}, 3')
e('s_cbranch_scc1 P_2')
lab('P_RET')
dispatch('RET', 0)
lab('P_DR')
if not L3: e(f'v_add_u32 {v(ALI)}, 16, {v(ALI)}')
lab('P_D2')
draw()
e(f's_mov_b32 {s(S_PC)}, 1')
e(f's_mov_b32 {s(S_PS)}, 1')
dispatch('RET', 0)
lab('P_2')
e(f's_bitcmp1_b32 {s(S_TP)}, 6')
e('s_cbranch_scc0 P_D2')
e(f'v_mov_b32 {v(ALI)}, {FFB}')
e(f's_movk_i32 {s(S_PC)}, 0x100')
e('s_branch P_RET')
if OPT['EG']:
    for u in range(4):
        lab(f'LB_{u}')
        e('s_waitcnt vmcnt(4)')
        for sx in range(2): e(f'ds_read_b128 {v(B+4*sx,4)}, {v(AB+sx)} offset:{((u+1)%4)*2048}')
        e(f's_branch LR_{u}')
lab('DRAIN')
for x in sum(TAIL, []): e(x)
e(f's_bitcmp1_b32 {s(S_K)}, 0')
e(SCW); e(A3R)
e('s_waitcnt lgkmcnt(0)')
e('s_cbranch_scc1 DRAIN1')
for par in range(2):
    if par: lab('DRAIN1')
    for qq in range(4):
        e(PM(par, qq)); e('s_nop 1' if qq < 3 else 's_nop 2')
    e('s_branch EPI')

INLOOP[0] = False
lab('L_DONE')
stamp(6)
e(f's_lshl_b32 {s(S_T0)}, {s(S_WAVE)}, 11')
e(f's_add_u32 {s(S_T0)}, {s(S_T0)}, {OUT}')
e(f'v_lshl_add_u32 {v(T)}, {v(V16)}, 1, {s(S_T0)}')
e(f's_lshl_b32 {s(S_T0)}, {s(S_WAVE)}, {18 if MAP else 10}')
e('s_waitcnt lgkmcnt(0)')
e('s_barrier')
for i in range(2): e(f'ds_read_b128 {v(D+4*i,4)}, {v(T)} offset:{16*i}')
if H:
    e(f'v_cmp_le_u32 vcc, {OUT + NS*256}, {v(T)}')
    e('s_and_b64 exec, exec, vcc')
    e('s_cbranch_execz L_ST')
    for i in range(2): e(f'ds_read_b128 {v(D+8+4*i,4)}, {v(T)} offset:{H*256+16*i}')
    e('s_waitcnt lgkmcnt(0)')
    for i in range(4): e(f'v_pk_add_f32 {v(D+2*i,2)}, {v(D+2*i,2)}, {v(D+8+2*i,2)}')
    lab('L_ST')
    e('s_mov_b64 exec, -1')
e('s_waitcnt lgkmcnt(0)')
for p in range(4): e(f'v_cvt_pk_bf16_f32 {v(B+p)}, {v(D+2*p)}, {v(D+2*p+1)}')
e(f'buffer_store_dwordx4 {v(B,4)}, {v(V16)}, {s(SRD_O,4)}, {s(S_T0)} offen{POL[OPT["STP"]]}')
lab('L_FIN')
if OPT['STAMP']:
    e('s_waitcnt vmcnt(0)')
    stamp(7)
    if OPT['STAMP'] == 7:
        e(f's_sub_u32 {s(S_T0)}, {s(S_ST+2*(1 if OPT["SMODE"] == 4 else OPT["SEL"]))}, {s(S_ST)}')
        e(f's_lshl_b32 {s(S_T0)}, {s(S_T0)}, {1 if OPT["SMODE"] == 4 else 2}')
        if OPT['SMODE'] == 1:
            e(f's_sub_u32 {s(S_T0)}, {s(S_ST+8)}, {s(S_ST+6)}')
            e(f's_lshr_b32 {s(S_T0)}, {s(S_T0)}, 4')
        if OPT['SMODE'] == 2:
            e(f's_sub_u32 {s(S_T0)}, {s(S_ST+12)}, {s(S_ST+10)}')
        if OPT['SMODE'] == 3:
            e(f's_sub_u32 {s(S_T0)}, {s(S_ST+14)}, {s(S_ST)}')
            e(f's_lshl_b32 {s(S_T0)}, {s(S_T0)}, 1')
        if OPT['SELW'] >= 0:
            e(f's_cmp_eq_u32 {s(S_WAVE)}, {OPT["SELW"]}')
            e(f's_cselect_b32 {s(S_T0)}, {s(S_T0)}, 0')
        if OPT['SELG'] >= 0:
            e(f's_cmp_eq_u32 s2, {OPT["SELG"]}')
            e(f's_cselect_b32 {s(S_T0)}, {s(S_T0)}, 0')
        e(f's_add_u32 {s(S_T0)}, {s(S_T0)}, {OPT["SPIN"]}')
        lab('L_SPIN')
        e('s_sleep 1')
        e('s_memrealtime s[4:5]')
        e('s_waitcnt lgkmcnt(0)')
        e(f's_sub_u32 {s(S_T1)}, s4, {s(S_ST)}')
        e(f's_cmp_lt_u32 {s(S_T1)}, {s(S_T0)}')
        e('s_cbranch_scc1 L_SPIN')
    else:
        e('s_load_dwordx2 s[4:5], s[0:1], 72')
        e('s_waitcnt lgkmcnt(0)')
        e('s_mov_b32 s6, 0x1000000')
        e('s_mov_b32 s7, 0x20000')
        e(f's_mul_i32 {s(S_T0)}, s2, {NW}')
        e(f's_add_u32 {s(S_T0)}, {s(S_T0)}, {s(S_WAVE)}')
        if OPT['STAMP'] == 8:
            e(f's_lshl_b32 {s(S_T0)}, {s(S_T0)}, 8')
            e(f'v_lshrrev_b32 {v(T)}, 2, {v(V16)}')
            e(f'buffer_store_dword {v(TSV)}, {v(T)}, s[4:7], {s(S_T0)} offen')
        else:
            e(f's_lshl_b32 {s(S_T0)}, {s(S_T0)}, 5')
            e(f'v_mov_b32 {v(T+1)}, {s(S_T0)}')
            for i in range(8):
                e(f'v_mov_b32 {v(T)}, {s(S_ST+2*i)}')
                e(f'buffer_store_dword {v(T)}, {v(T+1)}, s[4:7], 0 offen offset:{4*i}')
e('s_endpgm')

lab('AW')
e('s_sleep 1')
e(f'ds_read_b32 {v(TD)}, {v(TK)}')
e('s_waitcnt lgkmcnt(0)')
e('s_branch ADV')
lab('DRAW_P')
draw()
e(f's_add_u32 {s(S_PC)}, {s(S_PC)}, 2')
e(f's_mov_b32 {s(S_PS)}, 1')
if not OPT['TS_']:
    e('s_waitcnt lgkmcnt(0)')
    e(f'ds_read_b32 {v(TD)}, {v(TK)}')
e('s_branch DRET_P')
if PX:
    lab('P_FIX')
    e(f's_mov_b32 {s(S_RING)}, {s(S_P0)}')
    e(f's_mov_b32 m0, {s(S_RING)}')
    e(f'v_mov_b32 {v(ALI)}, {v(TD)}')
    e(f's_and_b32 {s(S_PS)}, {s(S_MO)}, 1')
    e(f's_lshr_b32 {s(S_PC)}, {s(S_MO)}, 1')
    e(f's_sub_u32 {s(S_PC)}, {s(S_PC)}, 1')
    e('s_cbranch_scc1 PEV')
    e(f'v_add_u32 {v(ALI)}, 16, {v(ALI)}')
    e('s_branch RET_1')
lab('BP_X')
if OPT['STAMP']:
    e(f's_cmp_eq_u32 {s(S_M)}, 3')
    e('s_cbranch_scc1 P_END')
e(f's_cmp_eq_u32 {s(S_M)}, 1')
e(f's_mov_b32 {s(S_M)}, 0')
e('s_cbranch_scc1 SLOW_W')
e('s_branch EPI_C')

lab('SLOW')
ACC = WR; BS_ = WR + 16; Y = WR + 24; Z = WR + 28; WX = WR + 32
e(f's_bitcmp1_b32 {s(S_PREV)}, 6')
e('s_cbranch_scc1 EPI_R')
if OPT['STAMP'] == 9: e(f's_add_u32 {s(S_ST)}, {s(S_ST)}, 1')
e(f's_mov_b32 {s(S_SV)}, {s(S_CUR)}')
e(f's_mov_b32 {s(S_CUR)}, {s(S_PREV)}')
e(f's_mov_b32 {s(S_M)}, 1')
e(f'ds_write_b32 {v(T+5)}, {v(O)}')
e('s_branch BPF')
lab('SLOW_W')
e('s_load_dwordx2 s[4:5], s[0:1], 40')
e(f'v_lshrrev_b32 {v(Y)}, 1, {v(G16)}')
e('s_waitcnt lgkmcnt(0)')
for t in range(4): e(f'global_load_dwordx2 {v(BS_+2*t,2)}, {v(Y)}, s[4:5] offset:{32*t}')
e('s_waitcnt vmcnt(0)')
for i in range(8):
    e(f'v_lshlrev_b32 {v(WX+2*i)}, 16, {v(BS_+i)}')
    e(f'v_and_b32 {v(WX+2*i+1)}, 0xffff0000, {v(BS_+i)}')
e(f's_mov_b32 {s(S_CUR)}, {s(S_SV)}')
e(f's_and_b32 {s(S_T0)}, {s(S_PREV)}, 63')
e(f's_mov_b32 {s(S_T1)}, 0' if OPT['XM'] else f's_lshr_b32 {s(S_T1)}, {s(S_PREV)}, 12')
e(f's_bfe_u32 {s(S_T3)}, {s(S_PREV)}, 0x40008')
e(f's_lshl4_add_u32 {s(S_T1)}, {s(S_T0)}, {s(S_T1)}')
e(f's_lshl_b32 {s(S_T1)}, {s(S_T1)}, 4')
e(f's_add_u32 {s(S_SV)}, {s(S_T1)}, {LIST}')
e(f's_bitcmp1_b32 {s(S_PREV)}, 7')
e(f's_cselect_b64 {s(S_TP,2)}, -1, 0')
e(f's_cselect_b32 {s(S_T3)}, 13, {s(S_T3)}')
e(f'v_bfe_u32 {v(Y)}, {v(V16)}, 4, 4')
e(f'v_mov_b32 {v(Y+3)}, {v(G16)}')
for i in range(8): e(f'v_mov_b64 {v(ACC+2*i,2)}, 0')
goff(S_T1, S_T0, 3, 25600, S_T2)
e(f's_add_u32 {s(S_T1)}, {s(S_T1)}, {s(S_WGH)}')
goff(S_T2, S_T0, 3, 400, S_BAD)
lab('SLOW_L')
e(f'v_add_u32 {v(Y+1)}, {s(S_SV)}, {v(Y)}')
e(f'ds_read_u8 {v(Y+2)}, {v(Y+1)}')
e('s_waitcnt lgkmcnt(0)')
e(f'v_cndmask_b32_e64 {v(Y+2)}, {v(Y+2)}, {v(Y)}, {s(S_TP,2)}')
e(f'v_lshlrev_b32 {v(Y+1)}, 1, {v(Y+2)}')
for sx in range(2): e(f'buffer_load_dwordx4 {v(BS_+4*sx,4)}, {v(Y+2,2)}, {s(SRD_H,4)}, {s(S_T1)} idxen offen offset:{1024+64*sx}')
e(f'buffer_load_ushort {v(Y+1)}, {v(Y+1)}, {s(SRD_M,4)}, {s(S_T2)} offen')
e(f'v_cmp_gt_u32 vcc, 200, {v(Y+2)}')
e(f'v_add_u32 {v(Y)}, 16, {v(Y)}')
e('s_waitcnt vmcnt(0)')
for t in range(4):
    for sx in range(2): e(MM1(t, sx, BS_))
e(f'v_lshlrev_b32 {v(Y+1)}, 16, {v(Y+1)}')
e(f'v_cndmask_b32 {v(Y+1)}, 0, {v(Y+1)}, vcc')
e('s_nop 7')
for i in range(16): e(EX(i))
for i in range(16): e(f'v_add_f32 {v(D+i)}, 1.0, {v(D+i)}')
for i in range(16): e(f'v_rcp_f32 {v(D+i)}, {v(D+i)}')
e(f'v_mul_f32 {v(Z)}, {v(D)}, {v(WX)}')
for i in range(1, 16): e(f'v_fmac_f32 {v(Z)}, {v(D+i)}, {v(WX+i)}')
e(f'v_mov_b32 {v(Z+1)}, {v(Z)}')
e('s_nop 1')
e(f'v_permlane32_swap_b32 {v(Z)}, {v(Z+1)}')
e(f'v_add_f32 {v(Z)}, {v(Z)}, {v(Z+1)}')
e(f'v_mov_b32 {v(Z+1)}, {v(Z)}')
e('s_nop 1')
e(f'v_permlane16_swap_b32 {v(Z)}, {v(Z+1)}')
e(f'v_add_f32 {v(Z)}, {v(Z)}, {v(Z+1)}')
e(f'v_add_f32 {v(Z)}, {s(S_B2)}, {v(Z)}')
e(f'v_mul_f32 {v(Z)}, {v(Z)}, {v(Y+1)}')
for i in range(8):
    e(f'v_lshlrev_b32 {v(Z+1)}, 16, {v(BS_+i)}')
    e(f'v_and_b32 {v(Z+2)}, 0xffff0000, {v(BS_+i)}')
    e(f'v_fmac_f32 {v(ACC+2*i)}, {v(Z)}, {v(Z+1)}')
    e(f'v_fmac_f32 {v(ACC+2*i+1)}, {v(Z)}, {v(Z+2)}')
e(f's_sub_u32 {s(S_T3)}, {s(S_T3)}, 1')
e(f's_cmp_lg_u32 {s(S_T3)}, 0')
e('s_cbranch_scc1 SLOW_L')
e(f'v_readfirstlane_b32 {s(S_T0)}, {v(T+5)}')
e('s_nop 1')
e(f'v_lshl_add_u32 {v(Z)}, {v(G16)}, 1, {s(S_T0)}')
for i in range(16): e(f'ds_add_f32 {v(Z)}, {v(ACC+i)} offset:{128*(i>>3)+4*(i&7)}')
e('s_waitcnt lgkmcnt(0)')
e(f's_bitcmp1_b32 {s(S_CUR)}, 6')
e('s_cbranch_scc1 L_DONE')
wr_reads()
e(f's_mov_b32 {s(S_M)}, 2')
e('s_branch BPF')
lab('L_END')
e('s_endpgm')
L.append(f""".section .rodata,"a"
.p2align 6
.amdhsa_kernel {KN}
  .amdhsa_next_free_vgpr {NVGPR}
  .amdhsa_next_free_sgpr {NSGPR}
  .amdhsa_accum_offset {(NVGPR+3)//4*4}
  .amdhsa_group_segment_fixed_size 0
  .amdhsa_kernarg_size 80
  .amdhsa_user_sgpr_count 2
  .amdhsa_user_sgpr_kernarg_segment_ptr 1
  .amdhsa_system_sgpr_workgroup_id_x 1
.end_amdhsa_kernel""")

text = '\n'.join(L) + '\n'
outs = [a for a in sys.argv[1:] if '=' not in a]
if outs:
    open(outs[0], 'w').write(text)
    import hazard
    n = hazard.check(text, verbose=not OPT['KILL'])
    print(f'{outs[0]}: vgpr={NVGPR} lds={LDS_BYTES} hazards={n}', file=sys.stderr)
else:
    sys.stdout.write(text)
```
